```python
import torch

def _softmax(x, axis=-1):
    return torch.softmax(x, dim=axis)
def _gelu(x):
    return torch.nn.functional.gelu(x, approximate="tanh")
def _silu(x):
    return torch.nn.functional.silu(x)
def _sigmoid(x):
    return torch.sigmoid(x)
def _layernorm(x, axis=-1, eps=1e-5):
    m = x.mean(dim=axis, keepdim=True)
    v = x.var(dim=axis, keepdim=True, unbiased=False)
    return (x - m) / torch.sqrt(v + eps)
def _scatter_add(tgt, idx, src, axis=0):
    return tgt.clone().index_add_(axis, idx, src)
def _segment_sum(src, seg, n):
    out = torch.zeros((n,) + src.shape[1:], dtype=src.dtype)
    return out.index_add_(0, seg, src)
def _pad(x, pw):
    flat = tuple(v for pair in reversed(pw) for v in pair)
    return torch.nn.functional.pad(x, flat)

kernel_name = 'standalone__sliding_local_fixed_window__prompt'

def setup_inputs():

    _w = (lambda a: (lambda t: t.to(torch.bfloat16) if t.is_floating_point() else t)(torch.as_tensor(a)))
    B, H, S, D = 1, 32, 2048, 192
    return {
        "q": _w((lambda *s: torch.randn(*s, dtype=torch.bfloat16) * 0.8)(B, H, S, D)),
        "k": _w((lambda *s: torch.randn(*s, dtype=torch.bfloat16) * 0.8)(B, H, S, D)),
        "v": _w((lambda *s: torch.randn(*s, dtype=torch.bfloat16) * 0.05)(B, H, S, D)),
    }

def reference(q, k, v):
    B, H, S, D = q.shape
    w = 32
    pos = torch.arange(S)
    rel = pos[:, None] - pos[None, :]
    mask = (rel >= 0) & (rel < w)
    scores = torch.einsum("bhqd,bhkd->bhqk", q, k) * (D ** -0.5)
    scores = torch.where(mask[None, None], scores, (lambda x, dt: x.to(dt))(torch.as_tensor(-1e9), q.dtype))
    p = _softmax(scores, axis=-1)
    return torch.einsum("bhqk,bhkd->bhqd", p, v)
```

```python
import sys
import struct

NAME = "standalone__sliding_local_fixed_window__prompt"

opts = dict(
    ld="",
    st="",
    altdir=1,
    xcdmap=1,
    mimic=1,
)
for a in sys.argv[2:]:
    k, v = a.split("=")
    opts[k] = type(opts[k])(v) if k in opts and not isinstance(opts[k], str) else v

LD = (" " + opts["ld"].replace("+", " ")) if opts["ld"] else ""
ST = (" " + opts["st"].replace("+", " ")) if opts["st"] else ""

TILE = 12288
KRING = 0
VRING = 4 * TILE
QRING = 8 * TILE
OBUF = 12 * TILE
LDS = 13 * TILE
NBYTES = 32 * 2048 * 384

L = []


def e(s=""):
    L.append("    " + s if s and not s.endswith(":") else s)


def f32hex(x):
    return "0x%08x" % struct.unpack("<I", struct.pack("<f", x))[0]


sQ, sK, sV, sO = 12, 16, 20, 24
sStep = 28
sDir = 29
sBase = 30
sTile = 31
sW3 = 32
sA = 33
sKVn = 34
sQn = 35
sM = 36
sScale = 44
sLog2e = 45
sT0, sT1, sT2, sT3, sT4, sT5 = 46, 47, 48, 49, 50, 51
sKVoff = 52
sKVlds = 53
sMinOff = 54
sQslot = 55
sHi = 56
sB = 57

vOff = 1
vA0, vA1 = 4, 5
vU0, vU1 = 6, 7
vW0, vW1 = 8, 9
vR = 10
vPM = 11
vInit0 = 16
vInit1 = 20
vAQ = 24
vAK = 26
vAV = 32
vQ = 40
vK = 64
vS = 136
vX = 148
vT = 156
vP = 164
vVa = 64
vVb = 88
vAcc = 100
vOp = 124
vRb = 172
NVGPR = 184


def srd(s):
    return "s[%d:%d]" % (s, s + 3)


def vr(a, n):
    return "v[%d:%d]" % (a, a + n - 1) if n > 1 else "v%d" % a


def dma3(s_srd, s_off):
    for j in range(3):
        o = " offset:%d" % (j * 1024) if j else ""
        e("buffer_load_dwordx4 v%d, %s, s%d offen%s%s lds" % (vOff + j, srd(s_srd), s_off, o, LD))


def kv_prep():
    e("s_mul_i32 s%d, s%d, %d" % (sKVoff, sKVn, TILE))
    e("s_and_b32 s%d, s%d, 3" % (sKVlds, sKVn))
    e("s_add_i32 s%d, s%d, s%d" % (sKVoff, sKVoff, sBase))
    e("s_mul_i32 s%d, s%d, %d" % (sKVlds, sKVlds, TILE))
    e("s_max_i32 s%d, s%d, s%d" % (sKVoff, sKVoff, sMinOff))
    e("s_add_u32 s%d, s%d, s%d" % (sKVlds, sKVlds, sW3))


def load_k(off=None, lds=None):
    e("s_mov_b32 m0, s%d" % (lds or sKVlds))
    e("s_nop 0")
    dma3(sK, off or sKVoff)


def load_v(off=None, lds=None):
    e("s_add_u32 m0, s%d, %d" % (lds or sKVlds, VRING))
    e("s_nop 0")
    dma3(sV, off or sKVoff)


def load_q():
    e("s_and_b32 s%d, s%d, 3" % (sT0, sQslot))
    e("s_mul_i32 s%d, s%d, %d" % (sT1, sQn, TILE))
    e("s_mul_i32 s%d, s%d, %d" % (sT0, sT0, TILE))
    e("s_add_u32 s%d, s%d, s%d" % (sT1, sT1, sBase))
    e("s_add_u32 s%d, s%d, s%d" % (sT0, sT0, sW3))
    e("s_add_u32 m0, s%d, %d" % (sT0, QRING))
    e("s_add_u32 s%d, s%d, 1" % (sQslot, sQslot))
    dma3(sQ, sT1)
    e("s_add_i32 s%d, s%d, s%d" % (sQn, sQn, sDir))


seq = ["K0", "Q0", "K1", "V0", "V1", "Q1", "K2", "V2", "Q2", "K3", "V3", "Q3"]
N1, N2 = [], []
for i in range(8):
    need = max(seq.index("Q%d" % i), seq.index("K%d" % (i + 1)))
    N1.append(3 * (len(seq) - 1 - need))
    need = seq.index("V%d" % (i + 1))
    N2.append(3 * (len(seq) - 1 - need))
    if i + 4 <= 8:
        seq.append("K%d" % (i + 4))
        seq.append("V%d" % (i + 4))
    if i + 4 <= 7:
        seq.append("Q%d" % (i + 4))
    seq.append("O%d" % i)


def wait_ladder(N, tag):
    vals = sorted(set(N), reverse=True)
    for idx, v in enumerate(vals):
        e("s_waitcnt vmcnt(%d)" % v)
        if idx != len(vals) - 1:
            mask = sum(1 << i for i in range(8) if N[i] == v)
            e("s_bitcmp1_b32 %d, s%d" % (mask, sStep))
            e("s_cbranch_scc1 L_%s_done" % tag)
    e("L_%s_done:" % tag)


def g_of(vdst, vrow, vtmp):
    e("v_lshrrev_b32 v%d, 1, v%d" % (vtmp, vrow))
    e("v_xor_b32 v%d, v%d, v%d" % (vtmp, vtmp, vrow))
    e("v_and_b32 v%d, 4, v%d" % (vtmp, vtmp))
    e("v_and_or_b32 v%d, v%d, 2, v%d" % (vtmp, vrow, vtmp))
    e("v_bfe_u32 v%d, v%d, 3, 1" % (vdst, vrow))
    e("v_or_b32 v%d, v%d, v%d" % (vdst, vdst, vtmp))
    e("v_lshlrev_b32 v%d, 4, v%d" % (vdst, vdst))


e("s_cmp_ge_u32 s2, 256")
e("s_cbranch_scc1 L_end")
e("s_load_dwordx2 s[%d:%d], s[0:1], 8" % (sK, sK + 1))
e("s_load_dwordx2 s[%d:%d], s[0:1], 0" % (sQ, sQ + 1))
e("s_load_dwordx2 s[%d:%d], s[0:1], 16" % (sV, sV + 1))
e("s_load_dwordx2 s[%d:%d], s[0:1], 24" % (sO, sO + 1))
e("v_lshrrev_b32 v40, 6, v0")
e("v_and_b32 v41, 63, v0")
e("v_readfirstlane_b32 s%d, v40" % sT0)
for s in (sQ, sK, sV, sO):
    e("s_mov_b32 s%d, %d" % (s + 2, NBYTES))
    e("s_mov_b32 s%d, 0x20000" % (s + 3))
e("v_mul_u32_u24 v42, 24, v40")
e("v_lshrrev_b32 v43, 3, v41")
e("v_add_u32 v42, v42, v43")
e("v_mul_u32_u24 v44, 3072, v40")
e("v_lshl_add_u32 v44, v41, 4, v44")
for j in range(3):
    e("v_add_u32 v45, %d, v42" % (8 * j))
    e("v_mul_u32_u24 v45, 171, v45")
    e("v_lshrrev_b32 v45, 9, v45")
    g_of(46, 45, 47)
    e("v_xor_b32 v%d, v44, v46" % (vOff + j))
if opts["xcdmap"]:
    e("s_and_b32 s%d, s2, 7" % sT1)
    e("s_lshr_b32 s%d, s2, 6" % sT2)
    e("s_lshl_b32 s%d, s%d, 3" % (sT2, sT2))
    e("s_add_u32 s%d, s%d, s%d" % (sT1, sT1, sT2))
    e("s_bfe_u32 s%d, s2, 0x30003" % sT2)
else:
    e("s_lshr_b32 s%d, s2, 3" % sT1)
    e("s_and_b32 s%d, s2, 7" % sT2)
e("s_mul_i32 s%d, s%d, %d" % (sMinOff, sT1, 2048 * 384))
e("s_mul_i32 s%d, s%d, %d" % (sBase, sT2, 256 * 384))
e("s_add_u32 s%d, s%d, s%d" % (sBase, sBase, sMinOff))
e("s_mul_i32 s%d, s%d, 3072" % (sW3, sT0))
e("s_lshr_b32 s%d, s%d, 1" % (sA, sT0))
e("s_and_b32 s%d, s%d, 1" % (sB, sT0))
if opts["altdir"]:
    e("s_bitcmp1_b32 s%d, 0" % sT2)
    e("s_cselect_b32 s%d, -1, 1" % sDir)
    e("s_cselect_b32 s%d, 7, -1" % sKVn)
    e("s_cselect_b32 s%d, 7, 0" % sQn)
    e("s_cselect_b32 s%d, 7, 0" % sTile)
else:
    e("s_mov_b32 s%d, 1" % sDir)
    e("s_mov_b32 s%d, -1" % sKVn)
    e("s_mov_b32 s%d, 0" % sQn)
    e("s_mov_b32 s%d, 0" % sTile)
e("s_mov_b32 s%d, 0" % sQslot)
e("s_mov_b32 s%d, 0" % sStep)
e("s_mov_b32 s%d, s%d" % (sT5, sT2))
kv_prep()
e("s_mov_b32 s%d, s%d" % (sT3, sKVoff))
e("s_mov_b32 s%d, s%d" % (sT4, sKVlds))
e("s_add_i32 s%d, s%d, s%d" % (sKVn, sKVn, sDir))
e("s_waitcnt lgkmcnt(0)")
load_k(sT3, sT4)
load_q()
kv_prep()
load_k()
load_v(sT3, sT4)
load_v()
for n in range(2):
    e("s_add_i32 s%d, s%d, s%d" % (sKVn, sKVn, sDir))
    load_q()
    kv_prep()
    load_k()
    load_v()
e("s_add_i32 s%d, s%d, s%d" % (sKVn, sKVn, sDir))
load_q()

e("v_and_b32 v42, 15, v41")
e("v_lshrrev_b32 v43, 4, v41")
g_of(46, 42, 47)
e("v_mul_u32_u24 v44, 384, v42")
e("v_lshlrev_b32 v45, 4, v43")
e("v_xor_b32 v45, v45, v46")
e("v_add_u32 v%d, v44, v45" % vA0)
e("v_xor_b32 v%d, 64, v%d" % (vA1, vA0))
e("v_lshrrev_b32 v45, 1, v43")
e("v_lshlrev_b32 v45, 4, v45")
e("v_xor_b32 v45, v45, v46")
e("s_lshl_b32 s%d, s%d, 6" % (sT0, sB))
e("v_xor_b32 v45, s%d, v45" % sT0)
e("v_and_b32 v47, 1, v43")
e("v_lshl_add_u32 v45, v47, 3, v45")
e("v_add_u32 v45, v44, v45")
e("s_mul_i32 s%d, s%d, 6144" % (sT1, sA))
e("s_add_u32 s%d, s%d, %d" % (sT1, sT1, OBUF))
e("v_add_u32 v%d, s%d, v45" % (vW0, sT1))
e("v_xor_b32 v%d, 32, v%d" % (vW1, vW0))
e("v_lshlrev_b32 v45, 2, v43")
for i in range(4):
    e("v_add_u32 v47, %d, v45" % i)
    e("v_cmp_le_u32 s[%d:%d], v47, v42" % (sM + 2 * i, sM + 2 * i + 1))
e("s_mov_b32 s%d, 0xffff0000" % sHi)
e("v_mov_b32 v48, 0xffff")
e("v_mov_b32 v49, s%d" % sHi)
for k in range(2):
    e("v_cndmask_b32 v50, 0, v48, s[%d:%d]" % (sM + 4 * k, sM + 4 * k + 1))
    e("v_cndmask_b32 v51, 0, v49, s[%d:%d]" % (sM + 4 * k + 2, sM + 4 * k + 3))
    e("v_or_b32 v%d, v50, v51" % (vPM + k))
    e("v_not_b32 v%d, v%d" % (vPM + 2 + k, vPM + k))
e("v_lshrrev_b32 v45, 2, v41")
g_of(46, 45, 47)
e("v_mul_u32_u24 v44, 384, v45")
e("v_bfe_u32 v47, v41, 1, 1")
e("v_lshlrev_b32 v47, 4, v47")
e("v_xor_b32 v46, v46, v47")
e("v_xor_b32 v46, s%d, v46" % sT0)
e("v_and_b32 v47, 1, v41")
e("v_lshl_add_u32 v46, v47, 3, v46")
e("v_add_u32 v46, v44, v46")
e("v_add_u32 v%d, %d, v46" % (vU0, VRING))
e("v_xor_b32 v%d, 32, v%d" % (vU1, vU0))
e("s_add_u32 s%d, s%d, %d" % (sT1, sW3, OBUF))
e("v_lshlrev_b32 v%d, 4, v41" % vR)
e("v_add_u32 v%d, s%d, v%d" % (vR, sT1, vR))
e("s_cmp_eq_u32 s%d, 0" % sT5)
e("s_cselect_b32 s%d, 0xff800000, 0" % sT0)
e("s_cmp_eq_u32 s%d, 0" % sA)
e("s_cselect_b32 s%d, s%d, 0" % (sT1, sT0))
for i in range(4):
    e("v_mov_b32 v%d, s%d" % (vInit0 + i, sT0))
    e("v_mov_b32 v%d, s%d" % (vInit1 + i, sT1))
e("s_mov_b32 s%d, %s" % (sScale, f32hex(192 ** -0.5)))
if opts["mimic"]:
    e("s_mov_b32 s%d, %s" % (sLog2e, f32hex(1.4426950408889634)))
else:
    e("s_mov_b32 s%d, %s" % (sLog2e, f32hex(1.4426950408889634 * 192 ** -0.5)))

e("L_loop:")
e("s_and_b32 s%d, s%d, 3" % (sT0, sStep))
e("s_lshl_b32 s%d, s%d, 1" % (sT0, sT0))
e("s_add_u32 s%d, s%d, s%d" % (sT0, sT0, sA))
e("s_mul_i32 s%d, s%d, 6144" % (sT0, sT0))
e("s_add_u32 s%d, s%d, %d" % (sT0, sT0, QRING))
e("v_add_u32 v%d, s%d, v%d" % (vAQ, sT0, vA0))
e("v_add_u32 v%d, s%d, v%d" % (vAQ + 1, sT0, vA1))
e("s_lshl_b32 s%d, s%d, 1" % (sT1, sTile))
e("s_add_u32 s%d, s%d, s%d" % (sT1, sT1, sA))
for j in range(3):
    e("s_add_u32 s%d, s%d, %d" % (sT2, sT1, 6 + j))
    e("s_and_b32 s%d, s%d, 7" % (sT2, sT2))
    e("s_mul_i32 s%d, s%d, 6144" % (sT2, sT2))
    e("v_add_u32 v%d, s%d, v%d" % (vAK + 2 * j, sT2, vA0))
    e("v_add_u32 v%d, s%d, v%d" % (vAK + 2 * j + 1, sT2, vA1))
    e("v_add_u32 v%d, s%d, v%d" % (vAV + 2 * j, sT2, vU0))
    e("v_add_u32 v%d, s%d, v%d" % (vAV + 2 * j + 1, sT2, vU1))
kv_prep()
wait_ladder(N1, "w1")
e("s_barrier")
def qk_reads(i):
    o = (i >> 1) * 128
    e("ds_read_b128 %s, v%d offset:%d" % (vr(vQ + 4 * i, 4), vAQ + (i & 1), o))
    for j in range(3):
        e("ds_read_b128 %s, v%d offset:%d" % (vr(vK + 12 * i + 4 * j, 4), vAK + 2 * j + (i & 1), o))


for i in range(3):
    qk_reads(i)
for k in range(6):
    e("s_waitcnt lgkmcnt(%d)" % (4 * min(2, 5 - k)))
    for j in range(3):
        c = [vr(vInit0, 4), vr(vInit1, 4), "0"][j] if k == 0 else vr(vS + 4 * j, 4)
        e("v_mfma_f32_16x16x32_bf16 %s, %s, %s, %s" % (vr(vS + 4 * j, 4), vr(vK + 12 * k + 4 * j, 4), vr(vQ + 4 * k, 4), c))
    if k + 3 < 6:
        qk_reads(k + 3)
for i in range(4):
    e("v_mov_b32 v%d, 0" % (vInit0 + i))
    e("v_mov_b32 v%d, 0" % (vInit1 + i))
e("s_nop 0")
for i in range(4):
    e("v_cndmask_b32 v%d, v%d, v%d, s[%d:%d]" % (vX + i, vS + i, vS + 8 + i, sM + 2 * i, sM + 2 * i + 1))
xs = [vX + i for i in range(4)] + [vS + 4 + i for i in range(4)]
ys = [vX + i for i in range(8)]
if opts["mimic"]:
    for p in range(4):
        e("v_cvt_pk_bf16_f32 v%d, v%d, v%d" % (vT + p, xs[2 * p], xs[2 * p + 1]))
    for p in range(4):
        e("v_lshlrev_b32 v%d, 16, v%d" % (ys[2 * p], vT + p))
        e("v_and_b32 v%d, s%d, v%d" % (ys[2 * p + 1], sHi, vT + p))
    for p in range(8):
        e("v_mul_f32 v%d, s%d, v%d" % (ys[p], sScale, ys[p]))
    for p in range(4):
        e("v_cvt_pk_bf16_f32 v%d, v%d, v%d" % (vT + p, ys[2 * p], ys[2 * p + 1]))
    for p in range(4):
        e("v_lshlrev_b32 v%d, 16, v%d" % (ys[2 * p], vT + p))
        e("v_and_b32 v%d, s%d, v%d" % (ys[2 * p + 1], sHi, vT + p))
else:
    ys = xs
m, m2 = vT + 4, vT + 5
e("v_max3_f32 v%d, v%d, v%d, v%d" % (m, ys[0], ys[1], ys[2]))
e("v_max3_f32 v%d, v%d, v%d, v%d" % (m2, ys[3], ys[4], ys[5]))
e("v_max3_f32 v%d, v%d, v%d, v%d" % (m, m, ys[6], ys[7]))
e("v_max_f32 v%d, v%d, v%d" % (m, m, m2))
e("v_mov_b32 v%d, v%d" % (m2, m))
e("s_nop 1")
e("v_permlane16_swap_b32 v%d, v%d" % (m, m2))
e("s_nop 0")
e("v_max_f32 v%d, v%d, v%d" % (m, m, m2))
e("v_mov_b32 v%d, v%d" % (m2, m))
e("s_nop 1")
e("v_permlane32_swap_b32 v%d, v%d" % (m, m2))
e("s_nop 0")
e("v_max_f32 v%d, v%d, v%d" % (m, m, m2))
e("v_mul_f32 v%d, s%d, v%d" % (m, sLog2e, m))
es = [vX + i for i in range(8)]
for p in range(8):
    e("v_fma_f32 v%d, v%d, s%d, -v%d" % (es[p], ys[p], sLog2e, m))
for p in range(8):
    e("v_exp_f32 v%d, v%d" % (es[p], es[p]))
sm, sm2 = vT + 6, vT + 7
e("v_add_f32 v%d, v%d, v%d" % (sm, es[0], es[1]))
e("v_add_f32 v%d, v%d, v%d" % (sm2, es[2], es[3]))
e("v_add_f32 v%d, v%d, v%d" % (sm, sm, es[4]))
e("v_add_f32 v%d, v%d, v%d" % (sm2, sm2, es[5]))
e("v_add_f32 v%d, v%d, v%d" % (sm, sm, es[6]))
e("v_add_f32 v%d, v%d, v%d" % (sm2, sm2, es[7]))
e("v_add_f32 v%d, v%d, v%d" % (sm, sm, sm2))
e("v_mov_b32 v%d, v%d" % (sm2, sm))
e("s_nop 1")
e("v_permlane16_swap_b32 v%d, v%d" % (sm, sm2))
e("s_nop 0")
e("v_add_f32 v%d, v%d, v%d" % (sm, sm, sm2))
e("v_mov_b32 v%d, v%d" % (sm2, sm))
e("s_nop 1")
e("v_permlane32_swap_b32 v%d, v%d" % (sm, sm2))
e("s_nop 0")
e("v_add_f32 v%d, v%d, v%d" % (sm, sm, sm2))
e("v_rcp_f32 v%d, v%d" % (sm, sm))
e("s_nop 0")
for p in range(8):
    e("v_mul_f32 v%d, v%d, v%d" % (es[p], es[p], sm))
e("v_cvt_pk_bf16_f32 v%d, v%d, v%d" % (vT, es[0], es[1]))
e("v_cvt_pk_bf16_f32 v%d, v%d, v%d" % (vT + 1, es[2], es[3]))
e("v_cvt_pk_bf16_f32 v%d, v%d, v%d" % (vP + 2, es[4], es[5]))
e("v_cvt_pk_bf16_f32 v%d, v%d, v%d" % (vP + 3, es[6], es[7]))
e("v_and_b32 v%d, v%d, v%d" % (vP, vT, vPM + 2))
e("v_and_b32 v%d, v%d, v%d" % (vP + 1, vT + 1, vPM + 3))
e("v_and_b32 v%d, v%d, v%d" % (vP + 4, vT, vPM))
e("v_and_b32 v%d, v%d, v%d" % (vP + 5, vT + 1, vPM + 1))

wait_ladder(N2, "w2")
e("s_barrier")
for tt in range(6):
    hi, lo = tt >> 1, tt & 1
    for j in range(2):
        e("ds_read_b64_tr_b16 %s, v%d offset:%d" % (vr(vVa + 4 * tt + 2 * j, 2), vAV + 2 * j + lo, hi * 128))
e("s_cmp_gt_u32 s%d, 4" % sStep)
e("s_cbranch_scc1 L_skipk")
load_k()
e("L_skipk:")
for tt in range(6):
    hi, lo = tt >> 1, tt & 1
    e("s_waitcnt lgkmcnt(%d)" % (10 - 2 * tt + tt))
    e("v_mfma_f32_16x16x32_bf16 %s, %s, %s, 0" % (vr(vAcc + 4 * tt, 4), vr(vVa + 4 * tt, 4), vr(vP, 4)))
    e("ds_read_b64_tr_b16 %s, v%d offset:%d" % (vr(vVb + 2 * tt, 2), vAV + 4 + lo, hi * 128))
for tt in range(6):
    e("s_waitcnt lgkmcnt(%d)" % (5 - tt))
    e("v_mfma_f32_16x16x16_bf16 %s, %s, %s, %s" % (vr(vAcc + 4 * tt, 4), vr(vVb + 2 * tt, 2), vr(vP + 4, 2), vr(vAcc + 4 * tt, 4)))
e("s_nop 1")
for tt in range(6):
    hi, lo = tt >> 1, tt & 1
    if tt == 5:
        e("s_nop 0")
    e("v_cvt_pk_bf16_f32 v%d, v%d, v%d" % (vOp + 2 * tt, vAcc + 4 * tt, vAcc + 4 * tt + 1))
    e("v_cvt_pk_bf16_f32 v%d, v%d, v%d" % (vOp + 2 * tt + 1, vAcc + 4 * tt + 2, vAcc + 4 * tt + 3))
    e("ds_write_b64 v%d, %s offset:%d" % (vW0 + lo, vr(vOp + 2 * tt, 2), hi * 128))
e("s_waitcnt lgkmcnt(0)")
e("s_barrier")
for j in range(3):
    e("ds_read_b128 %s, v%d offset:%d" % (vr(vRb + 4 * j, 4), vR, j * 1024))
e("s_cmp_gt_u32 s%d, 4" % sStep)
e("s_cbranch_scc1 L_skipv")
load_v()
e("s_add_i32 s%d, s%d, s%d" % (sKVn, sKVn, sDir))
e("s_cmp_gt_u32 s%d, 3" % sStep)
e("s_cbranch_scc1 L_skipv")
load_q()
e("L_skipv:")
e("s_mul_i32 s%d, s%d, %d" % (sT0, sTile, TILE))
e("s_add_u32 s%d, s%d, s%d" % (sT0, sT0, sBase))
for j in range(3):
    o = " offset:%d" % (j * 1024) if j else ""
    e("s_waitcnt lgkmcnt(%d)" % (2 - j))
    e("buffer_store_dwordx4 %s, v%d, %s, s%d offen%s%s" % (vr(vRb + 4 * j, 4), vOff + j, srd(sO), sT0, o, ST))
e("s_add_i32 s%d, s%d, s%d" % (sTile, sTile, sDir))
e("s_add_u32 s%d, s%d, 1" % (sStep, sStep))
e("s_cmp_lt_u32 s%d, 8" % sStep)
e("s_cbranch_scc1 L_loop")
e("L_end:")
e("s_endpgm")

hdr = """; Sliding-window (w=32) attention, B=1 H=32 S=2048 D=192, bf16.  Generated by gen.py (hand-written generator).
; kernarg: q, k, v, out, debug, ws
; one workgroup (4 waves) per 256 query rows; K/V/Q tiles of 32 rows stream through LDS rings by LDS-DMA.
; @launch grid=(256,1,1) block=(256,1,1) lds=%d
.amdgcn_target "amdgcn-amd-amdhsa--gfx950"
.text
.globl %s_kernel
.p2align 8
.type %s_kernel,@function
%s_kernel:
""" % (LDS, NAME, NAME, NAME)

ftr = """
.section .rodata,"a"
.p2align 6
.amdhsa_kernel %s_kernel
  .amdhsa_next_free_vgpr %d
  .amdhsa_next_free_sgpr 64
  .amdhsa_accum_offset %d
  .amdhsa_group_segment_fixed_size 0
  .amdhsa_kernarg_size 48
  .amdhsa_user_sgpr_count 2
  .amdhsa_user_sgpr_kernarg_segment_ptr 1
  .amdhsa_system_sgpr_workgroup_id_x 1
.end_amdhsa_kernel
""" % (NAME, NVGPR, NVGPR)

open(sys.argv[1], "w").write(hdr + "\n".join(L) + ftr)
print("N1", N1, "N2", N2)
```

```python
import sys
import struct

NAME = "standalone__sliding_local_fixed_window__prompt"

opts = dict(
    ld="",
    st="",
    altdir=1,
    xcdmap=1,
    mimic=1,
    spin=0,
)
for a in sys.argv[2:]:
    k, v = a.split("=")
    opts[k] = type(opts[k])(v) if k in opts and not isinstance(opts[k], str) else v

LD = (" " + opts["ld"].replace("+", " ")) if opts["ld"] else ""
ST = (" " + opts["st"].replace("+", " ")) if opts["st"] else ""

TILE = 12288
KRING = 0
VRING = 4 * TILE
QRING = 8 * TILE
OBUF = 12 * TILE
LDS = 13 * TILE
NBYTES = 32 * 2048 * 384

L = []


def e(s=""):
    L.append("    " + s if s and not s.endswith(":") else s)


def f32hex(x):
    return "0x%08x" % struct.unpack("<I", struct.pack("<f", x))[0]


sQ, sK, sV, sO = 12, 16, 20, 24
sStep = 28
sDir = 29
sBase = 30
sTile = 31
sW3 = 32
sA = 33
sKVn = 34
sQn = 35
sM = 36
sScale = 44
sLog2e = 45
sT0, sT1, sT2, sT3, sT4, sT5 = 46, 47, 48, 49, 50, 51
sKVoff = 52
sKVlds = 53
sMinOff = 54
sQslot = 55
sHi = 56
sB = 57

vOff = 1
vA0, vA1 = 4, 5
vU0, vU1 = 6, 7
vW0, vW1 = 8, 9
vR = 10
vPM = 11
vInit0 = 16
vInit1 = 20
vAQ = 24
vAK = 26
vAV = 32
vQ = 40
vK = 64
vS = 136
vX = 148
vT = 156
vP = 164
vVa = 64
vVb = 88
vAcc = 100
vOp = 124
vRb = 172
NVGPR = 184


def srd(s):
    return "s[%d:%d]" % (s, s + 3)


def vr(a, n):
    return "v[%d:%d]" % (a, a + n - 1) if n > 1 else "v%d" % a


def dma3(s_srd, s_off):
    for j in range(3):
        o = " offset:%d" % (j * 1024) if j else ""
        e("buffer_load_dwordx4 v%d, %s, s%d offen%s%s lds" % (vOff + j, srd(s_srd), s_off, o, LD))


def kv_prep():
    e("s_mul_i32 s%d, s%d, %d" % (sKVoff, sKVn, TILE))
    e("s_and_b32 s%d, s%d, 3" % (sKVlds, sKVn))
    e("s_add_i32 s%d, s%d, s%d" % (sKVoff, sKVoff, sBase))
    e("s_mul_i32 s%d, s%d, %d" % (sKVlds, sKVlds, TILE))
    e("s_max_i32 s%d, s%d, s%d" % (sKVoff, sKVoff, sMinOff))
    e("s_add_u32 s%d, s%d, s%d" % (sKVlds, sKVlds, sW3))


def load_k(off=None, lds=None):
    e("s_mov_b32 m0, s%d" % (lds or sKVlds))
    e("s_nop 0")
    dma3(sK, off or sKVoff)


def load_v(off=None, lds=None):
    e("s_add_u32 m0, s%d, %d" % (lds or sKVlds, VRING))
    e("s_nop 0")
    dma3(sV, off or sKVoff)


def load_q():
    e("s_and_b32 s%d, s%d, 3" % (sT0, sQslot))
    e("s_mul_i32 s%d, s%d, %d" % (sT1, sQn, TILE))
    e("s_mul_i32 s%d, s%d, %d" % (sT0, sT0, TILE))
    e("s_add_u32 s%d, s%d, s%d" % (sT1, sT1, sBase))
    e("s_add_u32 s%d, s%d, s%d" % (sT0, sT0, sW3))
    e("s_add_u32 m0, s%d, %d" % (sT0, QRING))
    e("s_add_u32 s%d, s%d, 1" % (sQslot, sQslot))
    dma3(sQ, sT1)
    e("s_add_i32 s%d, s%d, s%d" % (sQn, sQn, sDir))


seq = ["K0", "Q0", "K1", "V0", "V1", "Q1", "K2", "V2", "Q2", "K3", "V3", "Q3"]
N1, N2 = [], []
for i in range(8):
    need = max(seq.index("Q%d" % i), seq.index("K%d" % (i + 1)))
    N1.append(3 * (len(seq) - 1 - need))
    need = seq.index("V%d" % (i + 1))
    N2.append(3 * (len(seq) - 1 - need))
    if i + 4 <= 8:
        seq.append("K%d" % (i + 4))
        seq.append("V%d" % (i + 4))
    if i + 4 <= 7:
        seq.append("Q%d" % (i + 4))
    seq.append("O%d" % i)


def wait_ladder(N, tag):
    vals = sorted(set(N), reverse=True)
    for idx, v in enumerate(vals):
        e("s_waitcnt vmcnt(%d)" % v)
        if idx != len(vals) - 1:
            mask = sum(1 << i for i in range(8) if N[i] == v)
            e("s_bitcmp1_b32 %d, s%d" % (mask, sStep))
            e("s_cbranch_scc1 L_%s_done" % tag)
    e("L_%s_done:" % tag)


def g_of(vdst, vrow, vtmp):
    e("v_lshrrev_b32 v%d, 1, v%d" % (vtmp, vrow))
    e("v_xor_b32 v%d, v%d, v%d" % (vtmp, vtmp, vrow))
    e("v_and_b32 v%d, 4, v%d" % (vtmp, vtmp))
    e("v_and_or_b32 v%d, v%d, 2, v%d" % (vtmp, vrow, vtmp))
    e("v_bfe_u32 v%d, v%d, 3, 1" % (vdst, vrow))
    e("v_or_b32 v%d, v%d, v%d" % (vdst, vdst, vtmp))
    e("v_lshlrev_b32 v%d, 4, v%d" % (vdst, vdst))


e("s_cmp_ge_u32 s2, 256")
e("s_cbranch_scc1 L_end")
if opts["spin"]:
    e("s_memrealtime s[60:61]")
e("s_load_dwordx2 s[%d:%d], s[0:1], 8" % (sK, sK + 1))
e("s_load_dwordx2 s[%d:%d], s[0:1], 0" % (sQ, sQ + 1))
e("s_load_dwordx2 s[%d:%d], s[0:1], 16" % (sV, sV + 1))
e("s_load_dwordx2 s[%d:%d], s[0:1], 24" % (sO, sO + 1))
e("v_lshrrev_b32 v40, 6, v0")
e("v_and_b32 v41, 63, v0")
e("v_readfirstlane_b32 s%d, v40" % sT0)
for s in (sQ, sK, sV, sO):
    e("s_mov_b32 s%d, %d" % (s + 2, NBYTES))
    e("s_mov_b32 s%d, 0x20000" % (s + 3))
e("v_mul_u32_u24 v42, 24, v40")
e("v_lshrrev_b32 v43, 3, v41")
e("v_add_u32 v42, v42, v43")
e("v_mul_u32_u24 v44, 3072, v40")
e("v_lshl_add_u32 v44, v41, 4, v44")
for j in range(3):
    e("v_add_u32 v45, %d, v42" % (8 * j))
    e("v_mul_u32_u24 v45, 171, v45")
    e("v_lshrrev_b32 v45, 9, v45")
    g_of(46, 45, 47)
    e("v_xor_b32 v%d, v44, v46" % (vOff + j))
if opts["xcdmap"]:
    e("s_and_b32 s%d, s2, 7" % sT1)
    e("s_lshr_b32 s%d, s2, 6" % sT2)
    e("s_lshl_b32 s%d, s%d, 3" % (sT2, sT2))
    e("s_add_u32 s%d, s%d, s%d" % (sT1, sT1, sT2))
    e("s_bfe_u32 s%d, s2, 0x30003" % sT2)
else:
    e("s_lshr_b32 s%d, s2, 3" % sT1)
    e("s_and_b32 s%d, s2, 7" % sT2)
e("s_mul_i32 s%d, s%d, %d" % (sMinOff, sT1, 2048 * 384))
e("s_mul_i32 s%d, s%d, %d" % (sBase, sT2, 256 * 384))
e("s_add_u32 s%d, s%d, s%d" % (sBase, sBase, sMinOff))
e("s_mul_i32 s%d, s%d, 3072" % (sW3, sT0))
e("s_lshr_b32 s%d, s%d, 1" % (sA, sT0))
e("s_and_b32 s%d, s%d, 1" % (sB, sT0))
if opts["altdir"]:
    e("s_bitcmp1_b32 s%d, 0" % sT2)
    e("s_cselect_b32 s%d, -1, 1" % sDir)
    e("s_cselect_b32 s%d, 7, -1" % sKVn)
    e("s_cselect_b32 s%d, 7, 0" % sQn)
    e("s_cselect_b32 s%d, 7, 0" % sTile)
else:
    e("s_mov_b32 s%d, 1" % sDir)
    e("s_mov_b32 s%d, -1" % sKVn)
    e("s_mov_b32 s%d, 0" % sQn)
    e("s_mov_b32 s%d, 0" % sTile)
e("s_mov_b32 s%d, 0" % sQslot)
e("s_mov_b32 s%d, 0" % sStep)
e("s_mov_b32 s%d, s%d" % (sT5, sT2))
kv_prep()
e("s_mov_b32 s%d, s%d" % (sT3, sKVoff))
e("s_mov_b32 s%d, s%d" % (sT4, sKVlds))
e("s_add_i32 s%d, s%d, s%d" % (sKVn, sKVn, sDir))
e("s_waitcnt lgkmcnt(0)")
load_k(sT3, sT4)
load_q()
kv_prep()
load_k()
load_v(sT3, sT4)
load_v()
for n in range(2):
    e("s_add_i32 s%d, s%d, s%d" % (sKVn, sKVn, sDir))
    load_q()
    kv_prep()
    load_k()
    load_v()
e("s_add_i32 s%d, s%d, s%d" % (sKVn, sKVn, sDir))
load_q()

e("v_and_b32 v42, 15, v41")
e("v_lshrrev_b32 v43, 4, v41")
g_of(46, 42, 47)
e("v_mul_u32_u24 v44, 384, v42")
e("v_lshlrev_b32 v45, 4, v43")
e("v_xor_b32 v45, v45, v46")
e("v_add_u32 v%d, v44, v45" % vA0)
e("v_xor_b32 v%d, 64, v%d" % (vA1, vA0))
e("v_lshrrev_b32 v45, 1, v43")
e("v_lshlrev_b32 v45, 4, v45")
e("v_xor_b32 v45, v45, v46")
e("s_lshl_b32 s%d, s%d, 6" % (sT0, sB))
e("v_xor_b32 v45, s%d, v45" % sT0)
e("v_and_b32 v47, 1, v43")
e("v_lshl_add_u32 v45, v47, 3, v45")
e("v_add_u32 v45, v44, v45")
e("s_mul_i32 s%d, s%d, 6144" % (sT1, sA))
e("s_add_u32 s%d, s%d, %d" % (sT1, sT1, OBUF))
e("v_add_u32 v%d, s%d, v45" % (vW0, sT1))
e("v_xor_b32 v%d, 32, v%d" % (vW1, vW0))
e("v_lshlrev_b32 v45, 2, v43")
for i in range(4):
    e("v_add_u32 v47, %d, v45" % i)
    e("v_cmp_le_u32 s[%d:%d], v47, v42" % (sM + 2 * i, sM + 2 * i + 1))
e("s_mov_b32 s%d, 0xffff0000" % sHi)
e("v_mov_b32 v48, 0xffff")
e("v_mov_b32 v49, s%d" % sHi)
for k in range(2):
    e("v_cndmask_b32 v50, 0, v48, s[%d:%d]" % (sM + 4 * k, sM + 4 * k + 1))
    e("v_cndmask_b32 v51, 0, v49, s[%d:%d]" % (sM + 4 * k + 2, sM + 4 * k + 3))
    e("v_or_b32 v%d, v50, v51" % (vPM + k))
    e("v_not_b32 v%d, v%d" % (vPM + 2 + k, vPM + k))
e("v_lshrrev_b32 v45, 2, v41")
g_of(46, 45, 47)
e("v_mul_u32_u24 v44, 384, v45")
e("v_bfe_u32 v47, v41, 1, 1")
e("v_lshlrev_b32 v47, 4, v47")
e("v_xor_b32 v46, v46, v47")
e("v_xor_b32 v46, s%d, v46" % sT0)
e("v_and_b32 v47, 1, v41")
e("v_lshl_add_u32 v46, v47, 3, v46")
e("v_add_u32 v46, v44, v46")
e("v_add_u32 v%d, %d, v46" % (vU0, VRING))
e("v_xor_b32 v%d, 32, v%d" % (vU1, vU0))
e("s_add_u32 s%d, s%d, %d" % (sT1, sW3, OBUF))
e("v_lshlrev_b32 v%d, 4, v41" % vR)
e("v_add_u32 v%d, s%d, v%d" % (vR, sT1, vR))
e("s_cmp_eq_u32 s%d, 0" % sT5)
e("s_cselect_b32 s%d, 0xff800000, 0" % sT0)
e("s_cmp_eq_u32 s%d, 0" % sA)
e("s_cselect_b32 s%d, s%d, 0" % (sT1, sT0))
for i in range(4):
    e("v_mov_b32 v%d, s%d" % (vInit0 + i, sT0))
    e("v_mov_b32 v%d, s%d" % (vInit1 + i, sT1))
e("s_mov_b32 s%d, %s" % (sScale, f32hex(192 ** -0.5)))
if opts["mimic"]:
    e("s_mov_b32 s%d, %s" % (sLog2e, f32hex(1.4426950408889634)))
else:
    e("s_mov_b32 s%d, %s" % (sLog2e, f32hex(1.4426950408889634 * 192 ** -0.5)))

e("L_loop:")
e("s_and_b32 s%d, s%d, 3" % (sT0, sStep))
e("s_lshl_b32 s%d, s%d, 1" % (sT0, sT0))
e("s_add_u32 s%d, s%d, s%d" % (sT0, sT0, sA))
e("s_mul_i32 s%d, s%d, 6144" % (sT0, sT0))
e("s_add_u32 s%d, s%d, %d" % (sT0, sT0, QRING))
e("v_add_u32 v%d, s%d, v%d" % (vAQ, sT0, vA0))
e("v_add_u32 v%d, s%d, v%d" % (vAQ + 1, sT0, vA1))
e("s_lshl_b32 s%d, s%d, 1" % (sT1, sTile))
e("s_add_u32 s%d, s%d, s%d" % (sT1, sT1, sA))
for j in range(3):
    e("s_add_u32 s%d, s%d, %d" % (sT2, sT1, 6 + j))
    e("s_and_b32 s%d, s%d, 7" % (sT2, sT2))
    e("s_mul_i32 s%d, s%d, 6144" % (sT2, sT2))
    e("v_add_u32 v%d, s%d, v%d" % (vAK + 2 * j, sT2, vA0))
    e("v_add_u32 v%d, s%d, v%d" % (vAK + 2 * j + 1, sT2, vA1))
    e("v_add_u32 v%d, s%d, v%d" % (vAV + 2 * j, sT2, vU0))
    e("v_add_u32 v%d, s%d, v%d" % (vAV + 2 * j + 1, sT2, vU1))
kv_prep()
wait_ladder(N1, "w1")
e("s_barrier")
def qk_reads(i):
    o = (i >> 1) * 128
    e("ds_read_b128 %s, v%d offset:%d" % (vr(vQ + 4 * i, 4), vAQ + (i & 1), o))
    for j in range(3):
        e("ds_read_b128 %s, v%d offset:%d" % (vr(vK + 12 * i + 4 * j, 4), vAK + 2 * j + (i & 1), o))


for i in range(3):
    qk_reads(i)
for k in range(6):
    e("s_waitcnt lgkmcnt(%d)" % (4 * min(2, 5 - k)))
    for j in range(3):
        c = [vr(vInit0, 4), vr(vInit1, 4), "0"][j] if k == 0 else vr(vS + 4 * j, 4)
        e("v_mfma_f32_16x16x32_bf16 %s, %s, %s, %s" % (vr(vS + 4 * j, 4), vr(vK + 12 * k + 4 * j, 4), vr(vQ + 4 * k, 4), c))
    if k + 3 < 6:
        qk_reads(k + 3)
for i in range(4):
    e("v_mov_b32 v%d, 0" % (vInit0 + i))
    e("v_mov_b32 v%d, 0" % (vInit1 + i))
e("s_nop 0")
for i in range(4):
    e("v_cndmask_b32 v%d, v%d, v%d, s[%d:%d]" % (vX + i, vS + i, vS + 8 + i, sM + 2 * i, sM + 2 * i + 1))
xs = [vX + i for i in range(4)] + [vS + 4 + i for i in range(4)]
ys = [vX + i for i in range(8)]
if opts["mimic"]:
    for p in range(4):
        e("v_cvt_pk_bf16_f32 v%d, v%d, v%d" % (vT + p, xs[2 * p], xs[2 * p + 1]))
    for p in range(4):
        e("v_lshlrev_b32 v%d, 16, v%d" % (ys[2 * p], vT + p))
        e("v_and_b32 v%d, s%d, v%d" % (ys[2 * p + 1], sHi, vT + p))
    for p in range(8):
        e("v_mul_f32 v%d, s%d, v%d" % (ys[p], sScale, ys[p]))
    for p in range(4):
        e("v_cvt_pk_bf16_f32 v%d, v%d, v%d" % (vT + p, ys[2 * p], ys[2 * p + 1]))
    for p in range(4):
        e("v_lshlrev_b32 v%d, 16, v%d" % (ys[2 * p], vT + p))
        e("v_and_b32 v%d, s%d, v%d" % (ys[2 * p + 1], sHi, vT + p))
else:
    ys = xs
m, m2 = vT + 4, vT + 5
e("v_max3_f32 v%d, v%d, v%d, v%d" % (m, ys[0], ys[1], ys[2]))
e("v_max3_f32 v%d, v%d, v%d, v%d" % (m2, ys[3], ys[4], ys[5]))
e("v_max3_f32 v%d, v%d, v%d, v%d" % (m, m, ys[6], ys[7]))
e("v_max_f32 v%d, v%d, v%d" % (m, m, m2))
e("v_mov_b32 v%d, v%d" % (m2, m))
e("s_nop 1")
e("v_permlane16_swap_b32 v%d, v%d" % (m, m2))
e("s_nop 0")
e("v_max_f32 v%d, v%d, v%d" % (m, m, m2))
e("v_mov_b32 v%d, v%d" % (m2, m))
e("s_nop 1")
e("v_permlane32_swap_b32 v%d, v%d" % (m, m2))
e("s_nop 0")
e("v_max_f32 v%d, v%d, v%d" % (m, m, m2))
e("v_mul_f32 v%d, s%d, v%d" % (m, sLog2e, m))
es = [vX + i for i in range(8)]
for p in range(8):
    e("v_fma_f32 v%d, v%d, s%d, -v%d" % (es[p], ys[p], sLog2e, m))
for p in range(8):
    e("v_exp_f32 v%d, v%d" % (es[p], es[p]))
sm, sm2 = vT + 6, vT + 7
e("v_add_f32 v%d, v%d, v%d" % (sm, es[0], es[1]))
e("v_add_f32 v%d, v%d, v%d" % (sm2, es[2], es[3]))
e("v_add_f32 v%d, v%d, v%d" % (sm, sm, es[4]))
e("v_add_f32 v%d, v%d, v%d" % (sm2, sm2, es[5]))
e("v_add_f32 v%d, v%d, v%d" % (sm, sm, es[6]))
e("v_add_f32 v%d, v%d, v%d" % (sm2, sm2, es[7]))
e("v_add_f32 v%d, v%d, v%d" % (sm, sm, sm2))
e("v_mov_b32 v%d, v%d" % (sm2, sm))
e("s_nop 1")
e("v_permlane16_swap_b32 v%d, v%d" % (sm, sm2))
e("s_nop 0")
e("v_add_f32 v%d, v%d, v%d" % (sm, sm, sm2))
e("v_mov_b32 v%d, v%d" % (sm2, sm))
e("s_nop 1")
e("v_permlane32_swap_b32 v%d, v%d" % (sm, sm2))
e("s_nop 0")
e("v_add_f32 v%d, v%d, v%d" % (sm, sm, sm2))
e("v_rcp_f32 v%d, v%d" % (sm, sm))
e("s_nop 0")
for p in range(8):
    e("v_mul_f32 v%d, v%d, v%d" % (es[p], es[p], sm))
e("v_cvt_pk_bf16_f32 v%d, v%d, v%d" % (vT, es[0], es[1]))
e("v_cvt_pk_bf16_f32 v%d, v%d, v%d" % (vT + 1, es[2], es[3]))
e("v_cvt_pk_bf16_f32 v%d, v%d, v%d" % (vP + 2, es[4], es[5]))
e("v_cvt_pk_bf16_f32 v%d, v%d, v%d" % (vP + 3, es[6], es[7]))
e("v_and_b32 v%d, v%d, v%d" % (vP, vT, vPM + 2))
e("v_and_b32 v%d, v%d, v%d" % (vP + 1, vT + 1, vPM + 3))
e("v_and_b32 v%d, v%d, v%d" % (vP + 4, vT, vPM))
e("v_and_b32 v%d, v%d, v%d" % (vP + 5, vT + 1, vPM + 1))

wait_ladder(N2, "w2")
e("s_barrier")
for tt in range(6):
    hi, lo = tt >> 1, tt & 1
    for j in range(2):
        e("ds_read_b64_tr_b16 %s, v%d offset:%d" % (vr(vVa + 4 * tt + 2 * j, 2), vAV + 2 * j + lo, hi * 128))
e("s_cmp_gt_u32 s%d, 4" % sStep)
e("s_cbranch_scc1 L_skipk")
load_k()
e("L_skipk:")
for tt in range(6):
    hi, lo = tt >> 1, tt & 1
    e("s_waitcnt lgkmcnt(%d)" % (10 - 2 * tt + tt))
    e("v_mfma_f32_16x16x32_bf16 %s, %s, %s, 0" % (vr(vAcc + 4 * tt, 4), vr(vVa + 4 * tt, 4), vr(vP, 4)))
    e("ds_read_b64_tr_b16 %s, v%d offset:%d" % (vr(vVb + 2 * tt, 2), vAV + 4 + lo, hi * 128))
for tt in range(6):
    e("s_waitcnt lgkmcnt(%d)" % (5 - tt))
    e("v_mfma_f32_16x16x16_bf16 %s, %s, %s, %s" % (vr(vAcc + 4 * tt, 4), vr(vVb + 2 * tt, 2), vr(vP + 4, 2), vr(vAcc + 4 * tt, 4)))
e("s_nop 1")
for tt in range(6):
    hi, lo = tt >> 1, tt & 1
    if tt == 5:
        e("s_nop 0")
    e("v_cvt_pk_bf16_f32 v%d, v%d, v%d" % (vOp + 2 * tt, vAcc + 4 * tt, vAcc + 4 * tt + 1))
    e("v_cvt_pk_bf16_f32 v%d, v%d, v%d" % (vOp + 2 * tt + 1, vAcc + 4 * tt + 2, vAcc + 4 * tt + 3))
    e("ds_write_b64 v%d, %s offset:%d" % (vW0 + lo, vr(vOp + 2 * tt, 2), hi * 128))
e("s_waitcnt lgkmcnt(0)")
e("s_barrier")
for j in range(3):
    e("ds_read_b128 %s, v%d offset:%d" % (vr(vRb + 4 * j, 4), vR, j * 1024))
e("s_cmp_gt_u32 s%d, 4" % sStep)
e("s_cbranch_scc1 L_skipv")
load_v()
e("s_add_i32 s%d, s%d, s%d" % (sKVn, sKVn, sDir))
e("s_cmp_gt_u32 s%d, 3" % sStep)
e("s_cbranch_scc1 L_skipv")
load_q()
e("L_skipv:")
e("s_mul_i32 s%d, s%d, %d" % (sT0, sTile, TILE))
e("s_add_u32 s%d, s%d, s%d" % (sT0, sT0, sBase))
for j in range(3):
    o = " offset:%d" % (j * 1024) if j else ""
    e("s_waitcnt lgkmcnt(%d)" % (2 - j))
    e("buffer_store_dwordx4 %s, v%d, %s, s%d offen%s%s" % (vr(vRb + 4 * j, 4), vOff + j, srd(sO), sT0, o, ST))
e("s_add_i32 s%d, s%d, s%d" % (sTile, sTile, sDir))
e("s_add_u32 s%d, s%d, 1" % (sStep, sStep))
e("s_cmp_lt_u32 s%d, 8" % sStep)
e("s_cbranch_scc1 L_loop")
if opts["spin"]:
    e("L_spin:")
    e("s_sleep 4")
    e("s_memrealtime s[62:63]")
    e("s_waitcnt lgkmcnt(0)")
    e("s_sub_u32 s62, s62, s60")
    e("s_cmp_lt_u32 s62, %d" % opts["spin"])
    e("s_cbranch_scc1 L_spin")
e("L_end:")
e("s_endpgm")

hdr = """; Sliding-window (w=32) attention, B=1 H=32 S=2048 D=192, bf16.  Generated by gen.py (hand-written generator).
; kernarg: q, k, v, out, debug, ws
; one workgroup (4 waves) per 256 query rows; K/V/Q tiles of 32 rows stream through LDS rings by LDS-DMA.
; @launch grid=(256,1,1) block=(256,1,1) lds=%d
.amdgcn_target "amdgcn-amd-amdhsa--gfx950"
.text
.globl %s_kernel
.p2align 8
.type %s_kernel,@function
%s_kernel:
""" % (LDS, NAME, NAME, NAME)

ftr = """
.section .rodata,"a"
.p2align 6
.amdhsa_kernel %s_kernel
  .amdhsa_next_free_vgpr %d
  .amdhsa_next_free_sgpr 64
  .amdhsa_accum_offset %d
  .amdhsa_group_segment_fixed_size 0
  .amdhsa_kernarg_size 48
  .amdhsa_user_sgpr_count 2
  .amdhsa_user_sgpr_kernarg_segment_ptr 1
  .amdhsa_system_sgpr_workgroup_id_x 1
.end_amdhsa_kernel
""" % (NAME, NVGPR, NVGPR)

open(sys.argv[1], "w").write(hdr + "\n".join(L) + ftr)
print("N1", N1, "N2", N2)
```

```python
import sys
import struct

NAME = "standalone__sliding_local_fixed_window__prompt"

opts = dict(
    ld="nt",
    st="",
    altdir=1,
    xcdmap=1,
    mimic=1,
    depth=6,
    nc=4,
    sleep=1,
    stamp=0,
    spin=0,
    leak=-1,
    prio=3,
)
for a in sys.argv[2:]:
    k, v = a.split("=")
    assert k in opts, k
    opts[k] = v if isinstance(opts[k], str) else int(v)

LD = (" " + opts["ld"].replace("+", " ")) if opts["ld"] else ""
ST = (" " + opts["st"].replace("+", " ")) if opts["st"] else ""
D = opts["depth"]
NC = opts["nc"]
assert 6 * (D + 1) <= 63 and NC in (2, 4, 8)

BLK = 6144
KRING = 0
VRING = 8 * BLK
QRING = 16 * BLK
FLAG = 24 * BLK
DONE = FLAG + 256
LDS = DONE + 256 * NC
NBYTES = 32 * 2048 * 384

L = []


def e(s=""):
    L.append("    " + s if s and not s.endswith(":") else s)


def f32hex(x):
    return "0x%08x" % struct.unpack("<I", struct.pack("<f", x))[0]


sQ, sK, sV, sO = 12, 16, 20, 24
sWave = 28
sStepB = 29
sKV0 = 30
sQ0 = 31
sMinOff = 32
sChunk = 33
sI = 34
sF = 35
sM = 36
sScale = 44
sLog2e = 45
sT0, sT1, sT2, sT3, sT4, sT5 = 46, 47, 48, 49, 50, 51
sHi = 52
sNeed = 53
sQo, sKo, sVo = 54, 55, 56
sStampIdx = 58
sLeak = 59

vOff = 1
vLane = 7
vA0, vA1 = 8, 9
vU = 10
vW = 14
vR = 18
vPM = 19
vFlagA = 23
vDoneA = 24
vF = 25
vCnt = 26
vInit0 = 28
vInit1 = 32
vAQ = 36
vAK = 38
vAV = 44
vAW = 56
vAR = 60
vQ = 64
vK = 88
vS = 160
vX = 172
vT = 180
vP = 188
vAcc = 196
vVa = vK
vVb = vK + 48
vOp = vQ
vRb = vK
vStamp = 244
NVGPR = 248


def srd(s):
    return "s[%d:%d]" % (s, s + 3)


def vr(a, n):
    return "v[%d:%d]" % (a, a + n - 1) if n > 1 else "v%d" % a


nstamp = [0]


def stamp():
    if opts["stamp"]:
        e("s_memrealtime s[62:63]")
        e("s_mov_b32 m0, s%d" % sStampIdx)
        e("s_waitcnt lgkmcnt(0)")
        e("v_writelane_b32 v%d, s62, m0" % vStamp)
        e("s_add_u32 s%d, s%d, 1" % (sStampIdx, sStampIdx))


def g_of(vdst, vrow, vtmp):
    e("v_lshrrev_b32 v%d, 1, v%d" % (vtmp, vrow))
    e("v_xor_b32 v%d, v%d, v%d" % (vtmp, vtmp, vrow))
    e("v_and_b32 v%d, 4, v%d" % (vtmp, vtmp))
    e("v_and_or_b32 v%d, v%d, 2, v%d" % (vtmp, vrow, vtmp))
    e("v_bfe_u32 v%d, v%d, 3, 1" % (vdst, vrow))
    e("v_or_b32 v%d, v%d, v%d" % (vdst, vdst, vtmp))
    e("v_lshlrev_b32 v%d, 4, v%d" % (vdst, vdst))


def dma_block(s_srd, s_off, s_lds, ring):
    e("s_add_u32 m0, s%d, %d" % (s_lds, ring))
    e("s_nop 0")
    for j in range(6):
        if j == 3:
            e("s_add_u32 m0, s%d, %d" % (s_lds, ring + 3072))
            e("s_nop 0")
        o = " offset:%d" % ((j % 3) * 1024) if j % 3 else ""
        e("buffer_load_dwordx4 v%d, %s, s%d offen%s%s lds" % (vOff + j, srd(s_srd), s_off, o, LD))


def publish(n):
    e("s_waitcnt vmcnt(%d)" % n)
    e("ds_write_b32 v%d, v%d" % (vFlagA, vCnt))
    e("v_add_u32 v%d, 1, v%d" % (vCnt, vCnt))


npoll = [0]


def poll(vaddr, cached=True):
    n = npoll[0]
    npoll[0] += 1
    if cached:
        e("s_cmp_ge_i32 s%d, s%d" % (sF, sNeed))
        e("s_cbranch_scc1 L_go%d" % n)
    e("L_poll%d:" % n)
    e("ds_read_b32 v%d, v%d" % (vF, vaddr))
    e("s_waitcnt lgkmcnt(0)")
    e("v_readfirstlane_b32 s%d, v%d" % (sF, vF))
    e("s_nop 0")
    e("s_cmp_ge_i32 s%d, s%d" % (sF, sNeed))
    e("s_cbranch_scc1 L_go%d" % n)
    if opts["sleep"]:
        e("s_sleep %d" % opts["sleep"])
    e("s_branch L_poll%d" % n)
    e("L_go%d:" % n)


e("s_cmp_ge_u32 s2, 256")
e("s_cbranch_scc1 L_end")
if opts["spin"] or opts["stamp"]:
    e("s_memrealtime s[60:61]")
e("s_load_dwordx2 s[%d:%d], s[0:1], 8" % (sK, sK + 1))
e("s_load_dwordx2 s[%d:%d], s[0:1], 16" % (sV, sV + 1))
e("s_load_dwordx2 s[%d:%d], s[0:1], 0" % (sQ, sQ + 1))
e("s_load_dwordx2 s[%d:%d], s[0:1], 24" % (sO, sO + 1))
e("v_lshrrev_b32 v64, 6, v0")
e("v_and_b32 v%d, 63, v0" % vLane)
e("v_readfirstlane_b32 s%d, v64" % sWave)
for s in (sQ, sK, sV, sO):
    e("s_mov_b32 s%d, %d" % (s + 2, NBYTES))
    e("s_mov_b32 s%d, 0x20000" % (s + 3))
e("v_lshlrev_b32 v%d, 2, v0" % vDoneA)
e("v_add_u32 v%d, %d, v%d" % (vDoneA, FLAG, vDoneA))
e("v_mov_b32 v%d, 0" % vF)
e("ds_write_b32 v%d, v%d" % (vDoneA, vF))
e("v_lshrrev_b32 v65, 3, v%d" % vLane)
e("v_lshlrev_b32 v66, 4, v%d" % vLane)
e("v_add_u32 v67, 3072, v66")
for j in range(6):
    e("v_add_u32 v68, %d, v65" % (8 * j))
    e("v_mul_u32_u24 v68, 171, v68")
    e("v_lshrrev_b32 v68, 9, v68")
    g_of(69, 68, 70)
    e("v_xor_b32 v%d, v%d, v69" % (vOff + j, 66 if j < 3 else 67))
if opts["xcdmap"]:
    e("s_and_b32 s%d, s2, 7" % sT1)
    e("s_lshr_b32 s%d, s2, 6" % sT2)
    e("s_lshl_b32 s%d, s%d, 3" % (sT2, sT2))
    e("s_add_u32 s%d, s%d, s%d" % (sT1, sT1, sT2))
    e("s_bfe_u32 s%d, s2, 0x30003" % sChunk)
else:
    e("s_lshr_b32 s%d, s2, 3" % sT1)
    e("s_and_b32 s%d, s2, 7" % sChunk)
e("s_mul_i32 s%d, s%d, %d" % (sMinOff, sT1, 2048 * 384))
e("s_mul_i32 s%d, s%d, %d" % (sT2, sChunk, 256 * 384))
e("s_add_u32 s%d, s%d, s%d" % (sT2, sT2, sMinOff))
if opts["altdir"]:
    e("s_bitcmp1_b32 s%d, 0" % sChunk)
    e("s_cselect_b32 s%d, %d, %d" % (sStepB, -BLK, BLK)) if False else None
    e("s_movk_i32 s%d, %d" % (sT3, BLK))
    e("s_movk_i32 s%d, %d" % (sT4, -BLK))
    e("s_cselect_b32 s%d, s%d, s%d" % (sStepB, sT4, sT3))
    e("s_movk_i32 s%d, %d" % (sT3, -2 * BLK))
    e("s_cselect_b32 s%d, %d, s%d" % (sKV0, 15 * BLK, sT3))
    e("s_cselect_b32 s%d, %d, 0" % (sQ0, 15 * BLK))
else:
    e("s_movk_i32 s%d, %d" % (sStepB, BLK))
    e("s_movk_i32 s%d, %d" % (sKV0, -2 * BLK))
    e("s_mov_b32 s%d, 0" % sQ0)
e("s_add_i32 s%d, s%d, s%d" % (sKV0, sKV0, sT2))
e("s_add_i32 s%d, s%d, s%d" % (sQ0, sQ0, sT2))
if opts["stamp"]:
    e("s_waitcnt lgkmcnt(0)")
    e("v_mov_b32 v%d, 0" % vStamp)
    e("v_writelane_b32 v%d, s60, 0" % vStamp)
    e("s_mov_b32 s%d, 1" % sStampIdx)
    stamp()
e("s_cmp_lg_u32 s%d, 0" % sWave)
e("s_cbranch_scc1 L_compute")

if opts["prio"]:
    e("s_setprio %d" % opts["prio"])
e("s_max_i32 s%d, s%d, s%d" % (sT0, sKV0, sMinOff))
e("s_add_i32 s%d, s%d, s%d" % (sVo, sKV0, sStepB))
e("s_max_i32 s%d, s%d, s%d" % (sT1, sVo, sMinOff))
e("s_mov_b32 s%d, 0" % sT2)
e("s_movk_i32 s%d, %d" % (sT3, BLK))
e("s_waitcnt lgkmcnt(0)")
dma_block(sK, sT0, sT2, KRING)
dma_block(sK, sT1, sT3, KRING)
dma_block(sV, sT0, sT2, VRING)
e("s_add_i32 s%d, s%d, s%d" % (sKo, sVo, sStepB))
e("s_mov_b32 s%d, s%d" % (sQo, sQ0))
e("v_mov_b32 v%d, v%d" % (vFlagA, vDoneA))
e("v_mov_b32 v%d, %d" % (vCnt, 3 - D + 1))
e("s_mov_b32 s%d, 0" % sI)
e("s_barrier")
e("L_ldloop:")
e("s_cmp_lt_u32 s%d, 6" % sI)
e("s_cbranch_scc1 L_nofree")
e("s_sub_u32 s%d, s%d, 6" % (sT0, sI))
e("s_add_u32 s%d, s%d, 1" % (sNeed, sT0))
e("s_and_b32 s%d, s%d, %d" % (sT0, sT0, NC - 1))
e("s_lshl_b32 s%d, s%d, 8" % (sT0, sT0))
e("s_add_u32 s%d, s%d, %d" % (sT0, sT0, DONE))
e("v_mov_b32 v%d, s%d" % (vDoneA, sT0))
poll(vDoneA, cached=False)
e("L_nofree:")
stamp()
e("s_and_b32 s%d, s%d, 7" % (sT0, sI))
e("s_mul_i32 s%d, s%d, %d" % (sT0, sT0, BLK))
dma_block(sQ, sQo, sT0, QRING)
e("s_add_u32 s%d, s%d, 2" % (sT0, sI))
e("s_and_b32 s%d, s%d, 7" % (sT0, sT0))
e("s_mul_i32 s%d, s%d, %d" % (sT0, sT0, BLK))
e("s_add_i32 s%d, s%d, s%d" % (sQo, sQo, sStepB))
publish(6 * D)
dma_block(sK, sKo, sT0, KRING)
e("s_add_u32 s%d, s%d, 1" % (sI, sI))
e("s_and_b32 s%d, s%d, 7" % (sT0, sI))
e("s_mul_i32 s%d, s%d, %d" % (sT0, sT0, BLK))
e("s_max_i32 s%d, s%d, s%d" % (sT1, sVo, sMinOff))
e("s_mov_b32 s%d, s%d" % (sVo, sKo))
e("s_add_i32 s%d, s%d, s%d" % (sKo, sKo, sStepB))
publish(6 * D)
dma_block(sV, sT1, sT0, VRING)
publish(6 * D)
e("s_cmp_lt_u32 s%d, 16" % sI)
e("s_cbranch_scc1 L_ldloop")
e("s_movk_i32 s%d, %d" % (sT0, BLK))
dma_block(sV, sVo, sT0, VRING)
stamp()
for r in range(D, 0, -1):
    publish(6 * r)
e("v_mov_b32 v%d, 54" % vCnt)
e("s_waitcnt vmcnt(0)")
e("ds_write_b32 v%d, v%d" % (vFlagA, vCnt))
stamp()
e("s_branch L_fin")

e("L_compute:")
e("s_waitcnt lgkmcnt(0)")
e("s_barrier")
e("s_sub_u32 s%d, s%d, 1" % (sI, sWave))
e("s_mov_b32 s%d, 0" % sF)
e("v_mov_b32 v%d, %d" % (vFlagA, FLAG))
e("v_and_b32 v66, 15, v%d" % vLane)
e("v_lshrrev_b32 v67, 4, v%d" % vLane)
g_of(70, 66, 71)
e("v_mul_u32_u24 v68, 384, v66")
e("v_lshlrev_b32 v69, 4, v67")
e("v_xor_b32 v69, v69, v70")
e("v_add_u32 v%d, v68, v69" % vA0)
e("v_xor_b32 v%d, 64, v%d" % (vA1, vA0))
e("v_lshrrev_b32 v69, 1, v67")
e("v_lshlrev_b32 v69, 4, v69")
e("v_xor_b32 v69, v69, v70")
e("v_and_b32 v71, 1, v67")
e("v_lshl_add_u32 v69, v71, 3, v69")
e("v_add_u32 v%d, v68, v69" % vW)
for m in range(1, 4):
    e("v_xor_b32 v%d, %d, v%d" % (vW + m, 32 * m, vW))
e("v_lshlrev_b32 v69, 2, v67")
for i in range(4):
    e("v_add_u32 v71, %d, v69" % i)
    e("v_cmp_le_u32 s[%d:%d], v71, v66" % (sM + 2 * i, sM + 2 * i + 1))
e("s_ashr_i32 s%d, s%d, 31" % (sT0, sStepB))
e("s_mov_b32 s%d, s%d" % (sT1, sT0))
e("s_nop 1")
for i in range(4):
    e("s_xor_b64 s[%d:%d], s[%d:%d], s[%d:%d]" % (sM + 2 * i, sM + 2 * i + 1, sM + 2 * i, sM + 2 * i + 1, sT0, sT1))
e("s_mov_b32 s%d, 0xffff0000" % sHi)
e("v_mov_b32 v72, 0xffff")
e("v_mov_b32 v73, s%d" % sHi)
for k in range(2):
    e("v_cndmask_b32 v74, 0, v72, s[%d:%d]" % (sM + 4 * k, sM + 4 * k + 1))
    e("v_cndmask_b32 v75, 0, v73, s[%d:%d]" % (sM + 4 * k + 2, sM + 4 * k + 3))
    e("v_or_b32 v%d, v74, v75" % (vPM + k))
    e("v_not_b32 v%d, v%d" % (vPM + 2 + k, vPM + k))
e("v_lshrrev_b32 v69, 2, v%d" % vLane)
g_of(70, 69, 71)
e("v_mul_u32_u24 v68, 384, v69")
e("v_bfe_u32 v71, v%d, 1, 1" % vLane)
e("v_lshlrev_b32 v71, 4, v71")
e("v_xor_b32 v70, v70, v71")
e("v_and_b32 v71, 1, v%d" % vLane)
e("v_lshl_add_u32 v70, v71, 3, v70")
e("v_add_u32 v70, v68, v70")
e("v_add_u32 v%d, %d, v70" % (vU, VRING))
for m in range(1, 4):
    e("v_xor_b32 v%d, %d, v%d" % (vU + m, 32 * m, vU))
e("v_lshlrev_b32 v%d, 4, v%d" % (vR, vLane))
e("s_cmp_eq_u32 s%d, 0" % sChunk)
e("s_cselect_b32 s%d, 0xff800000, 0" % sT2)
e("s_cmp_lt_u32 s%d, 2" % sI)
e("s_cselect_b32 s%d, s%d, 0" % (sT0, sT2))
e("s_cmp_eq_u32 s%d, 0" % sI)
e("s_cselect_b32 s%d, s%d, 0" % (sT1, sT2))
for i in range(4):
    e("v_mov_b32 v%d, s%d" % (vInit0 + i, sT0))
    e("v_mov_b32 v%d, s%d" % (vInit1 + i, sT1))
e("s_mov_b32 s%d, %s" % (sScale, f32hex(192 ** -0.5)))
if opts["mimic"]:
    e("s_mov_b32 s%d, %s" % (sLog2e, f32hex(1.4426950408889634)))
else:
    e("s_mov_b32 s%d, %s" % (sLog2e, f32hex(1.4426950408889634 * 192 ** -0.5)))

e("L_task:")
e("s_and_b32 s%d, s%d, 7" % (sT0, sI))
e("s_mul_i32 s%d, s%d, %d" % (sT0, sT0, BLK))
e("s_add_u32 s%d, s%d, %d" % (sT1, sT0, QRING))
e("v_add_u32 v%d, s%d, v%d" % (vAQ, sT1, vA0))
e("v_add_u32 v%d, s%d, v%d" % (vAQ + 1, sT1, vA1))
for m in range(4):
    e("v_add_u32 v%d, s%d, v%d" % (vAW + m, sT1, vW + m))
e("v_add_u32 v%d, s%d, v%d" % (vAR, sT1, vR))
for j in range(3):
    if j:
        e("s_add_u32 s%d, s%d, %d" % (sT0, sI, j))
        e("s_and_b32 s%d, s%d, 7" % (sT0, sT0))
        e("s_mul_i32 s%d, s%d, %d" % (sT0, sT0, BLK))
    e("v_add_u32 v%d, s%d, v%d" % (vAK + 2 * j, sT0, vA0))
    e("v_add_u32 v%d, s%d, v%d" % (vAK + 2 * j + 1, sT0, vA1))
    for m in range(4):
        e("v_add_u32 v%d, s%d, v%d" % (vAV + 4 * j + m, sT0, vU + m))
e("s_mul_i32 s%d, s%d, 3" % (sNeed, sI))
e("s_add_u32 s%d, s%d, 5" % (sNeed, sNeed))
poll(vFlagA)
stamp()


def qk_reads(i):
    o = (i >> 1) * 128
    e("ds_read_b128 %s, v%d offset:%d" % (vr(vQ + 4 * i, 4), vAQ + (i & 1), o))
    for j in range(3):
        e("ds_read_b128 %s, v%d offset:%d" % (vr(vK + 12 * i + 4 * j, 4), vAK + 2 * j + (i & 1), o))


for i in range(3):
    qk_reads(i)
for k in range(6):
    e("s_waitcnt lgkmcnt(%d)" % (4 * min(2, 5 - k)))
    for j in range(3):
        c = [vr(vInit0, 4), vr(vInit1, 4), "0"][j] if k == 0 else vr(vS + 4 * j, 4)
        e("v_mfma_f32_16x16x32_bf16 %s, %s, %s, %s" % (vr(vS + 4 * j, 4), vr(vK + 12 * k + 4 * j, 4), vr(vQ + 4 * k, 4), c))
    if k + 3 < 6:
        qk_reads(k + 3)
for i in range(4):
    e("v_mov_b32 v%d, 0" % (vInit0 + i))
    e("v_mov_b32 v%d, 0" % (vInit1 + i))
e("s_add_u32 s%d, s%d, 1" % (sNeed, sNeed))
for i in range(4):
    e("v_cndmask_b32 v%d, v%d, v%d, s[%d:%d]" % (vX + i, vS + i, vS + 8 + i, sM + 2 * i, sM + 2 * i + 1))
xs = [vX + i for i in range(4)] + [vS + 4 + i for i in range(4)]
ys = [vX + i for i in range(8)]
if opts["mimic"]:
    for p in range(4):
        e("v_cvt_pk_bf16_f32 v%d, v%d, v%d" % (vT + p, xs[2 * p], xs[2 * p + 1]))
    for p in range(4):
        e("v_lshlrev_b32 v%d, 16, v%d" % (ys[2 * p], vT + p))
        e("v_and_b32 v%d, s%d, v%d" % (ys[2 * p + 1], sHi, vT + p))
    for p in range(8):
        e("v_mul_f32 v%d, s%d, v%d" % (ys[p], sScale, ys[p]))
    for p in range(4):
        e("v_cvt_pk_bf16_f32 v%d, v%d, v%d" % (vT + p, ys[2 * p], ys[2 * p + 1]))
    for p in range(4):
        e("v_lshlrev_b32 v%d, 16, v%d" % (ys[2 * p], vT + p))
        e("v_and_b32 v%d, s%d, v%d" % (ys[2 * p + 1], sHi, vT + p))
else:
    ys = xs
m, m2 = vT + 4, vT + 5
e("v_max3_f32 v%d, v%d, v%d, v%d" % (m, ys[0], ys[1], ys[2]))
e("v_max3_f32 v%d, v%d, v%d, v%d" % (m2, ys[3], ys[4], ys[5]))
e("v_max3_f32 v%d, v%d, v%d, v%d" % (m, m, ys[6], ys[7]))
e("v_max_f32 v%d, v%d, v%d" % (m, m, m2))
e("v_mov_b32 v%d, v%d" % (m2, m))
e("s_nop 1")
e("v_permlane16_swap_b32 v%d, v%d" % (m, m2))
e("s_nop 0")
e("v_max_f32 v%d, v%d, v%d" % (m, m, m2))
e("v_mov_b32 v%d, v%d" % (m2, m))
e("s_nop 1")
e("v_permlane32_swap_b32 v%d, v%d" % (m, m2))
e("s_nop 0")
e("v_max_f32 v%d, v%d, v%d" % (m, m, m2))
e("v_mul_f32 v%d, s%d, v%d" % (m, sLog2e, m))
es = [vX + i for i in range(8)]
for p in range(8):
    e("v_fma_f32 v%d, v%d, s%d, -v%d" % (es[p], ys[p], sLog2e, m))
for p in range(8):
    e("v_exp_f32 v%d, v%d" % (es[p], es[p]))
sm, sm2 = vT + 6, vT + 7
e("v_add_f32 v%d, v%d, v%d" % (sm, es[0], es[1]))
e("v_add_f32 v%d, v%d, v%d" % (sm2, es[2], es[3]))
e("v_add_f32 v%d, v%d, v%d" % (sm, sm, es[4]))
e("v_add_f32 v%d, v%d, v%d" % (sm2, sm2, es[5]))
e("v_add_f32 v%d, v%d, v%d" % (sm, sm, es[6]))
e("v_add_f32 v%d, v%d, v%d" % (sm2, sm2, es[7]))
e("v_add_f32 v%d, v%d, v%d" % (sm, sm, sm2))
e("v_mov_b32 v%d, v%d" % (sm2, sm))
e("s_nop 1")
e("v_permlane16_swap_b32 v%d, v%d" % (sm, sm2))
e("s_nop 0")
e("v_add_f32 v%d, v%d, v%d" % (sm, sm, sm2))
e("v_mov_b32 v%d, v%d" % (sm2, sm))
e("s_nop 1")
e("v_permlane32_swap_b32 v%d, v%d" % (sm, sm2))
e("s_nop 0")
e("v_add_f32 v%d, v%d, v%d" % (sm, sm, sm2))
e("v_rcp_f32 v%d, v%d" % (sm, sm))
e("s_nop 0")
for p in range(8):
    e("v_mul_f32 v%d, v%d, v%d" % (es[p], es[p], sm))
e("v_cvt_pk_bf16_f32 v%d, v%d, v%d" % (vT, es[0], es[1]))
e("v_cvt_pk_bf16_f32 v%d, v%d, v%d" % (vT + 1, es[2], es[3]))
e("v_cvt_pk_bf16_f32 v%d, v%d, v%d" % (vP + 2, es[4], es[5]))
e("v_cvt_pk_bf16_f32 v%d, v%d, v%d" % (vP + 3, es[6], es[7]))
e("v_and_b32 v%d, v%d, v%d" % (vP, vT, vPM + 2))
e("v_and_b32 v%d, v%d, v%d" % (vP + 1, vT + 1, vPM + 3))
e("v_and_b32 v%d, v%d, v%d" % (vP + 4, vT, vPM))
e("v_and_b32 v%d, v%d, v%d" % (vP + 5, vT + 1, vPM + 1))
stamp()
poll(vFlagA)


def va_reads(t):
    for j in range(2):
        e("ds_read_b64_tr_b16 %s, v%d offset:%d" % (vr(vVa + 4 * t + 2 * j, 2), vAV + 4 * j + (t & 3), (t >> 2) * 128))


for t in range(6):
    va_reads(t)
for t in range(12):
    e("s_waitcnt lgkmcnt(%d)" % (2 * min(5, 11 - t)))
    e("v_mfma_f32_16x16x32_bf16 %s, %s, %s, 0" % (vr(vAcc + 4 * t, 4), vr(vVa + 4 * t, 4), vr(vP, 4)))
    if t + 6 < 12:
        va_reads(t + 6)
e("s_add_u32 s%d, s%d, 3" % (sNeed, sNeed))
stamp()
poll(vFlagA)
stamp()
for t in range(12):
    e("ds_read_b64_tr_b16 %s, v%d offset:%d" % (vr(vVb + 2 * t, 2), vAV + 8 + (t & 3), (t >> 2) * 128))


def o_out(t):
    e("v_cvt_pk_bf16_f32 v%d, v%d, v%d" % (vOp + 2 * t, vAcc + 4 * t, vAcc + 4 * t + 1))
    e("v_cvt_pk_bf16_f32 v%d, v%d, v%d" % (vOp + 2 * t + 1, vAcc + 4 * t + 2, vAcc + 4 * t + 3))
    e("ds_write_b64 v%d, %s offset:%d" % (vAW + (t & 3), vr(vOp + 2 * t, 2), (t >> 2) * 128))


LAG = 4
for t in range(12):
    nwr = max(0, t - LAG)
    e("s_waitcnt lgkmcnt(%d)" % min(15, 11 - t + nwr))
    e("v_mfma_f32_16x16x16_bf16 %s, %s, %s, %s" % (vr(vAcc + 4 * t, 4), vr(vVb + 2 * t, 2), vr(vP + 4, 2), vr(vAcc + 4 * t, 4)))
    if t >= LAG:
        o_out(t - LAG)
for t in range(12 - LAG, 12):
    if t == 11:
        e("s_nop 0")
    o_out(t)
e("s_mul_i32 s%d, s%d, s%d" % (sT0, sI, sStepB))
e("s_add_i32 s%d, s%d, s%d" % (sT0, sT0, sQ0))
e("s_add_u32 s%d, s%d, 1" % (sT1, sI))
e("v_mov_b32 v%d, s%d" % (vCnt, sT1))
e("s_waitcnt lgkmcnt(0)")
for j in range(6):
    e("ds_read_b128 %s, v%d offset:%d" % (vr(vRb + 4 * j, 4), vAR, j * 1024))
for j in range(6):
    o = " offset:%d" % ((j % 3) * 1024) if j % 3 else ""
    e("s_waitcnt lgkmcnt(%d)" % (5 - j))
    if j == 5:
        e("ds_write_b32 v%d, v%d" % (vDoneA, vCnt))
    e("buffer_store_dwordx4 %s, v%d, %s, s%d offen%s%s" % (vr(vRb + 4 * j, 4), vOff + j, srd(sO), sT0, o, ST))
if opts["stamp"]:
    stamp()
e("s_add_u32 s%d, s%d, %d" % (sI, sI, NC))
e("s_cmp_lt_u32 s%d, 16" % sI)
e("s_cbranch_scc1 L_task")
e("L_fin:")
if opts["stamp"]:
    e("s_waitcnt vmcnt(0)")
    e("s_mov_b32 s%d, 61" % sStampIdx)
    stamp()
    e("s_getreg_b32 s62, hwreg(HW_REG_XCC_ID)")
    e("v_writelane_b32 v%d, s62, 62" % vStamp)
    e("s_load_dwordx2 s[%d:%d], s[0:1], 40" % (sQ, sQ + 1))
    e("s_mul_i32 s62, s2, %d" % ((NC + 1) * 256))
    e("v_lshlrev_b32 v0, 2, v0")
    e("s_waitcnt lgkmcnt(0)")
    e("buffer_store_dword v%d, v0, %s, s62 offen" % (vStamp, srd(sQ)))
if opts["spin"]:
    if opts["leak"] >= 0:
        e("s_waitcnt vmcnt(0)")
        e("s_memrealtime s[62:63]")
        e("s_waitcnt lgkmcnt(0)")
        e("s_sub_u32 s62, s62, s60")
        e("s_lshl_b32 s62, s62, 2")
        e("s_add_u32 s%d, s62, %d" % (sLeak, opts["spin"]))
    else:
        e("s_mov_b32 s%d, %d" % (sLeak, opts["spin"]))
    e("L_spin:")
    e("s_sleep 4")
    e("s_memrealtime s[62:63]")
    e("s_waitcnt lgkmcnt(0)")
    e("s_sub_u32 s62, s62, s60")
    e("s_cmp_lt_u32 s62, s%d" % sLeak)
    e("s_cbranch_scc1 L_spin")
e("L_end:")
e("s_endpgm")

L = [x for x in L if x is not None]

hdr = """; Sliding-window (w=32) attention, B=1 H=32 S=2048 D=192, bf16.  Generated by gen2.py (hand-written generator).
; kernarg: q, k, v, out, debug, ws
; one workgroup per 256 query rows: wave 0 streams 16-row Q/K/V blocks into LDS rings by LDS-DMA,
; waves 1..%d each take every %d-th 16-query task; hand-off through LDS counters.
; @launch grid=(256,1,1) block=(%d,1,1) lds=%d
.amdgcn_target "amdgcn-amd-amdhsa--gfx950"
.text
.globl %s_kernel
.p2align 8
.type %s_kernel,@function
%s_kernel:
""" % (NC, NC, 64 * (NC + 1), LDS, NAME, NAME, NAME)

ftr = """
.section .rodata,"a"
.p2align 6
.amdhsa_kernel %s_kernel
  .amdhsa_next_free_vgpr %d
  .amdhsa_next_free_sgpr 64
  .amdhsa_accum_offset %d
  .amdhsa_group_segment_fixed_size 0
  .amdhsa_kernarg_size 48
  .amdhsa_user_sgpr_count 2
  .amdhsa_user_sgpr_kernarg_segment_ptr 1
  .amdhsa_system_sgpr_workgroup_id_x 1
.end_amdhsa_kernel
""" % (NAME, NVGPR, NVGPR)

open(sys.argv[1], "w").write(hdr + "\n".join(L) + ftr)
```

```python
import sys
import struct

NAME = "standalone__sliding_local_fixed_window__prompt"

opts = dict(
    ld="nt",
    st="",
    altdir=1,
    xcdmap=1,
    mimic=1,
    depth=6,
    nc=4,
    sleep=1,
    stamp=0,
    spin=0,
    leak="",
    prio=3,
)
for a in sys.argv[2:]:
    k, v = a.split("=")
    assert k in opts, k
    opts[k] = v if isinstance(opts[k], str) else int(v)

LD = (" " + opts["ld"].replace("+", " ")) if opts["ld"] else ""
ST = (" " + opts["st"].replace("+", " ")) if opts["st"] else ""
D = opts["depth"]
NC = opts["nc"]
assert 6 * (D + 1) <= 63 and NC in (2, 4, 8)

BLK = 6144
KRING = 0
VRING = 8 * BLK
QRING = 16 * BLK
FLAG = 24 * BLK
DONE = FLAG + 256
LDS = DONE + 256 * NC
NBYTES = 32 * 2048 * 384

L = []


def e(s=""):
    L.append("    " + s if s and not s.endswith(":") else s)


def f32hex(x):
    return "0x%08x" % struct.unpack("<I", struct.pack("<f", x))[0]


sQ, sK, sV, sO = 12, 16, 20, 24
sWave = 28
sStepB = 29
sKV0 = 30
sQ0 = 31
sMinOff = 32
sChunk = 33
sI = 34
sF = 35
sM = 36
sScale = 44
sLog2e = 45
sT0, sT1, sT2, sT3, sT4, sT5 = 46, 47, 48, 49, 50, 51
sHi = 52
sNeed = 53
sQo, sKo, sVo = 54, 55, 56
sStampIdx = 58
sLeak = 59

vOff = 1
vLane = 7
vA0, vA1 = 8, 9
vU = 10
vW = 14
vR = 18
vPM = 19
vFlagA = 23
vDoneA = 24
vF = 25
vCnt = 26
vInit0 = 28
vInit1 = 32
vAQ = 36
vAK = 38
vAV = 44
vAW = 56
vAR = 60
vQ = 64
vK = 88
vS = 160
vX = 172
vT = 180
vP = 188
vAcc = 196
vVa = vK
vVb = vK + 48
vOp = vQ
vRb = vK
vStamp = 244
NVGPR = 248


def srd(s):
    return "s[%d:%d]" % (s, s + 3)


def vr(a, n):
    return "v[%d:%d]" % (a, a + n - 1) if n > 1 else "v%d" % a


nstamp = [0]


def stamp():
    if opts["stamp"]:
        e("s_memrealtime s[62:63]")
        e("s_mov_b32 m0, s%d" % sStampIdx)
        e("s_waitcnt lgkmcnt(0)")
        e("v_writelane_b32 v%d, s62, m0" % vStamp)
        e("s_add_u32 s%d, s%d, 1" % (sStampIdx, sStampIdx))


def leak(name, first_only=False):
    if opts["leak"] != name:
        return
    if first_only:
        e("s_cmp_lg_u32 s64, s60")
        e("s_cbranch_scc1 L_leak_skip")
    e("s_waitcnt lgkmcnt(0)")
    e("s_memrealtime s[64:65]")
    e("s_waitcnt lgkmcnt(0)")
    if first_only:
        e("L_leak_skip:")


def g_of(vdst, vrow, vtmp):
    e("v_lshrrev_b32 v%d, 1, v%d" % (vtmp, vrow))
    e("v_xor_b32 v%d, v%d, v%d" % (vtmp, vtmp, vrow))
    e("v_and_b32 v%d, 4, v%d" % (vtmp, vtmp))
    e("v_and_or_b32 v%d, v%d, 2, v%d" % (vtmp, vrow, vtmp))
    e("v_bfe_u32 v%d, v%d, 3, 1" % (vdst, vrow))
    e("v_or_b32 v%d, v%d, v%d" % (vdst, vdst, vtmp))
    e("v_lshlrev_b32 v%d, 4, v%d" % (vdst, vdst))


def dma_block(s_srd, s_off, s_lds, ring):
    e("s_add_u32 m0, s%d, %d" % (s_lds, ring))
    e("s_nop 0")
    for j in range(6):
        if j == 3:
            e("s_add_u32 m0, s%d, %d" % (s_lds, ring + 3072))
            e("s_nop 0")
        o = " offset:%d" % ((j % 3) * 1024) if j % 3 else ""
        e("buffer_load_dwordx4 v%d, %s, s%d offen%s%s lds" % (vOff + j, srd(s_srd), s_off, o, LD))


def publish(n):
    e("s_waitcnt vmcnt(%d)" % n)
    e("ds_write_b32 v%d, v%d" % (vFlagA, vCnt))
    e("v_add_u32 v%d, 1, v%d" % (vCnt, vCnt))


npoll = [0]


def poll(vaddr, cached=True):
    n = npoll[0]
    npoll[0] += 1
    if cached:
        e("s_cmp_ge_i32 s%d, s%d" % (sF, sNeed))
        e("s_cbranch_scc1 L_go%d" % n)
    e("L_poll%d:" % n)
    e("ds_read_b32 v%d, v%d" % (vF, vaddr))
    e("s_waitcnt lgkmcnt(0)")
    e("v_readfirstlane_b32 s%d, v%d" % (sF, vF))
    e("s_nop 0")
    e("s_cmp_ge_i32 s%d, s%d" % (sF, sNeed))
    e("s_cbranch_scc1 L_go%d" % n)
    if opts["sleep"]:
        e("s_sleep %d" % opts["sleep"])
    e("s_branch L_poll%d" % n)
    e("L_go%d:" % n)


e("s_cmp_ge_u32 s2, 256")
e("s_cbranch_scc1 L_end")
if opts["spin"] or opts["stamp"]:
    e("s_memrealtime s[60:61]")
e("s_load_dwordx2 s[%d:%d], s[0:1], 8" % (sK, sK + 1))
e("s_load_dwordx2 s[%d:%d], s[0:1], 16" % (sV, sV + 1))
e("s_load_dwordx2 s[%d:%d], s[0:1], 0" % (sQ, sQ + 1))
e("s_load_dwordx2 s[%d:%d], s[0:1], 24" % (sO, sO + 1))
e("v_lshrrev_b32 v64, 6, v0")
e("v_and_b32 v%d, 63, v0" % vLane)
e("v_readfirstlane_b32 s%d, v64" % sWave)
for s in (sQ, sK, sV, sO):
    e("s_mov_b32 s%d, %d" % (s + 2, NBYTES))
    e("s_mov_b32 s%d, 0x20000" % (s + 3))
e("v_lshlrev_b32 v%d, 2, v0" % vDoneA)
e("v_add_u32 v%d, %d, v%d" % (vDoneA, FLAG, vDoneA))
e("v_mov_b32 v%d, 0" % vF)
e("ds_write_b32 v%d, v%d" % (vDoneA, vF))
e("v_lshrrev_b32 v65, 3, v%d" % vLane)
e("v_lshlrev_b32 v66, 4, v%d" % vLane)
e("v_add_u32 v67, 3072, v66")
for j in range(6):
    e("v_add_u32 v68, %d, v65" % (8 * j))
    e("v_mul_u32_u24 v68, 171, v68")
    e("v_lshrrev_b32 v68, 9, v68")
    g_of(69, 68, 70)
    e("v_xor_b32 v%d, v%d, v69" % (vOff + j, 66 if j < 3 else 67))
if opts["xcdmap"]:
    e("s_and_b32 s%d, s2, 7" % sT1)
    e("s_lshr_b32 s%d, s2, 6" % sT2)
    e("s_lshl_b32 s%d, s%d, 3" % (sT2, sT2))
    e("s_add_u32 s%d, s%d, s%d" % (sT1, sT1, sT2))
    e("s_bfe_u32 s%d, s2, 0x30003" % sChunk)
else:
    e("s_lshr_b32 s%d, s2, 3" % sT1)
    e("s_and_b32 s%d, s2, 7" % sChunk)
e("s_mul_i32 s%d, s%d, %d" % (sMinOff, sT1, 2048 * 384))
e("s_mul_i32 s%d, s%d, %d" % (sT2, sChunk, 256 * 384))
e("s_add_u32 s%d, s%d, s%d" % (sT2, sT2, sMinOff))
if opts["altdir"]:
    e("s_bitcmp1_b32 s%d, 0" % sChunk)
    e("s_cselect_b32 s%d, %d, %d" % (sStepB, -BLK, BLK)) if False else None
    e("s_movk_i32 s%d, %d" % (sT3, BLK))
    e("s_movk_i32 s%d, %d" % (sT4, -BLK))
    e("s_cselect_b32 s%d, s%d, s%d" % (sStepB, sT4, sT3))
    e("s_movk_i32 s%d, %d" % (sT3, -2 * BLK))
    e("s_cselect_b32 s%d, %d, s%d" % (sKV0, 15 * BLK, sT3))
    e("s_cselect_b32 s%d, %d, 0" % (sQ0, 15 * BLK))
else:
    e("s_movk_i32 s%d, %d" % (sStepB, BLK))
    e("s_movk_i32 s%d, %d" % (sKV0, -2 * BLK))
    e("s_mov_b32 s%d, 0" % sQ0)
e("s_add_i32 s%d, s%d, s%d" % (sKV0, sKV0, sT2))
e("s_add_i32 s%d, s%d, s%d" % (sQ0, sQ0, sT2))
if opts["stamp"]:
    e("s_waitcnt lgkmcnt(0)")
    e("v_mov_b32 v%d, 0" % vStamp)
    e("v_writelane_b32 v%d, s60, 0" % vStamp)
    e("s_mov_b32 s%d, 1" % sStampIdx)
    stamp()
if opts["leak"]:
    e("s_waitcnt lgkmcnt(0)")
    e("s_mov_b32 s64, s60")
leak("karg")
e("s_cmp_lg_u32 s%d, 0" % sWave)
e("s_cbranch_scc1 L_compute")

if opts["prio"]:
    e("s_setprio %d" % opts["prio"])
e("s_max_i32 s%d, s%d, s%d" % (sT0, sKV0, sMinOff))
e("s_add_i32 s%d, s%d, s%d" % (sVo, sKV0, sStepB))
e("s_max_i32 s%d, s%d, s%d" % (sT1, sVo, sMinOff))
e("s_mov_b32 s%d, 0" % sT2)
e("s_movk_i32 s%d, %d" % (sT3, BLK))
e("s_waitcnt lgkmcnt(0)")
dma_block(sK, sT0, sT2, KRING)
dma_block(sK, sT1, sT3, KRING)
dma_block(sV, sT0, sT2, VRING)
leak("iss3")
if opts["leak"] == "first":
    e("s_waitcnt vmcnt(12)")
leak("first")
e("s_add_i32 s%d, s%d, s%d" % (sKo, sVo, sStepB))
e("s_mov_b32 s%d, s%d" % (sQo, sQ0))
e("v_mov_b32 v%d, v%d" % (vFlagA, vDoneA))
e("v_mov_b32 v%d, %d" % (vCnt, 3 - D + 1))
e("s_mov_b32 s%d, 0" % sI)
e("s_barrier")
e("L_ldloop:")
e("s_cmp_lt_u32 s%d, 6" % sI)
e("s_cbranch_scc1 L_nofree")
e("s_sub_u32 s%d, s%d, 6" % (sT0, sI))
e("s_add_u32 s%d, s%d, 1" % (sNeed, sT0))
e("s_and_b32 s%d, s%d, %d" % (sT0, sT0, NC - 1))
e("s_lshl_b32 s%d, s%d, 8" % (sT0, sT0))
e("s_add_u32 s%d, s%d, %d" % (sT0, sT0, DONE))
e("v_mov_b32 v%d, s%d" % (vDoneA, sT0))
poll(vDoneA, cached=False)
e("L_nofree:")
stamp()
e("s_and_b32 s%d, s%d, 7" % (sT0, sI))
e("s_mul_i32 s%d, s%d, %d" % (sT0, sT0, BLK))
dma_block(sQ, sQo, sT0, QRING)
e("s_add_u32 s%d, s%d, 2" % (sT0, sI))
e("s_and_b32 s%d, s%d, 7" % (sT0, sT0))
e("s_mul_i32 s%d, s%d, %d" % (sT0, sT0, BLK))
e("s_add_i32 s%d, s%d, s%d" % (sQo, sQo, sStepB))
publish(6 * D)
dma_block(sK, sKo, sT0, KRING)
e("s_add_u32 s%d, s%d, 1" % (sI, sI))
e("s_and_b32 s%d, s%d, 7" % (sT0, sI))
e("s_mul_i32 s%d, s%d, %d" % (sT0, sT0, BLK))
e("s_max_i32 s%d, s%d, s%d" % (sT1, sVo, sMinOff))
e("s_mov_b32 s%d, s%d" % (sVo, sKo))
e("s_add_i32 s%d, s%d, s%d" % (sKo, sKo, sStepB))
publish(6 * D)
dma_block(sV, sT1, sT0, VRING)
publish(6 * D)
e("s_cmp_lt_u32 s%d, 16" % sI)
e("s_cbranch_scc1 L_ldloop")
e("s_movk_i32 s%d, %d" % (sT0, BLK))
dma_block(sV, sVo, sT0, VRING)
stamp()
leak("ldiss")
for r in range(D, 0, -1):
    publish(6 * r)
e("v_mov_b32 v%d, 54" % vCnt)
e("s_waitcnt vmcnt(0)")
e("ds_write_b32 v%d, v%d" % (vFlagA, vCnt))
stamp()
leak("lddone")
e("s_branch L_fin")

e("L_compute:")
e("s_waitcnt lgkmcnt(0)")
e("s_barrier")
e("s_sub_u32 s%d, s%d, 1" % (sI, sWave))
e("s_mov_b32 s%d, 0" % sF)
e("v_mov_b32 v%d, %d" % (vFlagA, FLAG))
e("v_and_b32 v66, 15, v%d" % vLane)
e("v_lshrrev_b32 v67, 4, v%d" % vLane)
g_of(70, 66, 71)
e("v_mul_u32_u24 v68, 384, v66")
e("v_lshlrev_b32 v69, 4, v67")
e("v_xor_b32 v69, v69, v70")
e("v_add_u32 v%d, v68, v69" % vA0)
e("v_xor_b32 v%d, 64, v%d" % (vA1, vA0))
e("v_lshrrev_b32 v69, 1, v67")
e("v_lshlrev_b32 v69, 4, v69")
e("v_xor_b32 v69, v69, v70")
e("v_and_b32 v71, 1, v67")
e("v_lshl_add_u32 v69, v71, 3, v69")
e("v_add_u32 v%d, v68, v69" % vW)
for m in range(1, 4):
    e("v_xor_b32 v%d, %d, v%d" % (vW + m, 32 * m, vW))
e("v_lshlrev_b32 v69, 2, v67")
for i in range(4):
    e("v_add_u32 v71, %d, v69" % i)
    e("v_cmp_le_u32 s[%d:%d], v71, v66" % (sM + 2 * i, sM + 2 * i + 1))
e("s_ashr_i32 s%d, s%d, 31" % (sT0, sStepB))
e("s_mov_b32 s%d, s%d" % (sT1, sT0))
e("s_nop 1")
for i in range(4):
    e("s_xor_b64 s[%d:%d], s[%d:%d], s[%d:%d]" % (sM + 2 * i, sM + 2 * i + 1, sM + 2 * i, sM + 2 * i + 1, sT0, sT1))
e("s_mov_b32 s%d, 0xffff0000" % sHi)
e("v_mov_b32 v72, 0xffff")
e("v_mov_b32 v73, s%d" % sHi)
for k in range(2):
    e("v_cndmask_b32 v74, 0, v72, s[%d:%d]" % (sM + 4 * k, sM + 4 * k + 1))
    e("v_cndmask_b32 v75, 0, v73, s[%d:%d]" % (sM + 4 * k + 2, sM + 4 * k + 3))
    e("v_or_b32 v%d, v74, v75" % (vPM + k))
    e("v_not_b32 v%d, v%d" % (vPM + 2 + k, vPM + k))
e("v_lshrrev_b32 v69, 2, v%d" % vLane)
g_of(70, 69, 71)
e("v_mul_u32_u24 v68, 384, v69")
e("v_bfe_u32 v71, v%d, 1, 1" % vLane)
e("v_lshlrev_b32 v71, 4, v71")
e("v_xor_b32 v70, v70, v71")
e("v_and_b32 v71, 1, v%d" % vLane)
e("v_lshl_add_u32 v70, v71, 3, v70")
e("v_add_u32 v70, v68, v70")
e("v_add_u32 v%d, %d, v70" % (vU, VRING))
for m in range(1, 4):
    e("v_xor_b32 v%d, %d, v%d" % (vU + m, 32 * m, vU))
e("v_lshlrev_b32 v%d, 4, v%d" % (vR, vLane))
e("s_cmp_eq_u32 s%d, 0" % sChunk)
e("s_cselect_b32 s%d, 0xff800000, 0" % sT2)
e("s_cmp_lt_u32 s%d, 2" % sI)
e("s_cselect_b32 s%d, s%d, 0" % (sT0, sT2))
e("s_cmp_eq_u32 s%d, 0" % sI)
e("s_cselect_b32 s%d, s%d, 0" % (sT1, sT2))
for i in range(4):
    e("v_mov_b32 v%d, s%d" % (vInit0 + i, sT0))
    e("v_mov_b32 v%d, s%d" % (vInit1 + i, sT1))
e("s_mov_b32 s%d, %s" % (sScale, f32hex(192 ** -0.5)))
if opts["mimic"]:
    e("s_mov_b32 s%d, %s" % (sLog2e, f32hex(1.4426950408889634)))
else:
    e("s_mov_b32 s%d, %s" % (sLog2e, f32hex(1.4426950408889634 * 192 ** -0.5)))

e("L_task:")
e("s_and_b32 s%d, s%d, 7" % (sT0, sI))
e("s_mul_i32 s%d, s%d, %d" % (sT0, sT0, BLK))
e("s_add_u32 s%d, s%d, %d" % (sT1, sT0, QRING))
e("v_add_u32 v%d, s%d, v%d" % (vAQ, sT1, vA0))
e("v_add_u32 v%d, s%d, v%d" % (vAQ + 1, sT1, vA1))
for m in range(4):
    e("v_add_u32 v%d, s%d, v%d" % (vAW + m, sT1, vW + m))
e("v_add_u32 v%d, s%d, v%d" % (vAR, sT1, vR))
for j in range(3):
    if j:
        e("s_add_u32 s%d, s%d, %d" % (sT0, sI, j))
        e("s_and_b32 s%d, s%d, 7" % (sT0, sT0))
        e("s_mul_i32 s%d, s%d, %d" % (sT0, sT0, BLK))
    e("v_add_u32 v%d, s%d, v%d" % (vAK + 2 * j, sT0, vA0))
    e("v_add_u32 v%d, s%d, v%d" % (vAK + 2 * j + 1, sT0, vA1))
    for m in range(4):
        e("v_add_u32 v%d, s%d, v%d" % (vAV + 4 * j + m, sT0, vU + m))
e("s_mul_i32 s%d, s%d, 3" % (sNeed, sI))
e("s_add_u32 s%d, s%d, 5" % (sNeed, sNeed))
leak("t_rdy", True)
poll(vFlagA)
stamp()
leak("t_qk", True)


def qk_reads(i):
    o = (i >> 1) * 128
    e("ds_read_b128 %s, v%d offset:%d" % (vr(vQ + 4 * i, 4), vAQ + (i & 1), o))
    for j in range(3):
        e("ds_read_b128 %s, v%d offset:%d" % (vr(vK + 12 * i + 4 * j, 4), vAK + 2 * j + (i & 1), o))


for i in range(3):
    qk_reads(i)
for k in range(6):
    e("s_waitcnt lgkmcnt(%d)" % (4 * min(2, 5 - k)))
    for j in range(3):
        c = [vr(vInit0, 4), vr(vInit1, 4), "0"][j] if k == 0 else vr(vS + 4 * j, 4)
        e("v_mfma_f32_16x16x32_bf16 %s, %s, %s, %s" % (vr(vS + 4 * j, 4), vr(vK + 12 * k + 4 * j, 4), vr(vQ + 4 * k, 4), c))
    if k + 3 < 6:
        qk_reads(k + 3)
for i in range(4):
    e("v_mov_b32 v%d, 0" % (vInit0 + i))
    e("v_mov_b32 v%d, 0" % (vInit1 + i))
e("s_add_u32 s%d, s%d, 1" % (sNeed, sNeed))
for i in range(4):
    e("v_cndmask_b32 v%d, v%d, v%d, s[%d:%d]" % (vX + i, vS + i, vS + 8 + i, sM + 2 * i, sM + 2 * i + 1))
xs = [vX + i for i in range(4)] + [vS + 4 + i for i in range(4)]
ys = [vX + i for i in range(8)]
if opts["mimic"]:
    for p in range(4):
        e("v_cvt_pk_bf16_f32 v%d, v%d, v%d" % (vT + p, xs[2 * p], xs[2 * p + 1]))
    for p in range(4):
        e("v_lshlrev_b32 v%d, 16, v%d" % (ys[2 * p], vT + p))
        e("v_and_b32 v%d, s%d, v%d" % (ys[2 * p + 1], sHi, vT + p))
    for p in range(8):
        e("v_mul_f32 v%d, s%d, v%d" % (ys[p], sScale, ys[p]))
    for p in range(4):
        e("v_cvt_pk_bf16_f32 v%d, v%d, v%d" % (vT + p, ys[2 * p], ys[2 * p + 1]))
    for p in range(4):
        e("v_lshlrev_b32 v%d, 16, v%d" % (ys[2 * p], vT + p))
        e("v_and_b32 v%d, s%d, v%d" % (ys[2 * p + 1], sHi, vT + p))
else:
    ys = xs
m, m2 = vT + 4, vT + 5
e("v_max3_f32 v%d, v%d, v%d, v%d" % (m, ys[0], ys[1], ys[2]))
e("v_max3_f32 v%d, v%d, v%d, v%d" % (m2, ys[3], ys[4], ys[5]))
e("v_max3_f32 v%d, v%d, v%d, v%d" % (m, m, ys[6], ys[7]))
e("v_max_f32 v%d, v%d, v%d" % (m, m, m2))
e("v_mov_b32 v%d, v%d" % (m2, m))
e("s_nop 1")
e("v_permlane16_swap_b32 v%d, v%d" % (m, m2))
e("s_nop 0")
e("v_max_f32 v%d, v%d, v%d" % (m, m, m2))
e("v_mov_b32 v%d, v%d" % (m2, m))
e("s_nop 1")
e("v_permlane32_swap_b32 v%d, v%d" % (m, m2))
e("s_nop 0")
e("v_max_f32 v%d, v%d, v%d" % (m, m, m2))
e("v_mul_f32 v%d, s%d, v%d" % (m, sLog2e, m))
es = [vX + i for i in range(8)]
for p in range(8):
    e("v_fma_f32 v%d, v%d, s%d, -v%d" % (es[p], ys[p], sLog2e, m))
for p in range(8):
    e("v_exp_f32 v%d, v%d" % (es[p], es[p]))
sm, sm2 = vT + 6, vT + 7
e("v_add_f32 v%d, v%d, v%d" % (sm, es[0], es[1]))
e("v_add_f32 v%d, v%d, v%d" % (sm2, es[2], es[3]))
e("v_add_f32 v%d, v%d, v%d" % (sm, sm, es[4]))
e("v_add_f32 v%d, v%d, v%d" % (sm2, sm2, es[5]))
e("v_add_f32 v%d, v%d, v%d" % (sm, sm, es[6]))
e("v_add_f32 v%d, v%d, v%d" % (sm2, sm2, es[7]))
e("v_add_f32 v%d, v%d, v%d" % (sm, sm, sm2))
e("v_mov_b32 v%d, v%d" % (sm2, sm))
e("s_nop 1")
e("v_permlane16_swap_b32 v%d, v%d" % (sm, sm2))
e("s_nop 0")
e("v_add_f32 v%d, v%d, v%d" % (sm, sm, sm2))
e("v_mov_b32 v%d, v%d" % (sm2, sm))
e("s_nop 1")
e("v_permlane32_swap_b32 v%d, v%d" % (sm, sm2))
e("s_nop 0")
e("v_add_f32 v%d, v%d, v%d" % (sm, sm, sm2))
e("v_rcp_f32 v%d, v%d" % (sm, sm))
e("s_nop 0")
for p in range(8):
    e("v_mul_f32 v%d, v%d, v%d" % (es[p], es[p], sm))
e("v_cvt_pk_bf16_f32 v%d, v%d, v%d" % (vT, es[0], es[1]))
e("v_cvt_pk_bf16_f32 v%d, v%d, v%d" % (vT + 1, es[2], es[3]))
e("v_cvt_pk_bf16_f32 v%d, v%d, v%d" % (vP + 2, es[4], es[5]))
e("v_cvt_pk_bf16_f32 v%d, v%d, v%d" % (vP + 3, es[6], es[7]))
e("v_and_b32 v%d, v%d, v%d" % (vP, vT, vPM + 2))
e("v_and_b32 v%d, v%d, v%d" % (vP + 1, vT + 1, vPM + 3))
e("v_and_b32 v%d, v%d, v%d" % (vP + 4, vT, vPM))
e("v_and_b32 v%d, v%d, v%d" % (vP + 5, vT + 1, vPM + 1))
stamp()
poll(vFlagA)


def va_reads(t):
    for j in range(2):
        e("ds_read_b64_tr_b16 %s, v%d offset:%d" % (vr(vVa + 4 * t + 2 * j, 2), vAV + 4 * j + (t & 3), (t >> 2) * 128))


for t in range(6):
    va_reads(t)
for t in range(12):
    e("s_waitcnt lgkmcnt(%d)" % (2 * min(5, 11 - t)))
    e("v_mfma_f32_16x16x32_bf16 %s, %s, %s, 0" % (vr(vAcc + 4 * t, 4), vr(vVa + 4 * t, 4), vr(vP, 4)))
    if t + 6 < 12:
        va_reads(t + 6)
e("s_add_u32 s%d, s%d, 3" % (sNeed, sNeed))
stamp()
poll(vFlagA)
stamp()
for t in range(12):
    e("ds_read_b64_tr_b16 %s, v%d offset:%d" % (vr(vVb + 2 * t, 2), vAV + 8 + (t & 3), (t >> 2) * 128))


def o_out(t):
    e("v_cvt_pk_bf16_f32 v%d, v%d, v%d" % (vOp + 2 * t, vAcc + 4 * t, vAcc + 4 * t + 1))
    e("v_cvt_pk_bf16_f32 v%d, v%d, v%d" % (vOp + 2 * t + 1, vAcc + 4 * t + 2, vAcc + 4 * t + 3))
    e("ds_write_b64 v%d, %s offset:%d" % (vAW + (t & 3), vr(vOp + 2 * t, 2), (t >> 2) * 128))


LAG = 4
for t in range(12):
    nwr = max(0, t - LAG)
    e("s_waitcnt lgkmcnt(%d)" % min(15, 11 - t + nwr))
    e("v_mfma_f32_16x16x16_bf16 %s, %s, %s, %s" % (vr(vAcc + 4 * t, 4), vr(vVb + 2 * t, 2), vr(vP + 4, 2), vr(vAcc + 4 * t, 4)))
    if t >= LAG:
        o_out(t - LAG)
for t in range(12 - LAG, 12):
    if t == 11:
        e("s_nop 0")
    o_out(t)
e("s_mul_i32 s%d, s%d, s%d" % (sT0, sI, sStepB))
e("s_add_i32 s%d, s%d, s%d" % (sT0, sT0, sQ0))
e("s_add_u32 s%d, s%d, 1" % (sT1, sI))
e("v_mov_b32 v%d, s%d" % (vCnt, sT1))
e("s_waitcnt lgkmcnt(0)")
for j in range(6):
    e("ds_read_b128 %s, v%d offset:%d" % (vr(vRb + 4 * j, 4), vAR, j * 1024))
for j in range(6):
    o = " offset:%d" % ((j % 3) * 1024) if j % 3 else ""
    e("s_waitcnt lgkmcnt(%d)" % (5 - j))
    if j == 5:
        e("ds_write_b32 v%d, v%d" % (vDoneA, vCnt))
    e("buffer_store_dwordx4 %s, v%d, %s, s%d offen%s%s" % (vr(vRb + 4 * j, 4), vOff + j, srd(sO), sT0, o, ST))
if opts["stamp"]:
    stamp()
leak("t_st", True)
e("s_add_u32 s%d, s%d, %d" % (sI, sI, NC))
e("s_cmp_lt_u32 s%d, 16" % sI)
e("s_cbranch_scc1 L_task")
e("L_fin:")
if opts["stamp"]:
    e("s_waitcnt vmcnt(0)")
    e("s_mov_b32 s%d, 61" % sStampIdx)
    stamp()
    e("s_getreg_b32 s62, hwreg(HW_REG_XCC_ID)")
    e("v_writelane_b32 v%d, s62, 62" % vStamp)
    e("s_load_dwordx2 s[%d:%d], s[0:1], 40" % (sQ, sQ + 1))
    e("s_mul_i32 s62, s2, %d" % ((NC + 1) * 256))
    e("v_lshlrev_b32 v0, 2, v0")
    e("s_waitcnt lgkmcnt(0)")
    e("buffer_store_dword v%d, v0, %s, s62 offen" % (vStamp, srd(sQ)))
if opts["spin"]:
    if opts["leak"]:
        if opts["leak"] == "fin":
            e("s_waitcnt vmcnt(0)")
            leak("fin")
        e("s_sub_u32 s62, s64, s60")
        e("s_lshl_b32 s62, s62, 2")
        e("s_add_u32 s%d, s62, %d" % (sLeak, opts["spin"]))
    else:
        e("s_mov_b32 s%d, %d" % (sLeak, opts["spin"]))
    e("L_spin:")
    e("s_sleep 4")
    e("s_memrealtime s[62:63]")
    e("s_waitcnt lgkmcnt(0)")
    e("s_sub_u32 s62, s62, s60")
    e("s_cmp_lt_u32 s62, s%d" % sLeak)
    e("s_cbranch_scc1 L_spin")
e("L_end:")
e("s_endpgm")

L = [x for x in L if x is not None]

hdr = """; Sliding-window (w=32) attention, B=1 H=32 S=2048 D=192, bf16.  Generated by gen2.py (hand-written generator).
; kernarg: q, k, v, out, debug, ws
; one workgroup per 256 query rows: wave 0 streams 16-row Q/K/V blocks into LDS rings by LDS-DMA,
; waves 1..%d each take every %d-th 16-query task; hand-off through LDS counters.
; @launch grid=(256,1,1) block=(%d,1,1) lds=%d
.amdgcn_target "amdgcn-amd-amdhsa--gfx950"
.text
.globl %s_kernel
.p2align 8
.type %s_kernel,@function
%s_kernel:
""" % (NC, NC, 64 * (NC + 1), LDS, NAME, NAME, NAME)

ftr = """
.section .rodata,"a"
.p2align 6
.amdhsa_kernel %s_kernel
  .amdhsa_next_free_vgpr %d
  .amdhsa_next_free_sgpr 72
  .amdhsa_accum_offset %d
  .amdhsa_group_segment_fixed_size 0
  .amdhsa_kernarg_size 48
  .amdhsa_user_sgpr_count 2
  .amdhsa_user_sgpr_kernarg_segment_ptr 1
  .amdhsa_system_sgpr_workgroup_id_x 1
.end_amdhsa_kernel
""" % (NAME, NVGPR, NVGPR)

open(sys.argv[1], "w").write(hdr + "\n".join(L) + ftr)
```

```python
import sys
import struct

NAME = "standalone__sliding_local_fixed_window__prompt"

opts = dict(
    ld="nt",
    st="",
    altdir=1,
    xcdmap=1,
    mimic=1,
    vm=18,
    half=1,
    vmodd=0,
    early=0,
    rel=15,
    tail=3,
    nc=4,
    sleep=1,
    stamp=0,
    spin=0,
    leak="",
    prio=3,
)
for a in sys.argv[2:]:
    k, v = a.split("=")
    assert k in opts, k
    opts[k] = v if isinstance(opts[k], str) else int(v)

LD = (" " + opts["ld"].replace("+", " ")) if opts["ld"] else ""
ST = (" " + opts["st"].replace("+", " ")) if opts["st"] else ""
NC = opts["nc"]
assert NC == 4

BLK = 6144
KRING = 0
VRING = 8 * BLK
QRING = 16 * BLK
FLAG = 24 * BLK
DONE = FLAG + 256
FLAGV = DONE + 256 * NC
LDS = FLAGV + 256
NBYTES = 32 * 2048 * 384

L = []


def e(s=""):
    L.append("    " + s if s and not s.endswith(":") else s)


def f32hex(x):
    return "0x%08x" % struct.unpack("<I", struct.pack("<f", x))[0]


sQ, sK, sV, sO = 12, 16, 20, 24
sWave = 28
sStepB = 29
sKV0 = 30
sQ0 = 31
sMinOff = 32
sChunk = 33
sI = 34
sF = 35
sM = 36
sScale = 44
sLog2e = 45
sT0, sT1, sT2, sT3, sT4, sT5 = 46, 47, 48, 49, 50, 51
sHi = 52
sNeed = 53
sQo, sKo, sVo = 54, 55, 56
sFV = 57
sStampIdx = 58
sLeak = 59

vOff = 1
vLane = 7
vA0, vA1 = 8, 9
vU = 10
vW = 14
vR = 18
vPM = 19
vFlagA = 23
vDoneA = 24
vF = 25
vCnt = 26
vCntV = 27
vAQ = 28
vAK = 30
vAV = 28
vAW = 40
vAR = 44
vPb = 46
vP = 48
vQ = 52
vK = 76
vAcc = 124
vS = 124
vX = 136
vT = 144
vHold = 172
vVa = vK
vVb = vQ
vOp = vK
vRbLast = vK + 24
vStamp = 244
NVGPR = 248
sInit0, sInit1 = 66, 67


def srd(s):
    return "s[%d:%d]" % (s, s + 3)


def vr(a, n):
    return "v[%d:%d]" % (a, a + n - 1) if n > 1 else "v%d" % a


nstamp = [0]


def stamp():
    if opts["stamp"]:
        e("s_memrealtime s[62:63]")
        e("s_mov_b32 m0, s%d" % sStampIdx)
        e("s_waitcnt lgkmcnt(0)")
        e("v_writelane_b32 v%d, s62, m0" % vStamp)
        e("s_add_u32 s%d, s%d, 1" % (sStampIdx, sStampIdx))


def leak(name, first_only=False):
    if opts["leak"] != name:
        return
    if first_only:
        e("s_cmp_lg_u32 s64, s60")
        e("s_cbranch_scc1 L_leak_skip")
    e("s_waitcnt lgkmcnt(0)")
    e("s_memrealtime s[64:65]")
    e("s_waitcnt lgkmcnt(0)")
    if first_only:
        e("L_leak_skip:")


def g_of(vdst, vrow, vtmp):
    e("v_lshrrev_b32 v%d, 1, v%d" % (vtmp, vrow))
    e("v_xor_b32 v%d, v%d, v%d" % (vtmp, vtmp, vrow))
    e("v_and_b32 v%d, 4, v%d" % (vtmp, vtmp))
    e("v_and_or_b32 v%d, v%d, 2, v%d" % (vtmp, vrow, vtmp))
    e("v_bfe_u32 v%d, v%d, 3, 1" % (vdst, vrow))
    e("v_or_b32 v%d, v%d, v%d" % (vdst, vdst, vtmp))
    e("v_lshlrev_b32 v%d, 4, v%d" % (vdst, vdst))


def dma_block(s_srd, s_off, s_lds, ring, mid=None):
    e("s_add_u32 m0, s%d, %d" % (s_lds, ring))
    e("s_nop 0")
    for j in range(6):
        if j == 3:
            e("s_add_u32 m0, s%d, %d" % (s_lds, ring + 3072))
            if mid:
                mid()
            else:
                e("s_nop 0")
        o = " offset:%d" % ((j % 3) * 1024) if j % 3 else ""
        e("buffer_load_dwordx4 v%d, %s, s%d offen%s%s lds" % (vOff + j, srd(s_srd), s_off, o, LD))


def publish(n, kind):
    e("s_waitcnt vmcnt(%d)" % n)
    if kind == "K":
        e("ds_write_b32 v%d, v%d" % (vFlagA, vCnt))
        e("v_add_u32 v%d, 1, v%d" % (vCnt, vCnt))
    elif kind == "V":
        e("ds_write_b32 v%d, v%d offset:%d" % (vFlagA, vCntV, FLAGV - FLAG))
        e("v_add_u32 v%d, 1, v%d" % (vCntV, vCntV))


npoll = [0]


def poll(vaddr, sreg, off=0, cached=True):
    n = npoll[0]
    npoll[0] += 1
    if cached:
        e("s_cmp_ge_i32 s%d, s%d" % (sreg, sNeed))
        e("s_cbranch_scc1 L_go%d" % n)
    e("L_poll%d:" % n)
    e("ds_read_b32 v%d, v%d offset:%d" % (vF, vaddr, off))
    e("s_waitcnt lgkmcnt(0)")
    e("v_readfirstlane_b32 s%d, v%d" % (sreg, vF))
    e("s_nop 0")
    e("s_cmp_ge_i32 s%d, s%d" % (sreg, sNeed))
    e("s_cbranch_scc1 L_go%d" % n)
    if opts["sleep"]:
        e("s_sleep %d" % opts["sleep"])
    e("s_branch L_poll%d" % n)
    e("L_go%d:" % n)


e("s_cmp_ge_u32 s2, 256")
e("s_cbranch_scc1 L_end")
if opts["spin"] or opts["stamp"]:
    e("s_memrealtime s[60:61]")
e("s_load_dwordx2 s[%d:%d], s[0:1], 8" % (sK, sK + 1))
e("s_load_dwordx2 s[%d:%d], s[0:1], 16" % (sV, sV + 1))
e("s_load_dwordx2 s[%d:%d], s[0:1], 0" % (sQ, sQ + 1))
e("s_load_dwordx2 s[%d:%d], s[0:1], 24" % (sO, sO + 1))
e("v_lshrrev_b32 v64, 6, v0")
e("v_and_b32 v%d, 63, v0" % vLane)
e("v_readfirstlane_b32 s%d, v64" % sWave)
for s in (sQ, sK, sV, sO):
    e("s_mov_b32 s%d, %d" % (s + 2, NBYTES))
    e("s_mov_b32 s%d, 0x20000" % (s + 3))
e("v_lshlrev_b32 v%d, 2, v0" % vDoneA)
e("v_add_u32 v%d, %d, v%d" % (vDoneA, FLAG, vDoneA))
e("v_mov_b32 v%d, 0" % vF)
e("ds_write_b32 v%d, v%d" % (vDoneA, vF))
e("v_lshrrev_b32 v65, 3, v%d" % vLane)
e("v_lshlrev_b32 v66, 4, v%d" % vLane)
e("v_add_u32 v67, 3072, v66")
for j in range(6):
    e("v_add_u32 v68, %d, v65" % (8 * j))
    e("v_mul_u32_u24 v68, 171, v68")
    e("v_lshrrev_b32 v68, 9, v68")
    g_of(69, 68, 70)
    e("v_xor_b32 v%d, v%d, v69" % (vOff + j, 66 if j < 3 else 67))
if opts["xcdmap"]:
    e("s_and_b32 s%d, s2, 7" % sT1)
    e("s_lshr_b32 s%d, s2, 6" % sT2)
    e("s_lshl_b32 s%d, s%d, 3" % (sT2, sT2))
    e("s_add_u32 s%d, s%d, s%d" % (sT1, sT1, sT2))
    e("s_bfe_u32 s%d, s2, 0x30003" % sChunk)
else:
    e("s_lshr_b32 s%d, s2, 3" % sT1)
    e("s_and_b32 s%d, s2, 7" % sChunk)
e("s_mul_i32 s%d, s%d, %d" % (sMinOff, sT1, 2048 * 384))
e("s_mul_i32 s%d, s%d, %d" % (sT2, sChunk, 256 * 384))
e("s_add_u32 s%d, s%d, s%d" % (sT2, sT2, sMinOff))
if opts["altdir"]:
    e("s_bitcmp1_b32 s%d, 0" % sChunk)
    e("s_cselect_b32 s%d, %d, %d" % (sStepB, -BLK, BLK)) if False else None
    e("s_movk_i32 s%d, %d" % (sT3, BLK))
    e("s_movk_i32 s%d, %d" % (sT4, -BLK))
    e("s_cselect_b32 s%d, s%d, s%d" % (sStepB, sT4, sT3))
    e("s_movk_i32 s%d, %d" % (sT3, -2 * BLK))
    e("s_cselect_b32 s%d, %d, s%d" % (sKV0, 15 * BLK, sT3))
    e("s_cselect_b32 s%d, %d, 0" % (sQ0, 15 * BLK))
else:
    e("s_movk_i32 s%d, %d" % (sStepB, BLK))
    e("s_movk_i32 s%d, %d" % (sKV0, -2 * BLK))
    e("s_mov_b32 s%d, 0" % sQ0)
e("s_add_i32 s%d, s%d, s%d" % (sKV0, sKV0, sT2))
e("s_add_i32 s%d, s%d, s%d" % (sQ0, sQ0, sT2))
if opts["stamp"]:
    e("s_waitcnt lgkmcnt(0)")
    e("v_mov_b32 v%d, 0" % vStamp)
    e("v_writelane_b32 v%d, s60, 0" % vStamp)
    e("s_mov_b32 s%d, 1" % sStampIdx)
    stamp()
if opts["leak"]:
    e("s_waitcnt lgkmcnt(0)")
    e("s_mov_b32 s64, s60")
leak("karg")
e("s_cmp_lg_u32 s%d, 0" % sWave)
e("s_cbranch_scc1 L_compute")

if opts["prio"]:
    e("s_setprio %d" % opts["prio"])
e("s_max_i32 s%d, s%d, s%d" % (sT0, sKV0, sMinOff))
e("s_add_i32 s%d, s%d, s%d" % (sVo, sKV0, sStepB))
e("s_max_i32 s%d, s%d, s%d" % (sT1, sVo, sMinOff))
e("s_mov_b32 s%d, 0" % sT2)
e("s_movk_i32 s%d, %d" % (sT3, BLK))
e("s_waitcnt lgkmcnt(0)")
dma_block(sK, sT0, sT2, KRING)
dma_block(sK, sT1, sT3, KRING)
dma_block(sV, sT0, sT2, VRING)
leak("iss3")
if opts["leak"] == "first":
    e("s_waitcnt vmcnt(12)")
leak("first")
e("s_add_i32 s%d, s%d, s%d" % (sKo, sVo, sStepB))
e("s_mov_b32 s%d, s%d" % (sQo, sQ0))
e("v_mov_b32 v%d, v%d" % (vFlagA, vDoneA))
e("ds_write_b32 v%d, v%d offset:%d" % (vFlagA, vF, FLAGV - FLAG))
e("s_mov_b32 s%d, 0" % sI)
E = opts["tail"]
NG = 16 - E
stream = ["K", "K", "V"] + ["Q", "K", "V"] * NG + ["Q", "K"] * E + ["V"] * (E + 1)


def free_check(tag):
    e("s_sub_u32 s%d, s%d, 6" % (sT0, sI))
    e("s_add_u32 s%d, s%d, 1" % (sNeed, sT0))
    e("s_and_b32 s%d, s%d, %d" % (sT0, sT0, NC - 1))
    e("s_lshl_b32 s%d, s%d, 8" % (sT0, sT0))
    e("s_add_u32 s%d, s%d, %d" % (sT0, sT0, DONE))
    e("v_mov_b32 v%d, s%d" % (vDoneA, sT0))
    poll(vDoneA, sF, cached=False)


def emit_loader(VM, tag):
    assert VM % 3 == 0 and VM + 6 <= 63
    atmid = VM % 6 == 3
    D = (VM + 3) // 6 if atmid else VM // 6
    kind = lambda n: "QKV"[n % 3]

    def block(s_srd, s_off, s_lds, ring, k, post):
        if atmid:
            dma_block(s_srd, s_off, s_lds, ring, lambda: publish(VM, k))
            post()
            e("s_waitcnt vmcnt(%d)" % VM)
        else:
            dma_block(s_srd, s_off, s_lds, ring, (lambda: e("s_waitcnt vmcnt(%d)" % VM)) if opts["half"] else None)
            post()
            publish(VM, k)

    k0 = sum(1 for n in range(3 - D, 1) if kind(n) == "K")
    v0 = sum(1 for n in range(3 - D, 2) if kind(n) == "V")
    assert D >= 2
    e("v_mov_b32 v%d, %d" % (vCnt, 0 - k0))
    e("v_mov_b32 v%d, %d" % (vCntV, 1 - v0))
    e("s_waitcnt lgkmcnt(0)")
    e("s_barrier")
    e("L_ldloop%s:" % tag)
    e("s_cmp_lt_u32 s%d, 6" % sI)
    e("s_cbranch_scc1 L_nofree%s" % tag)
    free_check(tag)
    e("L_nofree%s:" % tag)
    stamp()
    e("s_and_b32 s%d, s%d, 7" % (sT0, sI))
    e("s_mul_i32 s%d, s%d, %d" % (sT0, sT0, BLK))

    def p1():
        e("s_add_u32 s%d, s%d, 2" % (sT0, sI))
        e("s_and_b32 s%d, s%d, 7" % (sT0, sT0))
        e("s_mul_i32 s%d, s%d, %d" % (sT0, sT0, BLK))
        e("s_add_i32 s%d, s%d, s%d" % (sQo, sQo, sStepB))
    block(sQ, sQo, sT0, QRING, kind(3 - D), p1)

    def p2():
        e("s_add_u32 s%d, s%d, 1" % (sI, sI))
        e("s_and_b32 s%d, s%d, 7" % (sT0, sI))
        e("s_mul_i32 s%d, s%d, %d" % (sT0, sT0, BLK))
        e("s_max_i32 s%d, s%d, s%d" % (sT1, sVo, sMinOff))
        e("s_add_i32 s%d, s%d, s%d" % (sVo, sVo, sStepB))
        e("s_add_i32 s%d, s%d, s%d" % (sKo, sKo, sStepB))
    block(sK, sKo, sT0, KRING, kind(4 - D), p2)
    block(sV, sT1, sT0, VRING, kind(5 - D), lambda: None)
    e("s_cmp_lt_u32 s%d, %d" % (sI, NG))
    e("s_cbranch_scc1 L_ldloop%s" % tag)
    n = 3 + 3 * NG
    for g in range(NG, 16):
        free_check(tag)
        stamp()
        e("s_movk_i32 s%d, 0" % sT0)
        block(sQ, sQo, sT0, QRING + (g & 7) * BLK, stream[n - D], lambda: e("s_add_i32 s%d, s%d, s%d" % (sQo, sQo, sStepB)))
        n += 1

        def p3():
            e("s_add_i32 s%d, s%d, s%d" % (sKo, sKo, sStepB))
            e("s_add_u32 s%d, s%d, 1" % (sI, sI))
        block(sK, sKo, sT0, KRING + ((g + 2) & 7) * BLK, stream[n - D], p3)
        n += 1
    e("s_movk_i32 s%d, 0" % sT0)
    for j in range(NG + 1, 18):
        def p4():
            e("s_add_i32 s%d, s%d, s%d" % (sVo, sVo, sStepB))
            if j == 17:
                stamp()
                leak("ldiss")
        block(sV, sVo, sT0, VRING + (j & 7) * BLK, stream[n - D], p4)
        n += 1
    assert n == 52
    for r in range(D - 1, -1, -1):
        publish(6 * r, stream[51 - r])
    stamp()
    leak("lddone")
    e("s_branch L_fin")


if opts["vmodd"]:
    e("s_getreg_b32 s%d, hwreg(HW_REG_XCC_ID)" % sT0)
    e("s_bitcmp1_b32 s%d, 0" % sT0)
    e("s_cbranch_scc1 L_loader_odd")
    emit_loader(opts["vm"], "e")
    e("L_loader_odd:")
    emit_loader(opts["vmodd"], "o")
else:
    emit_loader(opts["vm"], "e")

e("L_compute:")
e("s_waitcnt lgkmcnt(0)")
e("s_barrier")
e("s_sub_u32 s%d, s%d, 1" % (sI, sWave))
e("s_mov_b32 s%d, 0" % sF)
e("s_mov_b32 s%d, 0" % sFV)
e("v_mov_b32 v%d, %d" % (vFlagA, FLAG))
e("v_and_b32 v66, 15, v%d" % vLane)
e("v_lshrrev_b32 v67, 4, v%d" % vLane)
g_of(70, 66, 71)
e("v_mul_u32_u24 v68, 384, v66")
e("v_lshlrev_b32 v69, 4, v67")
e("v_xor_b32 v69, v69, v70")
e("v_add_u32 v%d, v68, v69" % vA0)
e("v_xor_b32 v%d, 64, v%d" % (vA1, vA0))
e("v_lshrrev_b32 v69, 1, v67")
e("v_lshlrev_b32 v69, 4, v69")
e("v_xor_b32 v69, v69, v70")
e("v_and_b32 v71, 1, v67")
e("v_lshl_add_u32 v69, v71, 3, v69")
e("v_add_u32 v%d, v68, v69" % vW)
for m in range(1, 4):
    e("v_xor_b32 v%d, %d, v%d" % (vW + m, 32 * m, vW))
e("v_lshlrev_b32 v69, 2, v67")
for i in range(4):
    e("v_add_u32 v71, %d, v69" % i)
    e("v_cmp_le_u32 s[%d:%d], v71, v66" % (sM + 2 * i, sM + 2 * i + 1))
e("s_ashr_i32 s%d, s%d, 31" % (sT0, sStepB))
e("s_mov_b32 s%d, s%d" % (sT1, sT0))
e("s_nop 1")
for i in range(4):
    e("s_xor_b64 s[%d:%d], s[%d:%d], s[%d:%d]" % (sM + 2 * i, sM + 2 * i + 1, sM + 2 * i, sM + 2 * i + 1, sT0, sT1))
e("s_mov_b32 s%d, 0xffff0000" % sHi)
e("v_mov_b32 v72, 0xffff")
e("v_mov_b32 v73, s%d" % sHi)
for k in range(2):
    e("v_cndmask_b32 v74, 0, v72, s[%d:%d]" % (sM + 4 * k, sM + 4 * k + 1))
    e("v_cndmask_b32 v75, 0, v73, s[%d:%d]" % (sM + 4 * k + 2, sM + 4 * k + 3))
    e("v_or_b32 v%d, v74, v75" % (vPM + k))
    e("v_not_b32 v%d, v%d" % (vPM + 2 + k, vPM + k))
e("v_lshrrev_b32 v69, 2, v%d" % vLane)
g_of(70, 69, 71)
e("v_mul_u32_u24 v68, 384, v69")
e("v_bfe_u32 v71, v%d, 1, 1" % vLane)
e("v_lshlrev_b32 v71, 4, v71")
e("v_xor_b32 v70, v70, v71")
e("v_and_b32 v71, 1, v%d" % vLane)
e("v_lshl_add_u32 v70, v71, 3, v70")
e("v_add_u32 v70, v68, v70")
e("v_add_u32 v%d, %d, v70" % (vU, VRING))
for m in range(1, 4):
    e("v_xor_b32 v%d, %d, v%d" % (vU + m, 32 * m, vU))
e("v_lshlrev_b32 v%d, 4, v%d" % (vR, vLane))
e("s_cmp_eq_u32 s%d, 0" % sChunk)
e("s_cselect_b32 s%d, 0xff800000, 0" % sT2)
e("s_cmp_lt_u32 s%d, 2" % sI)
e("s_cselect_b32 s%d, s%d, 0" % (sInit0, sT2))
e("s_cmp_eq_u32 s%d, 0" % sI)
e("s_cselect_b32 s%d, s%d, 0" % (sInit1, sT2))
e("s_mov_b32 s%d, %s" % (sScale, f32hex(192 ** -0.5)))
if opts["mimic"]:
    e("s_mov_b32 s%d, %s" % (sLog2e, f32hex(1.4426950408889634)))
else:
    e("s_mov_b32 s%d, %s" % (sLog2e, f32hex(1.4426950408889634 * 192 ** -0.5)))

sB0, sB1, sB2 = 68, 69, 70
e("L_task:")
e("s_and_b32 s%d, s%d, 7" % (sB0, sI))
e("s_mul_i32 s%d, s%d, %d" % (sB0, sB0, BLK))
e("s_add_u32 s%d, s%d, %d" % (sT1, sB0, QRING))
e("v_add_u32 v%d, s%d, v%d" % (vAQ, sT1, vA0))
e("v_add_u32 v%d, s%d, v%d" % (vAQ + 1, sT1, vA1))
for m in range(4):
    e("v_add_u32 v%d, s%d, v%d" % (vAW + m, sT1, vW + m))
e("v_add_u32 v%d, s%d, v%d" % (vAR, sT1, vR))
for j in range(3):
    if j:
        e("s_add_u32 s%d, s%d, %d" % (sB0 + j, sI, j))
        e("s_and_b32 s%d, s%d, 7" % (sB0 + j, sB0 + j))
        e("s_mul_i32 s%d, s%d, %d" % (sB0 + j, sB0 + j, BLK))
    e("v_add_u32 v%d, s%d, v%d" % (vAK + 2 * j, sB0 + j, vA0))
    e("v_add_u32 v%d, s%d, v%d" % (vAK + 2 * j + 1, sB0 + j, vA1))
for i in range(4):
    e("v_mov_b32 v%d, s%d" % (vS + i, sInit0))
    e("v_mov_b32 v%d, s%d" % (vS + 4 + i, sInit1))
e("s_mov_b32 s%d, 0" % sInit0)
e("s_mov_b32 s%d, 0" % sInit1)
e("s_add_u32 s%d, s%d, 1" % (sNeed, sI))
leak("t_rdy", True)
poll(vFlagA, sF)
stamp()
leak("t_qk", True)


def qk_reads(i):
    o = (i >> 1) * 128
    e("ds_read_b128 %s, v%d offset:%d" % (vr(vQ + 4 * i, 4), vAQ + (i & 1), o))
    for j in range(3):
        e("ds_read_b128 %s, v%d offset:%d" % (vr(vK + 12 * (i & 3) + 4 * j, 4), vAK + 2 * j + (i & 1), o))


for i in range(3):
    qk_reads(i)
for k in range(6):
    e("s_waitcnt lgkmcnt(%d)" % (4 * min(2, 5 - k)))
    for j in range(3):
        c = "0" if (k == 0 and j == 2) else vr(vS + 4 * j, 4)
        e("v_mfma_f32_16x16x32_bf16 %s, %s, %s, %s" % (vr(vS + 4 * j, 4), vr(vK + 12 * (k & 3) + 4 * j, 4), vr(vQ + 4 * k, 4), c))
    if k + 3 < 6:
        qk_reads(k + 3)
for j in range(3):
    for m in range(4):
        e("v_add_u32 v%d, s%d, v%d" % (vAV + 4 * j + m, sB0 + j, vU + m))
e("s_add_u32 s%d, s%d, 1" % (sNeed, sNeed))
for i in range(4):
    e("v_cndmask_b32 v%d, v%d, v%d, s[%d:%d]" % (vX + i, vS + i, vS + 8 + i, sM + 2 * i, sM + 2 * i + 1))
xs = [vX + i for i in range(4)] + [vS + 4 + i for i in range(4)]
ys = [vX + i for i in range(8)]
if opts["mimic"]:
    for p in range(4):
        e("v_cvt_pk_bf16_f32 v%d, v%d, v%d" % (vT + p, xs[2 * p], xs[2 * p + 1]))
    for p in range(4):
        e("v_lshlrev_b32 v%d, 16, v%d" % (ys[2 * p], vT + p))
        e("v_and_b32 v%d, s%d, v%d" % (ys[2 * p + 1], sHi, vT + p))
    for p in range(8):
        e("v_mul_f32 v%d, s%d, v%d" % (ys[p], sScale, ys[p]))
    for p in range(4):
        e("v_cvt_pk_bf16_f32 v%d, v%d, v%d" % (vT + p, ys[2 * p], ys[2 * p + 1]))
    for p in range(4):
        e("v_lshlrev_b32 v%d, 16, v%d" % (ys[2 * p], vT + p))
        e("v_and_b32 v%d, s%d, v%d" % (ys[2 * p + 1], sHi, vT + p))
else:
    ys = xs
m, m2 = vT + 4, vT + 5
e("v_max3_f32 v%d, v%d, v%d, v%d" % (m, ys[0], ys[1], ys[2]))
e("v_max3_f32 v%d, v%d, v%d, v%d" % (m2, ys[3], ys[4], ys[5]))
e("v_max3_f32 v%d, v%d, v%d, v%d" % (m, m, ys[6], ys[7]))
e("v_max_f32 v%d, v%d, v%d" % (m, m, m2))
e("v_mov_b32 v%d, v%d" % (m2, m))
e("s_nop 1")
e("v_permlane16_swap_b32 v%d, v%d" % (m, m2))
e("s_nop 0")
e("v_max_f32 v%d, v%d, v%d" % (m, m, m2))
e("v_mov_b32 v%d, v%d" % (m2, m))
e("s_nop 1")
e("v_permlane32_swap_b32 v%d, v%d" % (m, m2))
e("s_nop 0")
e("v_max_f32 v%d, v%d, v%d" % (m, m, m2))
e("v_mul_f32 v%d, s%d, v%d" % (m, sLog2e, m))
es = [vX + i for i in range(8)]
for p in range(8):
    e("v_fma_f32 v%d, v%d, s%d, -v%d" % (es[p], ys[p], sLog2e, m))
for p in range(8):
    e("v_exp_f32 v%d, v%d" % (es[p], es[p]))
sm, sm2 = vT + 6, vT + 7
e("v_add_f32 v%d, v%d, v%d" % (sm, es[0], es[1]))
e("v_add_f32 v%d, v%d, v%d" % (sm2, es[2], es[3]))
e("v_add_f32 v%d, v%d, v%d" % (sm, sm, es[4]))
e("v_add_f32 v%d, v%d, v%d" % (sm2, sm2, es[5]))
e("v_add_f32 v%d, v%d, v%d" % (sm, sm, es[6]))
e("v_add_f32 v%d, v%d, v%d" % (sm2, sm2, es[7]))
e("v_add_f32 v%d, v%d, v%d" % (sm, sm, sm2))
e("v_mov_b32 v%d, v%d" % (sm2, sm))
e("s_nop 1")
e("v_permlane16_swap_b32 v%d, v%d" % (sm, sm2))
e("s_nop 0")
e("v_add_f32 v%d, v%d, v%d" % (sm, sm, sm2))
e("v_mov_b32 v%d, v%d" % (sm2, sm))
e("s_nop 1")
e("v_permlane32_swap_b32 v%d, v%d" % (sm, sm2))
e("s_nop 0")
e("v_add_f32 v%d, v%d, v%d" % (sm, sm, sm2))
e("v_rcp_f32 v%d, v%d" % (sm, sm))
e("s_nop 0")
for p in range(8):
    e("v_mul_f32 v%d, v%d, v%d" % (es[p], es[p], sm))
e("v_cvt_pk_bf16_f32 v%d, v%d, v%d" % (vT, es[0], es[1]))
e("v_cvt_pk_bf16_f32 v%d, v%d, v%d" % (vT + 1, es[2], es[3]))
e("v_cvt_pk_bf16_f32 v%d, v%d, v%d" % (vP + 2, es[4], es[5]))
e("v_cvt_pk_bf16_f32 v%d, v%d, v%d" % (vP + 3, es[6], es[7]))
e("v_and_b32 v%d, v%d, v%d" % (vP, vT, vPM + 2))
e("v_and_b32 v%d, v%d, v%d" % (vP + 1, vT + 1, vPM + 3))
e("v_and_b32 v%d, v%d, v%d" % (vPb, vT, vPM))
e("v_and_b32 v%d, v%d, v%d" % (vPb + 1, vT + 1, vPM + 1))
stamp()


def store6(vbase, s_off, js=range(6)):
    for j in js:
        o = " offset:%d" % ((j % 3) * 1024) if j % 3 else ""
        e("buffer_store_dwordx4 %s, v%d, %s, s%d offen%s%s" % (vr(vbase + 4 * j, 4), vOff + j, srd(sO), s_off, o, ST))


def held_off(h):
    e("s_sub_u32 s%d, s%d, %d" % (sT0, sI, NC * (3 - h)))
    e("s_mul_i32 s%d, s%d, s%d" % (sT0, sT0, sStepB))
    e("s_add_i32 s%d, s%d, s%d" % (sT0, sT0, sQ0))


EARLY = opts["early"]
if EARLY:
    e("s_cmp_lt_u32 s%d, 12" % sI)
    e("s_cbranch_scc1 L_noearly")
    e("s_mov_b32 s%d, s%d" % (sT5, sNeed))
    e("s_mov_b32 s%d, %d" % (sNeed, opts["rel"]))
    poll(vFlagA, sFV, FLAGV - FLAG)
    e("s_mov_b32 s%d, s%d" % (sNeed, sT5))
    for h in range(EARLY):
        held_off(h)
        store6(vHold + 24 * h, sT0)
    e("L_noearly:")
poll(vFlagA, sFV, FLAGV - FLAG)


def va_reads(t):
    for j in range(2):
        e("ds_read_b64_tr_b16 %s, v%d offset:%d" % (vr(vVa + 4 * t + 2 * j, 2), vAV + 4 * j + (t & 3), (t >> 2) * 128))


for t in range(6):
    va_reads(t)
for t in range(12):
    e("s_waitcnt lgkmcnt(%d)" % (2 * min(5, 11 - t)))
    e("v_mfma_f32_16x16x32_bf16 %s, %s, %s, 0" % (vr(vAcc + 4 * t, 4), vr(vVa + 4 * t, 4), vr(vP, 4)))
    if t + 6 < 12:
        va_reads(t + 6)
e("s_add_u32 s%d, s%d, 1" % (sNeed, sNeed))
stamp()
poll(vFlagA, sFV, FLAGV - FLAG)
stamp()
for t in range(12):
    e("ds_read_b64_tr_b16 %s, v%d offset:%d" % (vr(vVb + 2 * t, 2), vAV + 8 + (t & 3), (t >> 2) * 128))


def o_out(t):
    e("v_cvt_pk_bf16_f32 v%d, v%d, v%d" % (vOp + 2 * t, vAcc + 4 * t, vAcc + 4 * t + 1))
    e("v_cvt_pk_bf16_f32 v%d, v%d, v%d" % (vOp + 2 * t + 1, vAcc + 4 * t + 2, vAcc + 4 * t + 3))
    e("ds_write_b64 v%d, %s offset:%d" % (vAW + (t & 3), vr(vOp + 2 * t, 2), (t >> 2) * 128))


LAG = 4
for t in range(12):
    nwr = max(0, t - LAG)
    e("s_waitcnt lgkmcnt(%d)" % min(15, 11 - t + nwr))
    e("v_mfma_f32_16x16x16_bf16 %s, %s, %s, %s" % (vr(vAcc + 4 * t, 4), vr(vVb + 2 * t, 2), vr(vPb, 2), vr(vAcc + 4 * t, 4)))
    if t >= LAG:
        o_out(t - LAG)
for t in range(12 - LAG, 12):
    if t == 11:
        e("s_nop 0")
    o_out(t)
e("s_add_u32 s%d, s%d, 1" % (sT1, sI))
e("v_mov_b32 v%d, s%d" % (vCnt, sT1))
e("s_cmp_ge_u32 s%d, 12" % sI)
e("s_cbranch_scc1 L_last")


def readback(vbase):
    e("s_waitcnt lgkmcnt(0)")
    for j in range(6):
        e("ds_read_b128 %s, v%d offset:%d" % (vr(vbase + 4 * j, 4), vAR, j * 1024))


e("s_cmp_ge_u32 s%d, 8" % sI)
e("s_cbranch_scc1 L_rb2")
e("s_cmp_ge_u32 s%d, 4" % sI)
e("s_cbranch_scc1 L_rb1")
readback(vHold)
e("s_branch L_rbdone")
e("L_rb1:")
readback(vHold + 24)
e("s_branch L_rbdone")
e("L_rb2:")
readback(vHold + 48)
e("L_rbdone:")
e("s_add_u32 s%d, s%d, %d" % (sI, sI, NC))
e("s_waitcnt lgkmcnt(0)")
e("ds_write_b32 v%d, v%d" % (vDoneA, vCnt))
stamp()
leak("t_st", True)
e("s_branch L_task")
e("L_last:")
readback(vRbLast)
for h in range(EARLY, 3):
    held_off(h)
    store6(vHold + 24 * h, sT0)
held_off(3)
e("s_waitcnt lgkmcnt(0)")
store6(vRbLast, sT0)
stamp()
e("L_fin:")
if opts["stamp"]:
    e("s_waitcnt vmcnt(0)")
    e("s_mov_b32 s%d, 61" % sStampIdx)
    stamp()
    e("s_getreg_b32 s62, hwreg(HW_REG_XCC_ID)")
    e("v_writelane_b32 v%d, s62, 62" % vStamp)
    e("s_getreg_b32 s62, hwreg(HW_REG_HW_ID)")
    e("v_writelane_b32 v%d, s62, 63" % vStamp)
    e("s_load_dwordx2 s[%d:%d], s[0:1], 40" % (sQ, sQ + 1))
    e("s_mul_i32 s62, s2, %d" % ((NC + 1) * 256))
    e("v_lshlrev_b32 v0, 2, v0")
    e("s_waitcnt lgkmcnt(0)")
    e("buffer_store_dword v%d, v0, %s, s62 offen" % (vStamp, srd(sQ)))
if opts["spin"]:
    if opts["leak"]:
        if opts["leak"] == "fin":
            e("s_waitcnt vmcnt(0)")
            leak("fin")
        e("s_sub_u32 s62, s64, s60")
        e("s_lshl_b32 s62, s62, 2")
        e("s_add_u32 s%d, s62, %d" % (sLeak, opts["spin"]))
    else:
        e("s_mov_b32 s%d, %d" % (sLeak, opts["spin"]))
    e("L_spin:")
    e("s_sleep 4")
    e("s_memrealtime s[62:63]")
    e("s_waitcnt lgkmcnt(0)")
    e("s_sub_u32 s62, s62, s60")
    e("s_cmp_lt_u32 s62, s%d" % sLeak)
    e("s_cbranch_scc1 L_spin")
e("L_end:")
e("s_endpgm")

L = [x for x in L if x is not None]

hdr = """; Sliding-window (w=32) attention, B=1 H=32 S=2048 D=192, bf16.  Generated by gen3.py (hand-written generator).
; kernarg: q, k, v, out, debug, ws
; one workgroup per 256 query rows: wave 0 streams 16-row Q/K/V blocks into LDS rings by LDS-DMA,
; waves 1..%d each take every %d-th 16-query task; hand-off through LDS counters.
; @launch grid=(256,1,1) block=(%d,1,1) lds=%d
.amdgcn_target "amdgcn-amd-amdhsa--gfx950"
.text
.globl %s_kernel
.p2align 8
.type %s_kernel,@function
%s_kernel:
""" % (NC, NC, 64 * (NC + 1), LDS, NAME, NAME, NAME)

ftr = """
.section .rodata,"a"
.p2align 6
.amdhsa_kernel %s_kernel
  .amdhsa_next_free_vgpr %d
  .amdhsa_next_free_sgpr 76
  .amdhsa_accum_offset %d
  .amdhsa_group_segment_fixed_size 0
  .amdhsa_kernarg_size 48
  .amdhsa_user_sgpr_count 2
  .amdhsa_user_sgpr_kernarg_segment_ptr 1
  .amdhsa_system_sgpr_workgroup_id_x 1
.end_amdhsa_kernel
""" % (NAME, NVGPR, NVGPR)

open(sys.argv[1], "w").write(hdr + "\n".join(L) + ftr)
```

```python
import sys
import struct

NAME = "standalone__sliding_local_fixed_window__prompt"

opts = dict(
    ld="nt",
    st="",
    altdir=1,
    xcdmap=1,
    mimic=1,
    vm=18,
    half=1,
    vmodd=0,
    early=0,
    rel=15,
    pre=1,
    stall=0,
    skew=0,
    unr=3,
    open=0,
    grow=6,
    vmax=54,
    stvm=63,
    tail=3,
    nc=4,
    sleep=1,
    stamp=0,
    spin=0,
    leak="",
    prio=3,
)
for a in sys.argv[2:]:
    k, v = a.split("=")
    assert k in opts, k
    opts[k] = v if isinstance(opts[k], str) else int(v)

LD = (" " + opts["ld"].replace("+", " ")) if opts["ld"] else ""
ST = (" " + opts["st"].replace("+", " ")) if opts["st"] else ""
NC = opts["nc"]
assert NC == 4

BLK = 6144
KRING = 0
VRING = 8 * BLK
QRING = 16 * BLK
FLAG = 24 * BLK
DONE = FLAG + 256
LDS = DONE + 256 * NC
BIAS = 16
NBYTES = 32 * 2048 * 384

L = []


def e(s=""):
    L.append("    " + s if s and not s.endswith(":") else s)


def f32hex(x):
    return "0x%08x" % struct.unpack("<I", struct.pack("<f", x))[0]


sQ, sK, sV, sO = 12, 16, 20, 24
sWave = 28
sStepB = 29
sKV0 = 30
sQ0 = 31
sMinOff = 32
sChunk = 33
sI = 34
sF = 35
sM = 36
sScale = 44
sLog2e = 45
sT0, sT1, sT2, sT3, sT4, sT5 = 46, 47, 48, 49, 50, 51
sHi = 52
sNeed = 53
sQo, sKo, sVo = 54, 55, 56
sFV = 57
sStampIdx = 58
sLeak = 59

vOff = 1
vLane = 7
vA0, vA1 = 8, 9
vU = 10
vW = 14
vR = 18
vPM = 19
vFlagA = 23
vDoneA = 24
vF = 25
vCnt = 26
vCntV = 27
vAQ = 28
vAK = 30
vAV = 28
vAW = 40
vAR = 44
vPb = 46
vP = 48
vQ = 52
vK = 76
vAcc = 124
vS = 124
vX = 136
vT = 144
vHold = 172
vVa = vK
vVb = vQ
vOp = vK
vRbLast = vK + 24
vStamp = 244
NVGPR = 248
sInit0, sInit1 = 66, 67


def srd(s):
    return "s[%d:%d]" % (s, s + 3)


def vr(a, n):
    return "v[%d:%d]" % (a, a + n - 1) if n > 1 else "v%d" % a


nstamp = [0]


def stamp(always=False):
    if opts["stamp"] == 1 or (opts["stamp"] and always):
        e("s_memrealtime s[62:63]")
        e("s_mov_b32 m0, s%d" % sStampIdx)
        e("s_waitcnt lgkmcnt(0)")
        e("v_writelane_b32 v%d, s62, m0" % vStamp)
        e("s_add_u32 s%d, s%d, 1" % (sStampIdx, sStampIdx))


def leak(name, first_only=False):
    if opts["leak"] != name:
        return
    if first_only:
        e("s_cmp_lg_u32 s64, s60")
        e("s_cbranch_scc1 L_leak_skip")
    e("s_waitcnt lgkmcnt(0)")
    e("s_memrealtime s[64:65]")
    e("s_waitcnt lgkmcnt(0)")
    if first_only:
        e("L_leak_skip:")


def g_of(vdst, vrow, vtmp):
    e("v_lshrrev_b32 v%d, 1, v%d" % (vtmp, vrow))
    e("v_xor_b32 v%d, v%d, v%d" % (vtmp, vtmp, vrow))
    e("v_and_b32 v%d, 4, v%d" % (vtmp, vtmp))
    e("v_and_or_b32 v%d, v%d, 2, v%d" % (vtmp, vrow, vtmp))
    e("v_bfe_u32 v%d, v%d, 3, 1" % (vdst, vrow))
    e("v_or_b32 v%d, v%d, v%d" % (vdst, vdst, vtmp))
    e("v_lshlrev_b32 v%d, 4, v%d" % (vdst, vdst))


def dma_block(s_srd, s_off, s_lds, ring, mid=None):
    setm0 = (lambda x: e("s_mov_b32 m0, %d" % x)) if s_lds is None else (lambda x: e("s_add_u32 m0, s%d, %d" % (s_lds, x)))
    setm0(ring)
    e("s_nop 0")
    for j in range(6):
        if j == 3:
            setm0(ring + 3072)
            if mid:
                mid()
            else:
                e("s_nop 0")
        o = " offset:%d" % ((j % 3) * 1024) if j % 3 else ""
        e("buffer_load_dwordx4 v%d, %s, s%d offen%s%s lds" % (vOff + j, srd(s_srd), s_off, o, LD))


def pub_kinds(kinds):
    inc = kinds.count("K") + (kinds.count("V") << 16)
    if inc:
        e("v_add_u32 v%d, %s, v%d" % (vCnt, hex(inc), vCnt))
        e("ds_write_b32 v%d, v%d" % (vFlagA, vCnt))


def publish(n, kind):
    e("s_waitcnt vmcnt(%d)" % n)
    pub_kinds([kind])


npoll = [0]
sPrev, sStall, sRel, sX = 71, 72, 73, 74
sRet = 76
sSub = 78


def poll(vaddr, field=None):
    n = npoll[0]
    npoll[0] += 1

    def test():
        if field == "K":
            e("s_and_b32 s%d, s%d, 0xffff" % (sX, sF))
        elif field == "V":
            e("s_lshr_b32 s%d, s%d, 16" % (sX, sF))
        e("s_cmp_ge_u32 s%d, s%d" % (sX if field else sF, sNeed))
        e("s_cbranch_scc1 L_go%d" % n)
    if field:
        test()
    e("L_poll%d:" % n)
    e("ds_read_b32 v%d, v%d" % (vF, vaddr))
    e("s_waitcnt lgkmcnt(0)")
    e("v_readfirstlane_b32 s%d, v%d" % (sF, vF))
    e("s_nop 0")
    test()
    if field and opts["stall"]:
        e("s_add_u32 s%d, s%d, 1" % (sStall, sStall))
        e("s_cmp_eq_u32 s%d, s%d" % (sF, sPrev))
        e("s_cselect_b32 s%d, s%d, 0" % (sStall, sStall))
        e("s_mov_b32 s%d, s%d" % (sPrev, sF))
        e("s_cmp_lt_u32 s%d, s%d" % (sStall, sRel))
        e("s_cbranch_scc1 L_nr%d" % n)
        e("s_call_b64 s[%d:%d], L_release" % (sRet, sRet + 1))
        e("L_nr%d:" % n)
    if opts["sleep"]:
        e("s_sleep %d" % opts["sleep"])
    e("s_branch L_poll%d" % n)
    e("L_go%d:" % n)


e("s_cmp_ge_u32 s2, 256")
e("s_cbranch_scc1 L_end")
if opts["spin"] or opts["stamp"]:
    e("s_memrealtime s[60:61]")
if opts["skew"]:
    e("s_memrealtime s[64:65]")
    e("s_getreg_b32 s62, hwreg(HW_REG_XCC_ID)")
    e("s_and_b32 s62, s62, 7")
    e("s_lshl_b32 s62, s62, 2")
    e("s_lshr_b32 s62, 0x35780100, s62")
    e("s_and_b32 s62, s62, 15")
    e("s_mul_i32 s59, s62, %d" % opts["skew"])
    e("L_skew:")
    e("s_memrealtime s[62:63]")
    e("s_waitcnt lgkmcnt(0)")
    e("s_sub_u32 s62, s62, s64")
    e("s_cmp_lt_u32 s62, s59")
    e("s_cbranch_scc1 L_skew")
e("s_load_dwordx2 s[%d:%d], s[0:1], 8" % (sK, sK + 1))
e("s_load_dwordx2 s[%d:%d], s[0:1], 16" % (sV, sV + 1))
e("s_load_dwordx2 s[%d:%d], s[0:1], 0" % (sQ, sQ + 1))
e("s_load_dwordx2 s[%d:%d], s[0:1], 24" % (sO, sO + 1))


def gfun(r):
    return ((((r >> 2) ^ (r >> 3)) & 1) << 2) | (r & 2) | ((r >> 3) & 1)


e("v_and_b32 v%d, 63, v0" % vLane)
e("v_readfirstlane_b32 s%d, v0" % sWave)
e("v_lshrrev_b32 v65, 1, v%d" % vLane)
e("v_and_b32 v65, 28, v65")
e("s_movk_i32 s%d, 0x50" % sT4)
e("v_mov_b32 v67, 3072")
for j in range(3):
    tab = sum(gfun((8 * j + l) // 3) << (4 * l) for l in range(8))
    assert all(gfun((8 * (j + 3) + l) // 3) == gfun((8 * j + l) // 3) ^ 5 for l in range(8))
    e("s_mov_b32 s%d, 0x%x" % (sT3, tab))
    e("v_bfe_u32 v66, s%d, v65, 3" % sT3)
    e("v_xor_b32 v66, v66, v%d" % vLane)
    e("v_lshlrev_b32 v%d, 4, v66" % (vOff + j))
    e("v_xad_u32 v%d, v%d, s%d, v67" % (vOff + 3 + j, vOff + j, sT4))
e("s_mov_b32 s%d, %d" % (sK + 2, NBYTES))
e("s_mov_b32 s%d, 0x20000" % (sK + 3))
for s in (sQ, sV, sO):
    e("s_mov_b32 s%d, s%d" % (s + 2, sK + 2))
    e("s_mov_b32 s%d, s%d" % (s + 3, sK + 3))
if opts["xcdmap"]:
    e("s_and_b32 s%d, s2, 7" % sT1)
    e("s_lshr_b32 s%d, s2, 6" % sT2)
    e("s_lshl3_add_u32 s%d, s%d, s%d" % (sT1, sT2, sT1))
    e("s_bfe_u32 s%d, s2, 0x30003" % sChunk)
else:
    e("s_lshr_b32 s%d, s2, 3" % sT1)
    e("s_and_b32 s%d, s2, 7" % sChunk)
e("s_mul_i32 s%d, s%d, %d" % (sMinOff, sT1, 2048 * 384))
e("s_lshl_b32 s%d, s%d, 4" % (sT2, sChunk))
if opts["altdir"]:
    e("s_bitcmp1_b32 s%d, 0" % sChunk)
    e("s_cselect_b32 s%d, -1, 1" % sStepB)
    e("s_cselect_b32 s%d, 15, -2" % sKV0)
    e("s_cselect_b32 s%d, 15, 0" % sQ0)
else:
    e("s_mov_b32 s%d, 1" % sStepB)
    e("s_mov_b32 s%d, -2" % sKV0)
    e("s_mov_b32 s%d, 0" % sQ0)
e("s_add_i32 s%d, s%d, s%d" % (sKV0, sKV0, sT2))
e("s_add_i32 s%d, s%d, s%d" % (sQ0, sQ0, sT2))
e("s_mulk_i32 s%d, %d" % (sStepB, BLK))
e("s_mulk_i32 s%d, %d" % (sKV0, BLK))
e("s_mulk_i32 s%d, %d" % (sQ0, BLK))
e("s_add_i32 s%d, s%d, s%d" % (sKV0, sKV0, sMinOff))
e("s_add_i32 s%d, s%d, s%d" % (sQ0, sQ0, sMinOff))
e("s_lshr_b32 s%d, s%d, 6" % (sWave, sWave))


def flag_init():
    e("v_lshlrev_b32 v%d, 2, v0" % vDoneA)
    e("v_add_u32 v%d, %d, v%d" % (vDoneA, FLAG, vDoneA))
    e("v_mov_b32 v%d, 0" % vF)
    e("ds_write_b32 v%d, v%d" % (vDoneA, vF))


if opts["stamp"]:
    e("s_waitcnt lgkmcnt(0)")
    e("v_mov_b32 v%d, 0" % vStamp)
    e("v_writelane_b32 v%d, s60, 0" % vStamp)
    e("s_mov_b32 s%d, 1" % sStampIdx)
    stamp()
if opts["leak"]:
    e("s_waitcnt lgkmcnt(0)")
    e("s_mov_b32 s64, s60")
leak("karg")
e("s_cmp_lg_u32 s%d, 0" % sWave)
e("s_cbranch_scc1 L_compute")

if opts["prio"]:
    e("s_setprio %d" % opts["prio"])
e("s_max_i32 s%d, s%d, s%d" % (sT0, sKV0, sMinOff))
e("s_add_i32 s%d, s%d, s%d" % (sVo, sKV0, sStepB))
e("s_max_i32 s%d, s%d, s%d" % (sT1, sVo, sMinOff))
e("s_waitcnt lgkmcnt(0)")
dma_block(sK, sT0, None, KRING)
dma_block(sK, sT1, None, KRING + BLK)
dma_block(sV, sT0, None, VRING)
leak("iss3")
if opts["leak"] == "first":
    e("s_waitcnt vmcnt(12)")
leak("first")
e("s_add_i32 s%d, s%d, s%d" % (sKo, sVo, sStepB))
e("s_mov_b32 s%d, s%d" % (sQo, sQ0))
PRE = opts["pre"]
for g in range(PRE):
    dma_block(sQ, sQo, None, QRING + g * BLK)
    e("s_add_i32 s%d, s%d, s%d" % (sQo, sQo, sStepB))
    dma_block(sK, sKo, None, KRING + (g + 2) * BLK)
    e("s_add_i32 s%d, s%d, s%d" % (sKo, sKo, sStepB))
    dma_block(sV, sT1 if g == 0 else sVo, None, VRING + (g + 1) * BLK)
    e("s_add_i32 s%d, s%d, s%d" % (sVo, sVo, sStepB))
flag_init()
e("v_mov_b32 v%d, v%d" % (vFlagA, vDoneA))
e("s_mov_b32 s%d, %d" % (sI, PRE))
E = opts["tail"]
NG = 16 - max(E, opts["unr"])
stream = ["K", "K", "V"] + ["Q", "K", "V"] * (16 - E) + ["Q", "K"] * E + ["V"] * (E + 1)


def free_check(tag):
    e("s_sub_u32 s%d, s%d, 6" % (sT0, sI))
    e("s_add_u32 s%d, s%d, 1" % (sNeed, sT0))
    e("s_and_b32 s%d, s%d, %d" % (sT0, sT0, NC - 1))
    e("s_lshl_b32 s%d, s%d, 8" % (sT0, sT0))
    e("s_add_u32 s%d, s%d, %d" % (sT0, sT0, DONE))
    e("v_mov_b32 v%d, s%d" % (vDoneA, sT0))
    poll(vDoneA)


def emit_loader(VM, tag):
    assert VM % 3 == 0 and VM + 6 <= 63
    atmid = VM % 6 == 3
    D = (VM + 3) // 6 if atmid else VM // 6
    kind = lambda n: "QKV"[n % 3]

    def block(s_srd, s_off, s_lds, ring, k, post):
        if atmid:
            dma_block(s_srd, s_off, s_lds, ring, lambda: publish(VM, k))
            post()
            e("s_waitcnt vmcnt(%d)" % VM)
        else:
            dma_block(s_srd, s_off, s_lds, ring, (lambda: e("s_waitcnt vmcnt(%d)" % VM)) if opts["half"] else None)
            post()
            publish(VM, k)

    nf = 3 + 3 * PRE - D
    mk = min(m for m in range(-9, 9) if 1 + 3 * m >= nf)
    mv = min(m for m in range(-9, 9) if 2 + 3 * m >= nf)
    e("v_mov_b32 v%d, %s" % (vCnt, hex(((BIAS + mv) << 16) + BIAS + mk - 1)))
    e("s_waitcnt lgkmcnt(0)")
    e("s_barrier")
    e("L_ldloop%s:" % tag)
    e("s_cmp_lt_u32 s%d, 6" % sI)
    e("s_cbranch_scc1 L_nofree%s" % tag)
    free_check(tag)
    e("L_nofree%s:" % tag)
    stamp()
    e("s_and_b32 s%d, s%d, 7" % (sT0, sI))
    e("s_mul_i32 s%d, s%d, %d" % (sT0, sT0, BLK))

    def p1():
        e("s_add_u32 s%d, s%d, 2" % (sT0, sI))
        e("s_and_b32 s%d, s%d, 7" % (sT0, sT0))
        e("s_mul_i32 s%d, s%d, %d" % (sT0, sT0, BLK))
        e("s_add_i32 s%d, s%d, s%d" % (sQo, sQo, sStepB))
    block(sQ, sQo, sT0, QRING, kind(3 - D), p1)

    def p2():
        e("s_add_u32 s%d, s%d, 1" % (sI, sI))
        e("s_and_b32 s%d, s%d, 7" % (sT0, sI))
        e("s_mul_i32 s%d, s%d, %d" % (sT0, sT0, BLK))
        e("s_max_i32 s%d, s%d, s%d" % (sT1, sVo, sMinOff))
        e("s_add_i32 s%d, s%d, s%d" % (sVo, sVo, sStepB))
        e("s_add_i32 s%d, s%d, s%d" % (sKo, sKo, sStepB))
    block(sK, sKo, sT0, KRING, kind(4 - D), p2)
    block(sV, sT1, sT0, VRING, kind(5 - D), lambda: None)
    e("s_cmp_lt_u32 s%d, %d" % (sI, NG))
    e("s_cbranch_scc1 L_ldloop%s" % tag)
    n = 3 + 3 * NG
    pub = [n - D]
    nq, nk, nv = NG, NG + 2, NG + 1

    def throttle(issued):
        over = issued - 6 * (52 - opts["open"])
        w = VM if over <= 0 else min(opts["vmax"], VM + (over * opts["grow"] // 18) * 3)
        landed = (issued - w) // 6
        if landed > pub[0]:
            e("s_waitcnt vmcnt(%d)" % w)
            pub_kinds([stream[b] for b in range(pub[0], landed)])
            pub[0] = landed
        else:
            e("s_waitcnt vmcnt(%d)" % w)

    while n < 52:
        kd = stream[n]
        if kd == "Q":
            vidx = [i for i, k in enumerate(stream) if k == "V"][nq - 4]
            assert vidx < pub[0], (vidx, pub[0])
            free_check(tag)
            stamp()
            e("s_add_u32 s%d, s%d, 1" % (sI, sI))
            args = (sQ, sQo, QRING + (nq & 7) * BLK)
            nq += 1
        elif kd == "K":
            args = (sK, sKo, KRING + (nk & 7) * BLK)
            nk += 1
        else:
            args = (sV, sVo, VRING + (nv & 7) * BLK)
            nv += 1
        dma_block(args[0], args[1], None, args[2], lambda: throttle(6 * n + 3))
        e("s_add_i32 s%d, s%d, s%d" % (args[1], args[1], sStepB))
        if n == 51:
            stamp()
            leak("ldiss")
        else:
            throttle(6 * n + 6)
        n += 1
    for b in range(pub[0], 52):
        publish(6 * (51 - b), stream[b])
    stamp()
    leak("lddone")
    e("s_branch L_fin")


if opts["vmodd"]:
    e("s_getreg_b32 s%d, hwreg(HW_REG_XCC_ID)" % sT0)
    e("s_bitcmp1_b32 s%d, 0" % sT0)
    e("s_cbranch_scc1 L_loader_odd")
    emit_loader(opts["vm"], "e")
    e("L_loader_odd:")
    emit_loader(opts["vmodd"], "o")
else:
    emit_loader(opts["vm"], "e")

e("L_compute:")
flag_init()
e("s_waitcnt lgkmcnt(0)")
e("s_barrier")
e("s_sub_u32 s%d, s%d, 1" % (sI, sWave))
e("s_mov_b32 s%d, 0" % sF)
e("s_mov_b32 s%d, 0" % sPrev)
e("s_mov_b32 s%d, 0" % sStall)
e("s_mov_b32 s%d, -1" % sRel)
e("v_mov_b32 v%d, %d" % (vFlagA, FLAG))
e("v_and_b32 v66, 15, v%d" % vLane)
e("v_lshrrev_b32 v67, 4, v%d" % vLane)
g_of(70, 66, 71)
e("v_mul_u32_u24 v68, 384, v66")
e("v_lshlrev_b32 v69, 4, v67")
e("v_xor_b32 v69, v69, v70")
e("v_add_u32 v%d, v68, v69" % vA0)
e("v_xor_b32 v%d, 64, v%d" % (vA1, vA0))
e("v_lshrrev_b32 v69, 1, v67")
e("v_lshlrev_b32 v69, 4, v69")
e("v_xor_b32 v69, v69, v70")
e("v_and_b32 v71, 1, v67")
e("v_lshl_add_u32 v69, v71, 3, v69")
e("v_add_u32 v%d, v68, v69" % vW)
for m in range(1, 4):
    e("v_xor_b32 v%d, %d, v%d" % (vW + m, 32 * m, vW))
e("v_lshlrev_b32 v69, 2, v67")
for i in range(4):
    e("v_add_u32 v71, %d, v69" % i)
    e("v_cmp_le_u32 s[%d:%d], v71, v66" % (sM + 2 * i, sM + 2 * i + 1))
e("s_ashr_i32 s%d, s%d, 31" % (sT0, sStepB))
e("s_mov_b32 s%d, s%d" % (sT1, sT0))
e("s_nop 1")
for i in range(4):
    e("s_xor_b64 s[%d:%d], s[%d:%d], s[%d:%d]" % (sM + 2 * i, sM + 2 * i + 1, sM + 2 * i, sM + 2 * i + 1, sT0, sT1))
e("s_mov_b32 s%d, 0xffff0000" % sHi)
e("v_mov_b32 v72, 0xffff")
e("v_mov_b32 v73, s%d" % sHi)
for k in range(2):
    e("v_cndmask_b32 v74, 0, v72, s[%d:%d]" % (sM + 4 * k, sM + 4 * k + 1))
    e("v_cndmask_b32 v75, 0, v73, s[%d:%d]" % (sM + 4 * k + 2, sM + 4 * k + 3))
    e("v_or_b32 v%d, v74, v75" % (vPM + k))
    e("v_not_b32 v%d, v%d" % (vPM + 2 + k, vPM + k))
e("v_lshrrev_b32 v69, 2, v%d" % vLane)
g_of(70, 69, 71)
e("v_mul_u32_u24 v68, 384, v69")
e("v_bfe_u32 v71, v%d, 1, 1" % vLane)
e("v_lshlrev_b32 v71, 4, v71")
e("v_xor_b32 v70, v70, v71")
e("v_and_b32 v71, 1, v%d" % vLane)
e("v_lshl_add_u32 v70, v71, 3, v70")
e("v_add_u32 v70, v68, v70")
e("v_add_u32 v%d, %d, v70" % (vU, VRING))
for m in range(1, 4):
    e("v_xor_b32 v%d, %d, v%d" % (vU + m, 32 * m, vU))
e("v_lshlrev_b32 v%d, 4, v%d" % (vR, vLane))
e("s_cmp_eq_u32 s%d, 0" % sChunk)
e("s_cselect_b32 s%d, 0xff800000, 0" % sT2)
e("s_cmp_lt_u32 s%d, 2" % sI)
e("s_cselect_b32 s%d, s%d, 0" % (sInit0, sT2))
e("s_cmp_eq_u32 s%d, 0" % sI)
e("s_cselect_b32 s%d, s%d, 0" % (sInit1, sT2))
e("s_mov_b32 s%d, %s" % (sScale, f32hex(192 ** -0.5)))
if opts["mimic"]:
    e("s_mov_b32 s%d, %s" % (sLog2e, f32hex(1.4426950408889634)))
else:
    e("s_mov_b32 s%d, %s" % (sLog2e, f32hex(1.4426950408889634 * 192 ** -0.5)))

sB0, sB1, sB2 = 68, 69, 70
e("L_task:")
e("s_and_b32 s%d, s%d, 7" % (sB0, sI))
e("s_mul_i32 s%d, s%d, %d" % (sB0, sB0, BLK))
e("s_add_u32 s%d, s%d, %d" % (sT1, sB0, QRING))
e("v_add_u32 v%d, s%d, v%d" % (vAQ, sT1, vA0))
e("v_add_u32 v%d, s%d, v%d" % (vAQ + 1, sT1, vA1))
for m in range(4):
    e("v_add_u32 v%d, s%d, v%d" % (vAW + m, sT1, vW + m))
e("v_add_u32 v%d, s%d, v%d" % (vAR, sT1, vR))
for j in range(3):
    if j:
        e("s_add_u32 s%d, s%d, %d" % (sB0 + j, sI, j))
        e("s_and_b32 s%d, s%d, 7" % (sB0 + j, sB0 + j))
        e("s_mul_i32 s%d, s%d, %d" % (sB0 + j, sB0 + j, BLK))
    e("v_add_u32 v%d, s%d, v%d" % (vAK + 2 * j, sB0 + j, vA0))
    e("v_add_u32 v%d, s%d, v%d" % (vAK + 2 * j + 1, sB0 + j, vA1))
for i in range(4):
    e("v_mov_b32 v%d, s%d" % (vS + i, sInit0))
    e("v_mov_b32 v%d, s%d" % (vS + 4 + i, sInit1))
e("s_mov_b32 s%d, 0" % sInit0)
e("s_mov_b32 s%d, 0" % sInit1)
e("s_add_u32 s%d, s%d, %d" % (sNeed, sI, 1 + BIAS))
leak("t_rdy", True)
poll(vFlagA, "K")
stamp()
leak("t_qk", True)


def qk_reads(i):
    o = (i >> 1) * 128
    e("ds_read_b128 %s, v%d offset:%d" % (vr(vQ + 4 * i, 4), vAQ + (i & 1), o))
    for j in range(3):
        e("ds_read_b128 %s, v%d offset:%d" % (vr(vK + 12 * (i & 3) + 4 * j, 4), vAK + 2 * j + (i & 1), o))


for i in range(3):
    qk_reads(i)
for k in range(6):
    e("s_waitcnt lgkmcnt(%d)" % (4 * min(2, 5 - k)))
    for j in range(3):
        c = "0" if (k == 0 and j == 2) else vr(vS + 4 * j, 4)
        e("v_mfma_f32_16x16x32_bf16 %s, %s, %s, %s" % (vr(vS + 4 * j, 4), vr(vK + 12 * (k & 3) + 4 * j, 4), vr(vQ + 4 * k, 4), c))
    if k + 3 < 6:
        qk_reads(k + 3)
for j in range(3):
    for m in range(4):
        e("v_add_u32 v%d, s%d, v%d" % (vAV + 4 * j + m, sB0 + j, vU + m))
e("s_add_u32 s%d, s%d, 1" % (sNeed, sNeed))
for i in range(4):
    e("v_cndmask_b32 v%d, v%d, v%d, s[%d:%d]" % (vX + i, vS + i, vS + 8 + i, sM + 2 * i, sM + 2 * i + 1))
xs = [vX + i for i in range(4)] + [vS + 4 + i for i in range(4)]
ys = [vX + i for i in range(8)]
if opts["mimic"]:
    for p in range(4):
        e("v_cvt_pk_bf16_f32 v%d, v%d, v%d" % (vT + p, xs[2 * p], xs[2 * p + 1]))
    for p in range(4):
        e("v_lshlrev_b32 v%d, 16, v%d" % (ys[2 * p], vT + p))
        e("v_and_b32 v%d, s%d, v%d" % (ys[2 * p + 1], sHi, vT + p))
    for p in range(8):
        e("v_mul_f32 v%d, s%d, v%d" % (ys[p], sScale, ys[p]))
    for p in range(4):
        e("v_cvt_pk_bf16_f32 v%d, v%d, v%d" % (vT + p, ys[2 * p], ys[2 * p + 1]))
    for p in range(4):
        e("v_lshlrev_b32 v%d, 16, v%d" % (ys[2 * p], vT + p))
        e("v_and_b32 v%d, s%d, v%d" % (ys[2 * p + 1], sHi, vT + p))
else:
    ys = xs
m, m2 = vT + 4, vT + 5
e("v_max3_f32 v%d, v%d, v%d, v%d" % (m, ys[0], ys[1], ys[2]))
e("v_max3_f32 v%d, v%d, v%d, v%d" % (m2, ys[3], ys[4], ys[5]))
e("v_max3_f32 v%d, v%d, v%d, v%d" % (m, m, ys[6], ys[7]))
e("v_max_f32 v%d, v%d, v%d" % (m, m, m2))
e("v_mov_b32 v%d, v%d" % (m2, m))
e("s_nop 1")
e("v_permlane16_swap_b32 v%d, v%d" % (m, m2))
e("s_nop 0")
e("v_max_f32 v%d, v%d, v%d" % (m, m, m2))
e("v_mov_b32 v%d, v%d" % (m2, m))
e("s_nop 1")
e("v_permlane32_swap_b32 v%d, v%d" % (m, m2))
e("s_nop 0")
e("v_max_f32 v%d, v%d, v%d" % (m, m, m2))
e("v_mul_f32 v%d, s%d, v%d" % (m, sLog2e, m))
es = [vX + i for i in range(8)]
for p in range(8):
    e("v_fma_f32 v%d, v%d, s%d, -v%d" % (es[p], ys[p], sLog2e, m))
for p in range(8):
    e("v_exp_f32 v%d, v%d" % (es[p], es[p]))
sm, sm2 = vT + 6, vT + 7
e("v_add_f32 v%d, v%d, v%d" % (sm, es[0], es[1]))
e("v_add_f32 v%d, v%d, v%d" % (sm2, es[2], es[3]))
e("v_add_f32 v%d, v%d, v%d" % (sm, sm, es[4]))
e("v_add_f32 v%d, v%d, v%d" % (sm2, sm2, es[5]))
e("v_add_f32 v%d, v%d, v%d" % (sm, sm, es[6]))
e("v_add_f32 v%d, v%d, v%d" % (sm2, sm2, es[7]))
e("v_add_f32 v%d, v%d, v%d" % (sm, sm, sm2))
e("v_mov_b32 v%d, v%d" % (sm2, sm))
e("s_nop 1")
e("v_permlane16_swap_b32 v%d, v%d" % (sm, sm2))
e("s_nop 0")
e("v_add_f32 v%d, v%d, v%d" % (sm, sm, sm2))
e("v_mov_b32 v%d, v%d" % (sm2, sm))
e("s_nop 1")
e("v_permlane32_swap_b32 v%d, v%d" % (sm, sm2))
e("s_nop 0")
e("v_add_f32 v%d, v%d, v%d" % (sm, sm, sm2))
e("v_rcp_f32 v%d, v%d" % (sm, sm))
e("s_nop 0")
for p in range(8):
    e("v_mul_f32 v%d, v%d, v%d" % (es[p], es[p], sm))
e("v_cvt_pk_bf16_f32 v%d, v%d, v%d" % (vT, es[0], es[1]))
e("v_cvt_pk_bf16_f32 v%d, v%d, v%d" % (vT + 1, es[2], es[3]))
e("v_cvt_pk_bf16_f32 v%d, v%d, v%d" % (vP + 2, es[4], es[5]))
e("v_cvt_pk_bf16_f32 v%d, v%d, v%d" % (vP + 3, es[6], es[7]))
e("v_and_b32 v%d, v%d, v%d" % (vP, vT, vPM + 2))
e("v_and_b32 v%d, v%d, v%d" % (vP + 1, vT + 1, vPM + 3))
e("v_and_b32 v%d, v%d, v%d" % (vPb, vT, vPM))
e("v_and_b32 v%d, v%d, v%d" % (vPb + 1, vT + 1, vPM + 1))
stamp()


def store6(vbase, s_off, js=range(6)):
    for j in js:
        o = " offset:%d" % ((j % 3) * 1024) if j % 3 else ""
        e("buffer_store_dwordx4 %s, v%d, %s, s%d offen%s%s" % (vr(vbase + 4 * j, 4), vOff + j, srd(sO), s_off, o, ST))
        if opts["stvm"] < 63:
            e("s_waitcnt vmcnt(%d)" % opts["stvm"])


def held_off(h):
    e("s_sub_u32 s%d, s%d, %d" % (sT0, sI, NC * (3 - h)))
    e("s_mul_i32 s%d, s%d, s%d" % (sT0, sT0, sStepB))
    e("s_add_i32 s%d, s%d, s%d" % (sT0, sT0, sQ0))


EARLY = opts["early"]
if EARLY:
    e("s_cmp_lt_u32 s%d, 12" % sI)
    e("s_cbranch_scc1 L_noearly")
    e("s_mov_b32 s%d, s%d" % (sT5, sNeed))
    e("s_mov_b32 s%d, %d" % (sNeed, opts["rel"] + BIAS))
    poll(vFlagA, "V")
    e("s_mov_b32 s%d, s%d" % (sNeed, sT5))
    for h in range(EARLY):
        held_off(h)
        store6(vHold + 24 * h, sT0)
    e("L_noearly:")
poll(vFlagA, "V")


def va_reads(t):
    for j in range(2):
        e("ds_read_b64_tr_b16 %s, v%d offset:%d" % (vr(vVa + 4 * t + 2 * j, 2), vAV + 4 * j + (t & 3), (t >> 2) * 128))


for t in range(6):
    va_reads(t)
for t in range(12):
    e("s_waitcnt lgkmcnt(%d)" % (2 * min(5, 11 - t)))
    e("v_mfma_f32_16x16x32_bf16 %s, %s, %s, 0" % (vr(vAcc + 4 * t, 4), vr(vVa + 4 * t, 4), vr(vP, 4)))
    if t + 6 < 12:
        va_reads(t + 6)
e("s_add_u32 s%d, s%d, 1" % (sNeed, sNeed))
stamp()
poll(vFlagA, "V")
stamp()
for t in range(12):
    e("ds_read_b64_tr_b16 %s, v%d offset:%d" % (vr(vVb + 2 * t, 2), vAV + 8 + (t & 3), (t >> 2) * 128))


def o_out(t):
    e("v_cvt_pk_bf16_f32 v%d, v%d, v%d" % (vOp + 2 * t, vAcc + 4 * t, vAcc + 4 * t + 1))
    e("v_cvt_pk_bf16_f32 v%d, v%d, v%d" % (vOp + 2 * t + 1, vAcc + 4 * t + 2, vAcc + 4 * t + 3))
    e("ds_write_b64 v%d, %s offset:%d" % (vAW + (t & 3), vr(vOp + 2 * t, 2), (t >> 2) * 128))


LAG = 4
for t in range(12):
    nwr = max(0, t - LAG)
    e("s_waitcnt lgkmcnt(%d)" % min(15, 11 - t + nwr))
    e("v_mfma_f32_16x16x16_bf16 %s, %s, %s, %s" % (vr(vAcc + 4 * t, 4), vr(vVb + 2 * t, 2), vr(vPb, 2), vr(vAcc + 4 * t, 4)))
    if t >= LAG:
        o_out(t - LAG)
for t in range(12 - LAG, 12):
    if t == 11:
        e("s_nop 0")
    o_out(t)
e("s_add_u32 s%d, s%d, 1" % (sT1, sI))
e("v_mov_b32 v%d, s%d" % (vCnt, sT1))
e("s_cmp_ge_u32 s%d, 12" % sI)
e("s_cbranch_scc1 L_last")


def readback(vbase):
    e("s_waitcnt lgkmcnt(0)")
    for j in range(6):
        e("ds_read_b128 %s, v%d offset:%d" % (vr(vbase + 4 * j, 4), vAR, j * 1024))


e("s_cmp_ge_u32 s%d, 8" % sI)
e("s_cbranch_scc1 L_rb2")
e("s_cmp_ge_u32 s%d, 4" % sI)
e("s_cbranch_scc1 L_rb1")
readback(vHold)
e("s_branch L_rbdone")
e("L_rb1:")
readback(vHold + 24)
e("s_branch L_rbdone")
e("L_rb2:")
readback(vHold + 48)
if opts["stall"]:
    e("s_mov_b32 s%d, %d" % (sRel, opts["stall"]))
    e("s_mov_b32 s%d, 0" % sStall)
e("L_rbdone:")
e("s_add_u32 s%d, s%d, %d" % (sI, sI, NC))
e("s_waitcnt lgkmcnt(0)")
e("ds_write_b32 v%d, v%d" % (vDoneA, vCnt))
stamp()
leak("t_st", True)
e("s_branch L_task")
e("L_last:")
readback(vRbLast)
if opts["stall"]:
    assert not EARLY
    e("s_cmp_eq_u32 s%d, -1" % sRel)
    e("s_cbranch_scc1 L_relskip")
    e("s_call_b64 s[%d:%d], L_release" % (sRet, sRet + 1))
    e("L_relskip:")
else:
    for h in range(EARLY, 3):
        held_off(h)
        store6(vHold + 24 * h, sT0)
held_off(3)
e("s_waitcnt lgkmcnt(0)")
store6(vRbLast, sT0)
stamp()
e("L_fin:")
if opts["stamp"]:
    e("s_waitcnt vmcnt(0)")
    e("s_mov_b32 s%d, 61" % sStampIdx)
    stamp(True)
    e("s_getreg_b32 s62, hwreg(HW_REG_XCC_ID)")
    e("v_writelane_b32 v%d, s62, 62" % vStamp)
    e("s_getreg_b32 s62, hwreg(HW_REG_HW_ID)")
    e("v_writelane_b32 v%d, s62, 63" % vStamp)
    e("s_load_dwordx2 s[%d:%d], s[0:1], 40" % (sQ, sQ + 1))
    e("s_mul_i32 s62, s2, %d" % ((NC + 1) * 256))
    e("v_lshlrev_b32 v0, 2, v0")
    e("s_waitcnt lgkmcnt(0)")
    e("buffer_store_dword v%d, v0, %s, s62 offen" % (vStamp, srd(sQ)))
if opts["spin"]:
    if opts["leak"] == "skew":
        e("s_load_dwordx2 s[%d:%d], s[0:1], 32" % (sQ, sQ + 1))
        e("s_mov_b32 s%d, 256" % (sQ + 2))
        e("s_not_b32 s62, s60")
        e("v_mov_b32 v1, s62")
        e("v_mov_b32 v2, 0")
        e("s_mov_b64 exec, 1")
        e("s_waitcnt lgkmcnt(0) vmcnt(0)")
        e("buffer_atomic_umax v1, v2, %s, 0 offen sc1" % srd(sQ))
        e("L_spin0:")
        e("s_sleep 4")
        e("s_memrealtime s[62:63]")
        e("s_waitcnt lgkmcnt(0)")
        e("s_sub_u32 s62, s62, s60")
        e("s_cmp_lt_u32 s62, 4000")
        e("s_cbranch_scc1 L_spin0")
        e("buffer_load_dword v1, v2, %s, 0 offen sc0 sc1" % srd(sQ))
        e("s_waitcnt vmcnt(0)")
        e("v_readfirstlane_b32 s62, v1")
        e("s_nop 3")
        e("s_not_b32 s62, s62")
        e("s_sub_u32 s62, s60, s62")
        e("s_lshl_b32 s62, s62, 3")
        e("s_min_u32 s62, s62, 20000")
        e("s_add_u32 s%d, s62, %d" % (sLeak, opts["spin"]))
    elif opts["leak"]:
        if opts["leak"] == "fin":
            e("s_waitcnt vmcnt(0)")
            leak("fin")
        e("s_sub_u32 s62, s64, s60")
        e("s_lshl_b32 s62, s62, 2")
        e("s_add_u32 s%d, s62, %d" % (sLeak, opts["spin"]))
    else:
        e("s_mov_b32 s%d, %d" % (sLeak, opts["spin"]))
    e("L_spin:")
    e("s_sleep 4")
    e("s_memrealtime s[62:63]")
    e("s_waitcnt lgkmcnt(0)")
    e("s_sub_u32 s62, s62, s60")
    e("s_cmp_lt_u32 s62, s%d" % sLeak)
    e("s_cbranch_scc1 L_spin")
e("L_end:")
e("s_endpgm")
if opts["stall"]:
    e("L_release:")
    for h in range(3):
        held_off(h)
        store6(vHold + 24 * h, sT0)
    e("s_mov_b32 s%d, -1" % sRel)
    e("s_setpc_b64 s[%d:%d]" % (sRet, sRet + 1))

L = [x for x in L if x is not None]

hdr = """; Sliding-window (w=32) attention, B=1 H=32 S=2048 D=192, bf16.  Generated by gen3.py (hand-written generator).
; kernarg: q, k, v, out, debug, ws
; one workgroup per 256 query rows: wave 0 streams 16-row Q/K/V blocks into LDS rings by LDS-DMA,
; waves 1..%d each take every %d-th 16-query task; hand-off through LDS counters.
; @launch grid=(256,1,1) block=(%d,1,1) lds=%d
.amdgcn_target "amdgcn-amd-amdhsa--gfx950"
.text
.globl %s_kernel
.p2align 8
.type %s_kernel,@function
%s_kernel:
""" % (NC, NC, 64 * (NC + 1), LDS, NAME, NAME, NAME)

ftr = """
.section .rodata,"a"
.p2align 6
.amdhsa_kernel %s_kernel
  .amdhsa_next_free_vgpr %d
  .amdhsa_next_free_sgpr 80
  .amdhsa_accum_offset %d
  .amdhsa_group_segment_fixed_size 0
  .amdhsa_kernarg_size 48
  .amdhsa_user_sgpr_count 2
  .amdhsa_user_sgpr_kernarg_segment_ptr 1
  .amdhsa_system_sgpr_workgroup_id_x 1
.end_amdhsa_kernel
""" % (NAME, NVGPR, NVGPR)

open(sys.argv[1], "w").write(hdr + "\n".join(L) + ftr)
```

```python
import sys
import struct

NAME = "standalone__sliding_local_fixed_window__prompt"

opts = dict(
    ld="nt",
    st="nt",
    xcdmap=1,
    mimic=1,
    w=22,
    gran=1,
    pre=8,
    open=2,
    grow=6,
    vmax=57,
    early=0,
    rel=48,
    srel=49,
    srel2=0,
    rel2=0,
    emask=0xaa,
    late=0,
    sleep=1,
    prio=3,
    stamp=0,
    spin=0,
    leak="",
)
for a in sys.argv[2:]:
    k, v = a.split("=")
    assert k in opts, k
    opts[k] = v if isinstance(opts[k], str) else int(v, 0)

LD = (" " + opts["ld"].replace("+", " ")) if opts["ld"] else ""
ST = (" " + opts["st"].replace("+", " ")) if opts["st"] else ""
NC = 4

BLK = 6144
KV = 0
QRING = 18 * BLK
FLAG = 26 * BLK
DONE = FLAG + 256
LDS = DONE + 256 * (NC + 1)
NBYTES = 32 * 2048 * 384

L = []


def e(s=""):
    L.append("    " + s if s and not s.endswith(":") else s)


def f32hex(x):
    return "0x%08x" % struct.unpack("<I", struct.pack("<f", x))[0]


sQ, sK, sV, sO = 12, 16, 20, 24
sWave = 28
sStepB = 29
sKV0 = 30
sQ0 = 31
sMinOff = 32
sChunk = 33
sI = 34
sF = 35
sM = 36
sScale = 44
sLog2e = 45
sT0, sT1, sT2, sT3, sT4 = 46, 47, 48, 49, 50
sHi = 52
sNeed = 53
sOff = 54
sLds = 55
sInit0, sInit1 = 56, 57
sStampIdx = 58
sLeak = 59

vOff = 1
vLane = 7
vAK = 8
vAQ = 10
vAV = 12
vW = 16
vR = 20
vPM = 21
vFlagA = 25
vDoneA = 26
vF = 27
vCnt = 28
vP = 30
vVb = 56
vVa = 80
vOp = vVa
vAcc = 112
vHold = 160
vQ = 56
vK = 80
vS = 128
vX = 140
vT = 148
vStamp = 208
NVGPR = 216


def srd(s):
    return "s[%d:%d]" % (s, s + 3)


def vr(a, n):
    return "v[%d:%d]" % (a, a + n - 1) if n > 1 else "v%d" % a


def stamp(always=False, key=False):
    if opts["stamp"] == 1 or (opts["stamp"] and always) or (opts["stamp"] >= 3 and key):
        e("s_memrealtime s[62:63]")
        e("s_mov_b32 m0, s%d" % sStampIdx)
        e("s_waitcnt lgkmcnt(0)")
        e("v_writelane_b32 v%d, s62, m0" % vStamp)
        e("s_add_u32 s%d, s%d, 1" % (sStampIdx, sStampIdx))


def leak(name):
    if opts["leak"] != name:
        return
    e("s_waitcnt lgkmcnt(0)")
    e("s_memrealtime s[64:65]")
    e("s_waitcnt lgkmcnt(0)")


def gfun(r):
    return ((((r >> 2) ^ (r >> 3)) & 1) << 2) | (r & 2) | ((r >> 3) & 1)


def g_of(vdst, vrow, vtmp):
    e("v_lshrrev_b32 v%d, 1, v%d" % (vtmp, vrow))
    e("v_xor_b32 v%d, v%d, v%d" % (vtmp, vtmp, vrow))
    e("v_and_b32 v%d, 4, v%d" % (vtmp, vtmp))
    e("v_and_or_b32 v%d, v%d, 2, v%d" % (vtmp, vrow, vtmp))
    e("v_bfe_u32 v%d, v%d, 3, 1" % (vdst, vrow))
    e("v_or_b32 v%d, v%d, v%d" % (vdst, vdst, vtmp))
    e("v_lshlrev_b32 v%d, 4, v%d" % (vdst, vdst))


def dma_block(s_srd, s_off, s_lds, lds, before=None, after=None):
    setm0 = (lambda x: e("s_mov_b32 m0, %d" % x)) if s_lds is None else (lambda x: e("s_add_u32 m0, s%d, %d" % (s_lds, x)))
    for j in range(6):
        if j % 3 == 0:
            setm0(lds + 1024 * j)
        did = before(j) if before else False
        if j % 3 == 0 and not did:
            e("s_nop 0")
        o = " offset:%d" % ((j % 3) * 1024) if j % 3 else ""
        e("buffer_load_dwordx4 v%d, %s, s%d offen%s%s lds" % (vOff + j, srd(s_srd), s_off, o, LD))
        if after:
            after(j)


def pub(cnt):
    if cnt:
        e("v_add_u32 v%d, %d, v%d" % (vCnt, cnt, vCnt))
        e("ds_write_b32 v%d, v%d" % (vFlagA, vCnt))


npoll = [0]


def poll():
    n = npoll[0]
    npoll[0] += 1
    e("s_cmp_ge_u32 s%d, s%d" % (sF, sNeed))
    e("s_cbranch_scc1 L_go%d" % n)
    e("L_poll%d:" % n)
    e("ds_read_b32 v%d, v%d" % (vF, vFlagA))
    e("s_waitcnt lgkmcnt(0)")
    e("v_readfirstlane_b32 s%d, v%d" % (sF, vF))
    e("s_nop 0")
    e("s_cmp_ge_u32 s%d, s%d" % (sF, sNeed))
    e("s_cbranch_scc1 L_go%d" % n)
    if opts["sleep"]:
        e("s_sleep %d" % opts["sleep"])
    e("s_branch L_poll%d" % n)
    e("L_go%d:" % n)


def flag_init():
    e("v_lshlrev_b32 v%d, 2, v0" % vDoneA)
    e("v_add_u32 v%d, %d, v%d" % (vDoneA, FLAG, vDoneA))
    e("v_mov_b32 v%d, 0" % vF)
    e("ds_write_b32 v%d, v%d" % (vDoneA, vF))


e("s_cmp_ge_u32 s2, 256")
e("s_cbranch_scc1 L_end")
if opts["spin"] or opts["stamp"]:
    e("s_memrealtime s[60:61]")
e("s_load_dwordx2 s[%d:%d], s[0:1], 8" % (sK, sK + 1))
e("s_load_dwordx2 s[%d:%d], s[0:1], 0" % (sQ, sQ + 1))
e("s_load_dwordx2 s[%d:%d], s[0:1], 16" % (sV, sV + 1))
e("s_load_dwordx2 s[%d:%d], s[0:1], 24" % (sO, sO + 1))
e("v_and_b32 v%d, 63, v0" % vLane)
e("v_readfirstlane_b32 s%d, v0" % sWave)
e("v_lshrrev_b32 v65, 1, v%d" % vLane)
e("v_and_b32 v65, 28, v65")
e("s_movk_i32 s%d, 0x50" % sT4)
e("v_mov_b32 v67, 3072")
for j in range(3):
    tab = sum(gfun((8 * j + l) // 3) << (4 * l) for l in range(8))
    assert all(gfun((8 * (j + 3) + l) // 3) == gfun((8 * j + l) // 3) ^ 5 for l in range(8))
    e("s_mov_b32 s%d, 0x%x" % (sT3, tab))
    e("v_bfe_u32 v66, s%d, v65, 3" % sT3)
    e("v_xor_b32 v66, v66, v%d" % vLane)
    e("v_lshlrev_b32 v%d, 4, v66" % (vOff + j))
    e("v_xad_u32 v%d, v%d, s%d, v67" % (vOff + 3 + j, vOff + j, sT4))
e("s_mov_b32 s%d, %d" % (sK + 2, NBYTES))
e("s_mov_b32 s%d, 0x20000" % (sK + 3))
for s in (sQ, sV, sO):
    e("s_mov_b32 s%d, s%d" % (s + 2, sK + 2))
    e("s_mov_b32 s%d, s%d" % (s + 3, sK + 3))
e("s_and_b32 s%d, s2, 7" % sT1)
e("s_lshr_b32 s%d, s2, 6" % sT2)
if opts["xcdmap"] == 1:
    e("s_lshl3_add_u32 s%d, s%d, s%d" % (sT1, sT2, sT1))
else:
    e("s_lshl2_add_u32 s%d, s%d, s%d" % (sT1, sT1, sT2))
e("s_bfe_u32 s%d, s2, 0x30003" % sChunk)
e("s_mul_i32 s%d, s%d, %d" % (sMinOff, sT1, 2048 * 384))
e("s_lshl_b32 s%d, s%d, 4" % (sT2, sChunk))
e("s_bitcmp1_b32 s%d, 0" % sChunk)
e("s_cselect_b32 s%d, -1, 1" % sStepB)
e("s_cselect_b32 s%d, 15, -2" % sKV0)
e("s_cselect_b32 s%d, 15, 0" % sQ0)
e("s_add_i32 s%d, s%d, s%d" % (sKV0, sKV0, sT2))
e("s_add_i32 s%d, s%d, s%d" % (sQ0, sQ0, sT2))
e("s_mulk_i32 s%d, %d" % (sStepB, BLK))
e("s_mulk_i32 s%d, %d" % (sKV0, BLK))
e("s_mulk_i32 s%d, %d" % (sQ0, BLK))
e("s_add_i32 s%d, s%d, s%d" % (sKV0, sKV0, sMinOff))
e("s_add_i32 s%d, s%d, s%d" % (sQ0, sQ0, sMinOff))
e("s_lshr_b32 s%d, s%d, 6" % (sWave, sWave))
if opts["stamp"]:
    e("s_waitcnt lgkmcnt(0)")
    e("v_mov_b32 v%d, 0" % vStamp)
    e("v_writelane_b32 v%d, s60, 0" % vStamp)
    e("s_mov_b32 s%d, 1" % sStampIdx)
    stamp()
if opts["leak"]:
    e("s_waitcnt lgkmcnt(0)")
    e("s_mov_b32 s64, s60")
e("s_cmp_lg_u32 s%d, 0" % sWave)
e("s_cbranch_scc1 L_compute")

W, G, PRE = opts["w"], opts["gran"], opts["pre"]
assert 6 % G == 0 and W <= 63 and 2 <= PRE <= 10
NS = 42
assert opts["open"] <= 52 - NS


def window(c):
    over = c - 6 * (52 - opts["open"])
    return W if over <= 0 else min(opts["vmax"], W + over * opts["grow"] // 6)


st = dict(pub=None, pend=0)


def hooks(n, extra=None):
    def before(j):
        c = 6 * n + j
        if c % G:
            return False
        w = window(c + G) - G
        e("s_waitcnt vmcnt(%d)" % w)
        landed = (c - w) // 6
        if landed > st["pub"]:
            st["pend"] = landed - st["pub"]
            st["pub"] = landed
        return True

    def after(j):
        if (j + 1) % G == 0:
            pub(st["pend"])
            st["pend"] = 0
        if extra and j in extra:
            extra[j]()
    return before, after


def lag(n):
    return (6 * n - W) // 6


if opts["prio"]:
    e("s_setprio %d" % opts["prio"])
e("s_max_i32 s%d, s%d, s%d" % (sT0, sKV0, sMinOff))
e("s_add_i32 s%d, s%d, s%d" % (sOff, sKV0, sStepB))
e("s_max_i32 s%d, s%d, s%d" % (sT1, sOff, sMinOff))
e("s_waitcnt lgkmcnt(0)")
dma_block(sK, sT0, None, KV)
dma_block(sK, sT1, None, KV + BLK)
for n in range(2, PRE):
    e("s_add_i32 s%d, s%d, s%d" % (sOff, sOff, sStepB))
    dma_block(sK, sOff, None, KV + n * BLK)
e("s_add_i32 s%d, s%d, s%d" % (sOff, sOff, sStepB))
flag_init()
e("v_mov_b32 v%d, v%d" % (vFlagA, vDoneA))
e("v_mov_b32 v%d, %d" % (vCnt, lag(PRE)))
assert lag(PRE) >= 0
e("s_mov_b32 s%d, %d" % (sLds, PRE * BLK))
e("s_waitcnt lgkmcnt(0)")
e("s_barrier")
e("L_ldk:")
st["pub"] = lag(PRE)


def k_end():
    e("s_add_i32 s%d, s%d, s%d" % (sOff, sOff, sStepB))
    e("s_add_u32 s%d, s%d, %d" % (sLds, sLds, BLK))
    e("s_cmp_lt_u32 s%d, %d" % (sLds, 18 * BLK))


dma_block(sK, sOff, sLds, KV, *hooks(PRE, {5: k_end}))
assert st["pub"] == lag(PRE + 1) and not st["pend"]
e("s_cbranch_scc1 L_ldk")
stamp(key=opts["stamp"] == 4)
e("s_mov_b32 s%d, s%d" % (sOff, sQ0))
e("s_mov_b32 s%d, 0" % sLds)
e("s_mov_b32 s%d, 0" % sI)
e("L_ldq:")
st["pub"] = lag(18)


def q_read():
    e("s_sub_u32 s%d, s%d, 6" % (sNeed, sI))
    e("s_add_u32 s%d, s%d, 1" % (sI, sI))
    e("s_and_b32 s%d, s%d, %d" % (sT2, sI, NC - 1))
    e("s_lshl_b32 s%d, s%d, 8" % (sT2, sT2))
    e("s_add_u32 s%d, s%d, %d" % (sT2, sT2, DONE))
    e("v_mov_b32 v%d, s%d" % (vDoneA, sT2))
    e("ds_read_b32 v%d, v%d" % (vF, vDoneA))


def q_end():
    e("s_add_i32 s%d, s%d, s%d" % (sOff, sOff, sStepB))
    e("s_and_b32 s%d, s%d, 7" % (sLds, sI))
    e("s_mulk_i32 s%d, %d" % (sLds, BLK))
    e("L_qfree:")
    e("s_waitcnt lgkmcnt(0)")
    e("v_readfirstlane_b32 s%d, v%d" % (sF, vF))
    e("s_nop 0")
    e("s_cmp_ge_i32 s%d, s%d" % (sF, sNeed))
    e("s_cbranch_scc1 L_qfree_ok")
    e("ds_read_b32 v%d, v%d" % (vF, vDoneA))
    e("s_branch L_qfree")
    e("L_qfree_ok:")
    e("s_cmp_lt_u32 s%d, 16" % sI)


dma_block(sQ, sOff, sLds, QRING, *hooks(18, {2: q_read, 5: q_end}))
assert 19 - st["pub"] <= 7
e("s_cbranch_scc1 L_ldq")
stamp(key=opts["stamp"] == 4)
e("s_mov_b32 s%d, s%d" % (sOff, sKV0))
e("s_max_i32 s%d, s%d, s%d" % (sT0, sOff, sMinOff))
e("s_mov_b32 s%d, 0" % sLds)
e("L_ldv:")
st["pub"] = lag(34)


def v_end():
    e("s_add_i32 s%d, s%d, s%d" % (sOff, sOff, sStepB))
    e("s_add_u32 s%d, s%d, %d" % (sLds, sLds, BLK))
    e("s_max_i32 s%d, s%d, s%d" % (sT0, sOff, sMinOff))
    e("s_cmp_lt_u32 s%d, %d" % (sLds, (NS - 34) * BLK))


dma_block(sV, sT0, sLds, KV, *hooks(34, {5: v_end}))
e("s_cbranch_scc1 L_ldv")
assert NS - 34 == 8 and window(6 * NS) == W
st["pub"] = lag(NS)
for n in range(NS, 52):
    def all_read():
        e("v_and_b32 v%d, 3, v%d" % (vDoneA, vLane))
        e("v_lshlrev_b32 v%d, 8, v%d" % (vDoneA, vDoneA))
        e("v_add_u32 v%d, %d, v%d" % (vDoneA, DONE, vDoneA))
        e("ds_read_b32 v%d, v%d" % (vF, vDoneA))

    def end():
        e("s_add_i32 s%d, s%d, s%d" % (sOff, sOff, sStepB))
        if n == NS:
            assert st["pub"] >= 34
            e("L_vfree:")
            e("s_waitcnt lgkmcnt(0)")
            e("v_cmp_gt_u32 vcc, 13, v%d" % vF)
            e("s_cbranch_vccz L_vfree_ok")
            e("ds_read_b32 v%d, v%d" % (vF, vDoneA))
            e("s_branch L_vfree")
            e("L_vfree_ok:")
    dma_block(sV, sOff, None, KV + (n - 34) * BLK, *hooks(n, {2: all_read, 5: end} if n == NS else {5: end}))
stamp(key=True)
leak("ldiss")
for b in range(st["pub"], 52):
    e("s_waitcnt vmcnt(%d)" % (6 * (51 - b)))
    pub(1)
stamp(key=True)
leak("lddone")
e("s_branch L_fin")

vLo = 64
e("L_storer:")
e("v_and_b32 v%d, 3, v%d" % (vDoneA, vLane))
e("v_lshlrev_b32 v%d, 8, v%d" % (vDoneA, vDoneA))
e("v_add_u32 v%d, %d, v%d" % (vDoneA, DONE, vDoneA))
e("v_lshlrev_b32 v%d, 4, v%d" % (vR, vLane))
e("v_add_u32 v%d, %d, v%d" % (vR, QRING, vR))
if opts["srel2"]:
    e("s_getreg_b32 s%d, hwreg(HW_REG_XCC_ID)" % sNeed)
    e("s_and_b32 s%d, s%d, 7" % (sNeed, sNeed))
    e("s_bitcmp1_b32 %d, s%d" % (opts["emask"], sNeed))
    e("s_cselect_b32 s%d, %d, %d" % (sNeed, opts["srel2"], opts["srel"]))
else:
    e("s_mov_b32 s%d, %d" % (sNeed, opts["srel"]))
e("L_ofree:")
e("s_sleep 4")
e("ds_read_b32 v%d, v%d" % (vF, vDoneA))
e("s_waitcnt lgkmcnt(0)")
e("v_cmp_gt_u32 vcc, 32, v%d" % vF)
e("s_cbranch_vccnz L_ofree")
for j in range(24):
    if j == 12:
        e("s_waitcnt lgkmcnt(0)")
    e("ds_read_b128 %s, v%d offset:%d" % (vr(vLo + 4 * j, 4), vR, j * 1024))
e("s_waitcnt lgkmcnt(0)")
poll()
stamp(key=True)
for t in range(4):
    for j in range(6):
        o = " offset:%d" % ((j % 3) * 1024) if j % 3 else ""
        e("buffer_store_dwordx4 %s, v%d, %s, s%d offen%s%s" % (vr(vLo + 24 * t + 4 * j, 4), vOff + j, srd(sO), sQ0, o, ST))
    e("s_add_i32 s%d, s%d, s%d" % (sQ0, sQ0, sStepB))
stamp(key=True)
e("s_branch L_fin")

e("L_compute:")
flag_init()
e("s_waitcnt lgkmcnt(0)")
e("s_barrier")
e("s_sub_u32 s%d, s%d, 1" % (sI, sWave))
e("s_mul_i32 s%d, s%d, %d" % (sT3, sI, BLK))
e("s_add_u32 s%d, s%d, %d" % (sT4, sT3, QRING + 4 * BLK))
e("s_mov_b32 s%d, 0" % sF)
e("v_mov_b32 v%d, %d" % (vFlagA, FLAG))
e("s_cmp_eq_u32 s%d, 5" % sWave)
e("s_cbranch_scc1 L_storer")
e("v_and_b32 v66, 15, v%d" % vLane)
e("v_lshrrev_b32 v67, 4, v%d" % vLane)
g_of(70, 66, 71)
e("v_mul_u32_u24 v68, 384, v66")
e("v_lshlrev_b32 v69, 4, v67")
e("v_xor_b32 v69, v69, v70")
e("v_add3_u32 v%d, v68, v69, s%d" % (vAK, sT3))
e("v_xor_b32 v%d, 64, v%d" % (vAK + 1, vAK))
e("v_add_u32 v%d, %d, v%d" % (vAQ, QRING, vAK))
e("v_add_u32 v%d, %d, v%d" % (vAQ + 1, QRING, vAK + 1))
e("v_lshrrev_b32 v69, 1, v67")
e("v_lshlrev_b32 v69, 4, v69")
e("v_xor_b32 v69, v69, v70")
e("v_and_b32 v71, 1, v67")
e("v_lshl_add_u32 v69, v71, 3, v69")
e("v_add3_u32 v%d, v68, v69, s%d" % (vW, sT4))
e("v_subrev_u32 v%d, %d, v%d" % (vW, 4 * BLK, vW))
for m in range(1, 4):
    e("v_xor_b32 v%d, %d, v%d" % (vW + m, 32 * m, vW))
e("v_lshlrev_b32 v69, 2, v67")
for i in range(4):
    e("v_add_u32 v71, %d, v69" % i)
    e("v_cmp_le_u32 s[%d:%d], v71, v66" % (sM + 2 * i, sM + 2 * i + 1))
e("s_ashr_i32 s%d, s%d, 31" % (sT0, sStepB))
e("s_mov_b32 s%d, s%d" % (sT1, sT0))
e("s_nop 1")
for i in range(4):
    e("s_xor_b64 s[%d:%d], s[%d:%d], s[%d:%d]" % (sM + 2 * i, sM + 2 * i + 1, sM + 2 * i, sM + 2 * i + 1, sT0, sT1))
e("s_mov_b32 s%d, 0xffff0000" % sHi)
e("v_mov_b32 v72, 0xffff")
e("v_mov_b32 v73, s%d" % sHi)
for k in range(2):
    e("v_cndmask_b32 v74, 0, v72, s[%d:%d]" % (sM + 4 * k, sM + 4 * k + 1))
    e("v_cndmask_b32 v75, 0, v73, s[%d:%d]" % (sM + 4 * k + 2, sM + 4 * k + 3))
    e("v_or_b32 v%d, v74, v75" % (vPM + k))
    e("v_not_b32 v%d, v%d" % (vPM + 2 + k, vPM + k))
e("v_lshrrev_b32 v69, 2, v%d" % vLane)
g_of(70, 69, 71)
e("v_mul_u32_u24 v68, 384, v69")
e("v_bfe_u32 v71, v%d, 1, 1" % vLane)
e("v_lshlrev_b32 v71, 4, v71")
e("v_xor_b32 v70, v70, v71")
e("v_and_b32 v71, 1, v%d" % vLane)
e("v_lshl_add_u32 v70, v71, 3, v70")
e("v_add3_u32 v%d, v68, v70, s%d" % (vAV, sT3))
for m in range(1, 4):
    e("v_xor_b32 v%d, %d, v%d" % (vAV + m, 32 * m, vAV))
e("v_lshlrev_b32 v%d, 4, v%d" % (vR, vLane))
e("v_add_u32 v%d, s%d, v%d" % (vR, sT4, vR))
e("s_cmp_eq_u32 s%d, 0" % sChunk)
e("s_cselect_b32 s%d, 0xff800000, 0" % sT2)
e("s_cmp_lt_u32 s%d, 2" % sI)
e("s_cselect_b32 s%d, s%d, 0" % (sInit0, sT2))
e("s_cmp_eq_u32 s%d, 0" % sI)
e("s_cselect_b32 s%d, s%d, 0" % (sInit1, sT2))
e("s_mov_b32 s%d, %s" % (sScale, f32hex(192 ** -0.5)))
if opts["mimic"]:
    e("s_mov_b32 s%d, %s" % (sLog2e, f32hex(1.4426950408889634)))
else:
    e("s_mov_b32 s%d, %s" % (sLog2e, f32hex(1.4426950408889634 * 192 ** -0.5)))
e("s_movk_i32 s%d, %d" % (sT3, 4 * BLK))

e("L_qk:")
for i in range(4):
    e("v_mov_b32 v%d, s%d" % (vS + i, sInit0))
    e("v_mov_b32 v%d, s%d" % (vS + 4 + i, sInit1))
e("s_mov_b32 s%d, 0" % sInit0)
e("s_mov_b32 s%d, 0" % sInit1)
for r in range(18):
    e("v_mov_b32 v%d, v%d" % (vP + r, vP + 6 + r))
e("s_add_u32 s%d, s%d, 1" % (sT1, sI))
e("v_mov_b32 v%d, s%d" % (vCnt, sT1))
e("s_add_u32 s%d, s%d, 19" % (sNeed, sI))
poll()
stamp()


def qk_reads(i):
    o = (i >> 1) * 128
    e("ds_read_b128 %s, v%d offset:%d" % (vr(vQ + 4 * i, 4), vAQ + (i & 1), o))
    for j in range(3):
        e("ds_read_b128 %s, v%d offset:%d" % (vr(vK + 12 * (i & 3) + 4 * j, 4), vAK + (i & 1), o + j * BLK))


for i in range(3):
    qk_reads(i)
for k in range(6):
    e("s_waitcnt lgkmcnt(%d)" % (4 * min(2, 5 - k)))
    if k == 5:
        e("ds_write_b32 v%d, v%d" % (vDoneA, vCnt))
    for j in range(3):
        c = "0" if (k == 0 and j == 2) else vr(vS + 4 * j, 4)
        e("v_mfma_f32_16x16x32_bf16 %s, %s, %s, %s" % (vr(vS + 4 * j, 4), vr(vK + 12 * (k & 3) + 4 * j, 4), vr(vQ + 4 * k, 4), c))
    if k + 3 < 6:
        qk_reads(k + 3)
e("v_add_u32 v%d, %d, v%d" % (vAK, 4 * BLK, vAK))
e("v_add_u32 v%d, %d, v%d" % (vAK + 1, 4 * BLK, vAK + 1))
e("v_add_u32 v%d, s%d, v%d" % (vAQ, sT3, vAQ))
e("v_add_u32 v%d, s%d, v%d" % (vAQ + 1, sT3, vAQ + 1))
e("s_sub_i32 s%d, 0, s%d" % (sT3, sT3))
e("s_add_u32 s%d, s%d, %d" % (sI, sI, NC))
e("s_nop 2")
for i in range(4):
    e("v_cndmask_b32 v%d, v%d, v%d, s[%d:%d]" % (vX + i, vS + i, vS + 8 + i, sM + 2 * i, sM + 2 * i + 1))
xs = [vX + i for i in range(4)] + [vS + 4 + i for i in range(4)]
ys = [vX + i for i in range(8)]
if opts["mimic"]:
    for p in range(4):
        e("v_cvt_pk_bf16_f32 v%d, v%d, v%d" % (vT + p, xs[2 * p], xs[2 * p + 1]))
    for p in range(4):
        e("v_lshlrev_b32 v%d, 16, v%d" % (ys[2 * p], vT + p))
        e("v_and_b32 v%d, s%d, v%d" % (ys[2 * p + 1], sHi, vT + p))
    for p in range(8):
        e("v_mul_f32 v%d, s%d, v%d" % (ys[p], sScale, ys[p]))
    for p in range(4):
        e("v_cvt_pk_bf16_f32 v%d, v%d, v%d" % (vT + p, ys[2 * p], ys[2 * p + 1]))
    for p in range(4):
        e("v_lshlrev_b32 v%d, 16, v%d" % (ys[2 * p], vT + p))
        e("v_and_b32 v%d, s%d, v%d" % (ys[2 * p + 1], sHi, vT + p))
else:
    ys = xs
m, m2 = vT + 4, vT + 5
e("v_max3_f32 v%d, v%d, v%d, v%d" % (m, ys[0], ys[1], ys[2]))
e("v_max3_f32 v%d, v%d, v%d, v%d" % (m2, ys[3], ys[4], ys[5]))
e("v_max3_f32 v%d, v%d, v%d, v%d" % (m, m, ys[6], ys[7]))
e("v_max_f32 v%d, v%d, v%d" % (m, m, m2))
e("v_mov_b32 v%d, v%d" % (m2, m))
e("s_nop 1")
e("v_permlane16_swap_b32 v%d, v%d" % (m, m2))
e("s_nop 0")
e("v_max_f32 v%d, v%d, v%d" % (m, m, m2))
e("v_mov_b32 v%d, v%d" % (m2, m))
e("s_nop 1")
e("v_permlane32_swap_b32 v%d, v%d" % (m, m2))
e("s_nop 0")
e("v_max_f32 v%d, v%d, v%d" % (m, m, m2))
e("v_mul_f32 v%d, s%d, v%d" % (m, sLog2e, m))
es = [vX + i for i in range(8)]
for p in range(8):
    e("v_fma_f32 v%d, v%d, s%d, -v%d" % (es[p], ys[p], sLog2e, m))
for p in range(8):
    e("v_exp_f32 v%d, v%d" % (es[p], es[p]))
sm, sm2 = vT + 6, vT + 7
e("v_add_f32 v%d, v%d, v%d" % (sm, es[0], es[1]))
e("v_add_f32 v%d, v%d, v%d" % (sm2, es[2], es[3]))
e("v_add_f32 v%d, v%d, v%d" % (sm, sm, es[4]))
e("v_add_f32 v%d, v%d, v%d" % (sm2, sm2, es[5]))
e("v_add_f32 v%d, v%d, v%d" % (sm, sm, es[6]))
e("v_add_f32 v%d, v%d, v%d" % (sm2, sm2, es[7]))
e("v_add_f32 v%d, v%d, v%d" % (sm, sm, sm2))
e("v_mov_b32 v%d, v%d" % (sm2, sm))
e("s_nop 1")
e("v_permlane16_swap_b32 v%d, v%d" % (sm, sm2))
e("s_nop 0")
e("v_add_f32 v%d, v%d, v%d" % (sm, sm, sm2))
e("v_mov_b32 v%d, v%d" % (sm2, sm))
e("s_nop 1")
e("v_permlane32_swap_b32 v%d, v%d" % (sm, sm2))
e("s_nop 0")
e("v_add_f32 v%d, v%d, v%d" % (sm, sm, sm2))
e("v_rcp_f32 v%d, v%d" % (sm, sm))
e("s_nop 0")
for p in range(8):
    e("v_mul_f32 v%d, v%d, v%d" % (es[p], es[p], sm))
PN = vP + 18
e("v_cvt_pk_bf16_f32 v%d, v%d, v%d" % (vT, es[0], es[1]))
e("v_cvt_pk_bf16_f32 v%d, v%d, v%d" % (vT + 1, es[2], es[3]))
e("v_cvt_pk_bf16_f32 v%d, v%d, v%d" % (PN + 2, es[4], es[5]))
e("v_cvt_pk_bf16_f32 v%d, v%d, v%d" % (PN + 3, es[6], es[7]))
e("v_and_b32 v%d, v%d, v%d" % (PN, vT, vPM + 2))
e("v_and_b32 v%d, v%d, v%d" % (PN + 1, vT + 1, vPM + 3))
e("v_and_b32 v%d, v%d, v%d" % (PN + 4, vT, vPM))
e("v_and_b32 v%d, v%d, v%d" % (PN + 5, vT + 1, vPM + 1))
stamp()
e("s_cmp_lt_u32 s%d, 16" % sI)
e("s_cbranch_scc1 L_qk")

e("s_sub_u32 s%d, s%d, 16" % (sI, sI))
EARLY = opts["early"]
sSt, sSt4, sRel = 66, 67, 68
e("s_mul_i32 s%d, s%d, s%d" % (sSt, sI, sStepB))
e("s_add_i32 s%d, s%d, s%d" % (sSt, sSt, sQ0))
e("s_lshl_b32 s%d, s%d, 2" % (sSt4, sStepB))
e("s_add_i32 s%d, s%d, s%d" % (sSt, sSt, sSt4))
e("v_mov_b32 v%d, 32" % vCnt)
if EARLY and opts["rel2"]:
    e("s_getreg_b32 s%d, hwreg(HW_REG_XCC_ID)" % sRel)
    e("s_and_b32 s%d, s%d, 7" % (sRel, sRel))
    e("s_bitcmp1_b32 %d, s%d" % (opts["emask"], sRel))
    e("s_cselect_b32 s%d, %d, %d" % (sRel, opts["rel2"], opts["rel"]))
elif EARLY:
    e("s_mov_b32 s%d, %d" % (sRel, opts["rel"]))


def store_block(vb):
    for j in range(6):
        o = " offset:%d" % ((j % 3) * 1024) if j % 3 else ""
        e("buffer_store_dwordx4 %s, v%d, %s, s%d offen%s%s" % (vr(vb + 4 * j, 4), vOff + j, srd(sO), sSt, o, ST))


e("L_pv:")
if EARLY:
    e("s_cmp_lt_u32 s%d, 12" % sI)
    e("s_cbranch_scc1 L_noearly")
    e("s_mov_b32 s%d, s%d" % (sNeed, sRel))
    poll()
    if opts["stamp"] == 3:
        stamp(key=True)
    for h in range(EARLY):
        store_block(vHold + 24 * h)
        e("s_add_i32 s%d, s%d, s%d" % (sSt, sSt, sSt4))
    e("L_noearly:")
e("s_add_u32 s%d, s%d, 36" % (sNeed, sI))
poll()
stamp()


def va_reads(t):
    for j in range(2):
        e("ds_read_b64_tr_b16 %s, v%d offset:%d" % (vr(vVa + 4 * (t & 7) + 2 * j, 2), vAV + (t & 3), (t >> 2) * 128 + j * BLK))


for t in range(6):
    va_reads(t)
for t in range(12):
    e("s_waitcnt lgkmcnt(%d)" % (2 * min(5, 11 - t)))
    e("v_mfma_f32_16x16x32_bf16 %s, %s, %s, 0" % (vr(vAcc + 4 * t, 4), vr(vVa + 4 * (t & 7), 4), vr(vP, 4)))
    if t + 6 < 12:
        va_reads(t + 6)
e("s_add_u32 s%d, s%d, 1" % (sNeed, sNeed))
poll()
stamp()
for t in range(12):
    e("ds_read_b64_tr_b16 %s, v%d offset:%d" % (vr(vVb + 2 * t, 2), vAV + (t & 3), (t >> 2) * 128 + 2 * BLK))


def o_out(t):
    e("v_cvt_pk_bf16_f32 v%d, v%d, v%d" % (vOp + 2 * t, vAcc + 4 * t, vAcc + 4 * t + 1))
    e("v_cvt_pk_bf16_f32 v%d, v%d, v%d" % (vOp + 2 * t + 1, vAcc + 4 * t + 2, vAcc + 4 * t + 3))
    e("ds_write_b64 v%d, %s offset:%d" % (vW + (t & 3), vr(vOp + 2 * t, 2), (t >> 2) * 128))


LAG = 4
for t in range(12):
    nwr = max(0, t - LAG)
    e("s_waitcnt lgkmcnt(%d)" % min(15, 11 - t + nwr))
    e("v_mfma_f32_16x16x16_bf16 %s, %s, %s, %s" % (vr(vAcc + 4 * t, 4), vr(vVb + 2 * t, 2), vr(vP + 4, 2), vr(vAcc + 4 * t, 4)))
    if t >= LAG:
        o_out(t - LAG)
for t in range(12 - LAG, 12):
    o_out(t)
e("s_cmp_ge_u32 s%d, 12" % sI)
e("s_cbranch_scc1 L_last")


def readback(vbase):
    e("s_waitcnt lgkmcnt(0)")
    for j in range(6):
        e("ds_read_b128 %s, v%d offset:%d" % (vr(vbase + 4 * j, 4), vR, j * 1024))


e("s_cmp_ge_u32 s%d, 8" % sI)
e("s_cbranch_scc1 L_rb2")
e("s_cmp_ge_u32 s%d, 4" % sI)
e("s_cbranch_scc1 L_rb1")
for m in range(4):
    e("v_add_u32 v%d, %d, v%d" % (vW + m, 4 * BLK, vW + m))
e("s_waitcnt lgkmcnt(0)")
e("ds_write_b32 v%d, v%d" % (vDoneA, vCnt))
e("s_branch L_rbdone")
e("L_rb1:")
readback(vHold)
e("s_branch L_rbdone")
e("L_rb2:")
readback(vHold + 24)
e("L_rbdone:")
e("s_add_u32 s%d, s%d, %d" % (sI, sI, NC))
for r in range(18):
    e("v_mov_b32 v%d, v%d" % (vP + r, vP + 6 + r))
for m in range(4):
    e("v_add_u32 v%d, %d, v%d" % (vAV + m, 4 * BLK, vAV + m))
e("s_waitcnt lgkmcnt(0)")
stamp()
e("s_branch L_pv")
e("L_last:")
if opts["stamp"] == 3 and not EARLY:
    stamp(key=True)
readback(vAcc)
if opts["late"]:
    e("s_mov_b32 s%d, %d" % (sNeed, opts["late"]))
    poll()
for h in range(EARLY, 3):
    if h == 2:
        e("s_waitcnt lgkmcnt(0)")
    store_block(vHold + 24 * h if h < 2 else vAcc)
    if h < 2:
        e("s_add_i32 s%d, s%d, s%d" % (sSt, sSt, sSt4))
stamp(key=True)
e("L_fin:")
if opts["stamp"]:
    e("s_waitcnt vmcnt(0)")
    e("s_mov_b32 s%d, 61" % sStampIdx)
    stamp(True)
    e("s_getreg_b32 s62, hwreg(HW_REG_XCC_ID)")
    e("v_writelane_b32 v%d, s62, 62" % vStamp)
    e("s_load_dwordx2 s[%d:%d], s[0:1], 40" % (sQ, sQ + 1))
    e("s_mul_i32 s62, s2, %d" % ((NC + 2) * 256))
    e("v_lshlrev_b32 v0, 2, v0")
    e("s_waitcnt lgkmcnt(0)")
    e("buffer_store_dword v%d, v0, %s, s62 offen" % (vStamp, srd(sQ)))
if opts["spin"]:
    if opts["leak"]:
        if opts["leak"] == "fin":
            e("s_waitcnt vmcnt(0)")
            leak("fin")
        e("s_sub_u32 s62, s64, s60")
        e("s_lshl_b32 s62, s62, 2")
        e("s_add_u32 s%d, s62, %d" % (sLeak, opts["spin"]))
    else:
        e("s_mov_b32 s%d, %d" % (sLeak, opts["spin"]))
    e("L_spin:")
    e("s_sleep 4")
    e("s_memrealtime s[62:63]")
    e("s_waitcnt lgkmcnt(0)")
    e("s_sub_u32 s62, s62, s60")
    e("s_cmp_lt_u32 s62, s%d" % sLeak)
    e("s_cbranch_scc1 L_spin")
e("L_end:")
e("s_endpgm")

hdr = """; Sliding-window (w=32) attention, B=1 H=32 S=2048 D=192, bf16.  Generated by gen6.py (hand-written generator).
; kernarg: q, k, v, out, debug, ws
; One workgroup per 256 query rows.  Wave 0 streams 16-row blocks into LDS by LDS-DMA (all K, all Q, all V);
; waves 1..4 each take every 4th 16-query task (S^T = K Q^T, softmax, O^T = V^T P^T with 16x16 MFMAs).
; Hand-off inside the workgroup through LDS counters; outputs stay in registers until the loads are done.
; @launch grid=(256,1,1) block=(%d,1,1) lds=%d
.amdgcn_target "amdgcn-amd-amdhsa--gfx950"
.text
.globl %s_kernel
.p2align 8
.type %s_kernel,@function
%s_kernel:
""" % (64 * (NC + 2), LDS, NAME, NAME, NAME)

ftr = """
.section .rodata,"a"
.p2align 6
.amdhsa_kernel %s_kernel
  .amdhsa_next_free_vgpr %d
  .amdhsa_next_free_sgpr 72
  .amdhsa_accum_offset %d
  .amdhsa_group_segment_fixed_size 0
  .amdhsa_kernarg_size 48
  .amdhsa_user_sgpr_count 2
  .amdhsa_user_sgpr_kernarg_segment_ptr 1
  .amdhsa_system_sgpr_workgroup_id_x 1
.end_amdhsa_kernel
""" % (NAME, NVGPR, NVGPR)

open(sys.argv[1], "w").write(hdr + "\n".join(L) + ftr)
```

```python
import sys
import struct

NAME = "standalone__sliding_local_fixed_window__prompt"

opts = dict(
    ld="nt",
    st="nt",
    xcdmap=1,
    mimic=1,
    w=24,
    gran=3,
    pre=6,
    open=2,
    early=0,
    rel=48,
    srel=49,
    srel2=0,
    rel2=0,
    emask=0xaa,
    dyn=8,
    w2=36,
    late=0,
    sleep=1,
    prio=3,
    stamp=0,
    spin=0,
    leak="",
)
for a in sys.argv[2:]:
    k, v = a.split("=")
    assert k in opts, k
    opts[k] = v if isinstance(opts[k], str) else int(v, 0)

LD = (" " + opts["ld"].replace("+", " ")) if opts["ld"] else ""
ST = (" " + opts["st"].replace("+", " ")) if opts["st"] else ""
NC = 4

BLK = 6144
KV = 0
QRING = 18 * BLK
FLAG = 26 * BLK
DONE = FLAG + 256
NW = NC + 2
LDS = FLAG + 256 * NW
NBYTES = 32 * 2048 * 384

L = []


def e(s=""):
    L.append("    " + s if s and not s.endswith(":") else s)


def f32hex(x):
    return "0x%08x" % struct.unpack("<I", struct.pack("<f", x))[0]


sQ, sK, sV, sO = 12, 16, 20, 24
sWave = 28
sStepB = 29
sKV0 = 30
sQ0 = 31
sMinOff = 32
sChunk = 33
sI = 34
sF = 35
sM = 36
sScale = 44
sLog2e = 45
sT0, sT1, sT2, sT3, sT4 = 46, 47, 48, 49, 50
sHi = 52
sNeed = 53
sOff = 54
sLds = 55
sInit0, sInit1 = 56, 57
sStampIdx = 58
sLeak = 59

vOff = 1
vLane = 7
vAK = 8
vAQ = 10
vAV = 12
vW = 16
vR = 20
vPM = 21
vFlagA = 25
vDoneA = 26
vF = 27
vCnt = 28
vP = 30
vVb = 56
vVa = 80
vOp = vVa
vAcc = 112
vHold = 160
vQ = 56
vK = 80
vS = 128
vX = 140
vT = 148
vStamp = 208
NVGPR = 216


def srd(s):
    return "s[%d:%d]" % (s, s + 3)


def vr(a, n):
    return "v[%d:%d]" % (a, a + n - 1) if n > 1 else "v%d" % a


def stamp(always=False, key=False):
    if opts["stamp"] == 1 or (opts["stamp"] and always) or (opts["stamp"] >= 3 and key):
        e("s_memrealtime s[62:63]")
        e("s_mov_b32 m0, s%d" % sStampIdx)
        e("s_waitcnt lgkmcnt(0)")
        e("v_writelane_b32 v%d, s62, m0" % vStamp)
        e("s_add_u32 s%d, s%d, 1" % (sStampIdx, sStampIdx))


def leak(name):
    if opts["leak"] != name:
        return
    e("s_waitcnt lgkmcnt(0)")
    e("s_memrealtime s[64:65]")
    e("s_waitcnt lgkmcnt(0)")


def gfun(r):
    return ((((r >> 2) ^ (r >> 3)) & 1) << 2) | (r & 2) | ((r >> 3) & 1)


def g_of(vdst, vrow, vtmp):
    e("v_lshrrev_b32 v%d, 1, v%d" % (vtmp, vrow))
    e("v_xor_b32 v%d, v%d, v%d" % (vtmp, vtmp, vrow))
    e("v_and_b32 v%d, 4, v%d" % (vtmp, vtmp))
    e("v_and_or_b32 v%d, v%d, 2, v%d" % (vtmp, vrow, vtmp))
    e("v_bfe_u32 v%d, v%d, 3, 1" % (vdst, vrow))
    e("v_or_b32 v%d, v%d, v%d" % (vdst, vdst, vtmp))
    e("v_lshlrev_b32 v%d, 4, v%d" % (vdst, vdst))


def dma_block(s_srd, s_off, s_lds, lds, before=None, after=None):
    setm0 = (lambda x: e("s_mov_b32 m0, %d" % x)) if s_lds is None else (lambda x: e("s_add_u32 m0, s%d, %d" % (s_lds, x)))
    for j in range(6):
        if j % 3 == 0:
            setm0(lds + 1024 * j)
        did = before(j) if before else False
        if j % 3 == 0 and not did:
            e("s_nop 0")
        o = " offset:%d" % ((j % 3) * 1024) if j % 3 else ""
        e("buffer_load_dwordx4 v%d, %s, s%d offen%s%s lds" % (vOff + j, srd(s_srd), s_off, o, LD))
        if after:
            after(j)


def pub(cnt):
    if cnt:
        e("v_add_u32 v%d, %d, v%d" % (vCnt, cnt, vCnt))
        e("ds_write_b32 v%d, v%d" % (vFlagA, vCnt))


npoll = [0]


def poll():
    n = npoll[0]
    npoll[0] += 1
    e("s_cmp_ge_u32 s%d, s%d" % (sF, sNeed))
    e("s_cbranch_scc1 L_go%d" % n)
    e("L_poll%d:" % n)
    e("ds_read_b32 v%d, v%d" % (vF, vFlagA))
    e("s_waitcnt lgkmcnt(0)")
    e("v_readfirstlane_b32 s%d, v%d" % (sF, vF))
    e("s_nop 0")
    e("s_cmp_ge_u32 s%d, s%d" % (sF, sNeed))
    e("s_cbranch_scc1 L_go%d" % n)
    if opts["sleep"]:
        e("s_sleep %d" % opts["sleep"])
    e("s_branch L_poll%d" % n)
    e("L_go%d:" % n)


def flag_init(loader=False):
    va = vFlagA if loader else vDoneA
    e("v_lshlrev_b32 v%d, 2, v0" % va)
    e("v_add_u32 v%d, %d, v%d" % (va, FLAG, va))
    if loader:
        e("v_mov_b32 v%d, 0" % vF)
    else:
        e("s_sub_u32 s%d, s%d, 4" % (sT0, sWave))
        e("v_mov_b32 v%d, s%d" % (vF, sT0))
    e("ds_write_b32 v%d, v%d" % (va, vF))


e("s_cmp_ge_u32 s2, 256")
e("s_cbranch_scc1 L_end")
if opts["spin"] or opts["stamp"]:
    e("s_memrealtime s[60:61]")
e("s_load_dwordx2 s[%d:%d], s[0:1], 8" % (sK, sK + 1))
e("s_load_dwordx2 s[%d:%d], s[0:1], 0" % (sQ, sQ + 1))
e("s_load_dwordx2 s[%d:%d], s[0:1], 16" % (sV, sV + 1))
e("s_load_dwordx2 s[%d:%d], s[0:1], 24" % (sO, sO + 1))
e("v_and_b32 v%d, 63, v0" % vLane)
e("v_readfirstlane_b32 s%d, v0" % sWave)
e("v_lshrrev_b32 v65, 1, v%d" % vLane)
e("v_and_b32 v65, 28, v65")
e("s_movk_i32 s%d, 0x50" % sT4)
e("v_mov_b32 v67, 3072")
for j in range(3):
    tab = sum(gfun((8 * j + l) // 3) << (4 * l) for l in range(8))
    assert all(gfun((8 * (j + 3) + l) // 3) == gfun((8 * j + l) // 3) ^ 5 for l in range(8))
    e("s_mov_b32 s%d, 0x%x" % (sT3, tab))
    e("v_bfe_u32 v66, s%d, v65, 3" % sT3)
    e("v_xor_b32 v66, v66, v%d" % vLane)
    e("v_lshlrev_b32 v%d, 4, v66" % (vOff + j))
    e("v_xad_u32 v%d, v%d, s%d, v67" % (vOff + 3 + j, vOff + j, sT4))
e("s_mov_b32 s%d, %d" % (sK + 2, NBYTES))
e("s_mov_b32 s%d, 0x20000" % (sK + 3))
for s in (sQ, sV, sO):
    e("s_mov_b32 s%d, s%d" % (s + 2, sK + 2))
    e("s_mov_b32 s%d, s%d" % (s + 3, sK + 3))
e("s_and_b32 s%d, s2, 7" % sT1)
e("s_lshr_b32 s%d, s2, 6" % sT2)
if opts["xcdmap"] == 1:
    e("s_lshl3_add_u32 s%d, s%d, s%d" % (sT1, sT2, sT1))
else:
    e("s_lshl2_add_u32 s%d, s%d, s%d" % (sT1, sT1, sT2))
e("s_bfe_u32 s%d, s2, 0x30003" % sChunk)
e("s_mul_i32 s%d, s%d, %d" % (sMinOff, sT1, 2048 * 384))
e("s_lshl_b32 s%d, s%d, 4" % (sT2, sChunk))
e("s_bitcmp1_b32 s%d, 0" % sChunk)
e("s_cselect_b32 s%d, -1, 1" % sStepB)
e("s_cselect_b32 s%d, 15, -2" % sKV0)
e("s_cselect_b32 s%d, 15, 0" % sQ0)
e("s_add_i32 s%d, s%d, s%d" % (sKV0, sKV0, sT2))
e("s_add_i32 s%d, s%d, s%d" % (sQ0, sQ0, sT2))
e("s_mulk_i32 s%d, %d" % (sStepB, BLK))
e("s_mulk_i32 s%d, %d" % (sKV0, BLK))
e("s_mulk_i32 s%d, %d" % (sQ0, BLK))
e("s_add_i32 s%d, s%d, s%d" % (sKV0, sKV0, sMinOff))
e("s_add_i32 s%d, s%d, s%d" % (sQ0, sQ0, sMinOff))
e("s_lshr_b32 s%d, s%d, 6" % (sWave, sWave))
if opts["stamp"]:
    e("s_waitcnt lgkmcnt(0)")
    e("v_mov_b32 v%d, 0" % vStamp)
    e("v_writelane_b32 v%d, s60, 0" % vStamp)
    e("s_mov_b32 s%d, 1" % sStampIdx)
    stamp()
if opts["leak"]:
    e("s_waitcnt lgkmcnt(0)")
    e("s_mov_b32 s64, s60")
e("s_cmp_lg_u32 s%d, 0" % sWave)
e("s_cbranch_scc1 L_compute")

W, G, PRE, DYN, W2 = opts["w"], opts["gran"], opts["pre"], opts["dyn"], opts["w2"]
assert 6 % G == 0 and 2 <= PRE <= 6 and W2 <= 36 and W2 + 6 * opts["open"] <= 60
sW = 72
sMaskP, sEncP, sIss, sTk = 70, 71, 69, 68


def enc(w):
    return (w & 15) | ((w >> 4) << 22)


if opts["prio"]:
    e("s_setprio %d" % opts["prio"])
sV0, sV2 = 66, 67
e("s_max_i32 s%d, s%d, s%d" % (sV0, sKV0, sMinOff))
e("s_add_i32 s%d, s%d, s%d" % (sT1, sV0, sStepB))
e("s_add_i32 s%d, s%d, s%d" % (sOff, sKV0, sStepB))
e("s_add_i32 s%d, s%d, s%d" % (sV2, sOff, sStepB))
e("s_waitcnt lgkmcnt(0)")
dma_block(sK, sV0, None, KV)
dma_block(sK, sT1, None, KV + BLK)
for n in range(2, PRE):
    e("s_add_i32 s%d, s%d, s%d" % (sOff, sOff, sStepB))
    dma_block(sK, sOff, None, KV + n * BLK)
e("s_add_i32 s%d, s%d, s%d" % (sOff, sOff, sStepB))
flag_init(True)
e("v_and_b32 v%d, 3, v%d" % (vDoneA, vLane))
e("v_lshlrev_b32 v%d, 8, v%d" % (vDoneA, vDoneA))
e("v_add_u32 v%d, %d, v%d" % (vDoneA, DONE, vDoneA))
e("s_mov_b32 s%d, 0xc0000f" % sMaskP)
e("s_mov_b32 s%d, 0x%x" % (sEncP, enc(W - G)))
e("s_mov_b32 s%d, %d" % (sIss, 6 * PRE + 3))
e("s_mov_b32 s%d, %d" % (sTk, PRE - 25 - 3))
e("s_mov_b32 s%d, s%d" % (sT0, sOff))
e("s_mov_b32 s%d, %d" % (sLds, PRE * BLK))
e("s_mov_b32 s%d, %d" % (sI, PRE))
e("s_mov_b64 s[%d:%d], s[%d:%d]" % (sW, sW + 1, sK, sK + 1))
e("s_mov_b32 s%d, s%d" % (sW + 2, sK + 2))
e("s_mov_b32 s%d, s%d" % (sW + 3, sK + 3))
events = {PRE + 1, 18, 26, 34, 36, 52} | ({52 - opts["open"]} if opts["open"] else set())
evm = sum(1 << x for x in events)
sEv = 76
e("s_mov_b32 s%d, 0x%x" % (sEv, evm & 0xffffffff))
e("s_mov_b32 s%d, 0x%x" % (sEv + 1, evm >> 32))
e("s_waitcnt lgkmcnt(0)")
e("s_barrier")
e("L_ld:")
assert G == 3


def look():
    e("s_getreg_b32 s%d, hwreg(HW_REG_IB_STS)" % sT3)
    e("s_and_b32 s%d, s%d, s%d" % (sT3, sT3, sMaskP))
    e("s_cmp_le_u32 s%d, s%d" % (sT3, sEncP))


def before(j):
    if j % G:
        return False
    look()
    e("s_cbranch_scc0 L_dw%d" % j)
    e("L_dk%d:" % j)
    return True


def after(j):
    if j == 2:
        e("ds_read_b32 v%d, v%d" % (vF, vDoneA))
    if j == 5:
        e("s_lshr_b32 s%d, s%d, 18" % (sT4, sT3))
        e("s_add_u32 s%d, s%d, s%d" % (sT3, sT3, sT4))
        e("s_and_b32 s%d, s%d, 63" % (sT3, sT3))
        e("s_sub_u32 s%d, s%d, s%d" % (sT3, sIss, sT3))
        e("v_mov_b32 v%d, s%d" % (vCnt, sT3))
        e("ds_write_b32 v%d, v%d" % (vFlagA, vCnt))


dma_block(sW, sT0, sLds, 0, before, after)
e("s_add_u32 s%d, s%d, 6" % (sIss, sIss))
e("s_add_u32 s%d, s%d, 1" % (sI, sI))
e("s_add_i32 s%d, s%d, s%d" % (sT0, sT0, sStepB))
e("s_add_u32 s%d, s%d, %d" % (sLds, sLds, BLK))
e("s_waitcnt lgkmcnt(1)")
e("v_cmp_ge_i32 vcc, s%d, v%d" % (sTk, vF))
e("s_add_i32 s%d, s%d, 1" % (sTk, sTk))
e("s_cbranch_vccnz L_free_again")
e("L_free_ok:")
e("s_bitcmp1_b64 s[%d:%d], s%d" % (sEv, sEv + 1, sI))
e("s_cbranch_scc0 L_ld")
e("s_cmp_eq_u32 s%d, 18" % sI)
e("s_cselect_b64 s[%d:%d], s[%d:%d], s[%d:%d]" % (sW, sW + 1, sQ, sQ + 1, sW, sW + 1))
e("s_cselect_b32 s%d, s%d, s%d" % (sT0, sQ0, sT0))
e("s_cmp_eq_u32 s%d, 26" % sI)
e("s_cselect_b32 s%d, %d, s%d" % (sLds, QRING, sLds))
e("s_cmp_eq_u32 s%d, 34" % sI)
e("s_cselect_b64 s[%d:%d], s[%d:%d], s[%d:%d]" % (sW, sW + 1, sV, sV + 1, sW, sW + 1))
e("s_cselect_b32 s%d, s%d, s%d" % (sT0, sV0, sT0))
e("s_cselect_b32 s%d, 0, s%d" % (sLds, sLds))
e("s_cselect_b32 s%d, -2, s%d" % (sTk, sTk))
e("s_cmp_eq_u32 s%d, 36" % sI)
e("s_cselect_b32 s%d, s%d, s%d" % (sT0, sV2, sT0))
if opts["open"]:
    e("s_cmp_eq_u32 s%d, %d" % (sI, 52 - opts["open"]))
    e("s_cselect_b32 s%d, s%d, s%d" % (sEncP, sMaskP, sEncP))
e("s_cmp_lt_u32 s%d, 52" % sI)
e("s_cbranch_scc1 L_ld")
stamp(key=True)
leak("ldiss")
for b in range(51 - (W2 + 6 * opts["open"]) // 6, 52):
    vc = (vCnt, vF)[b & 1]
    e("v_mov_b32 v%d, %d" % (vc, 6 * (b + 1)))
    e("s_waitcnt vmcnt(%d)" % (6 * (51 - b)))
    e("ds_write_b32 v%d, v%d" % (vFlagA, vc))
stamp(key=True)
leak("lddone")
e("s_branch L_fin")
for j in (0, 3):
    e("L_dw%d:" % j)
    for r in range(DYN - 1):
        look()
        e("s_cbranch_scc1 L_dk%d" % j)
    e("s_waitcnt vmcnt(%d)" % (W2 - G))
    e("s_branch L_dk%d" % j)
e("L_free_again:")
e("ds_read_b32 v%d, v%d" % (vF, vDoneA))
e("s_waitcnt lgkmcnt(0)")
e("v_cmp_gt_i32 vcc, s%d, v%d" % (sTk, vF))
e("s_cbranch_vccnz L_free_again")
e("s_branch L_free_ok")

vLo = 64


e("L_storer:")
e("v_and_b32 v%d, 3, v%d" % (vDoneA, vLane))
e("v_lshlrev_b32 v%d, 8, v%d" % (vDoneA, vDoneA))
e("v_add_u32 v%d, %d, v%d" % (vDoneA, DONE, vDoneA))
e("v_lshlrev_b32 v%d, 4, v%d" % (vR, vLane))
e("v_add_u32 v%d, %d, v%d" % (vR, QRING, vR))
if opts["srel2"]:
    e("s_getreg_b32 s%d, hwreg(HW_REG_XCC_ID)" % sNeed)
    e("s_and_b32 s%d, s%d, 7" % (sNeed, sNeed))
    e("s_bitcmp1_b32 %d, s%d" % (opts["emask"], sNeed))
    e("s_cselect_b32 s%d, %d, %d" % (sNeed, opts["srel2"], opts["srel"]))
    e("s_mul_i32 s%d, s%d, 6" % (sNeed, sNeed))
else:
    e("s_mov_b32 s%d, %d" % (sNeed, 6 * opts["srel"]))
e("L_ofree:")
e("s_sleep 2")
e("ds_read_b32 v%d, v%d" % (vF, vDoneA))
e("s_waitcnt lgkmcnt(0)")
e("v_cmp_gt_i32 vcc, 32, v%d" % vF)
e("s_cbranch_vccnz L_ofree")
for j in range(24):
    if j == 12:
        e("s_waitcnt lgkmcnt(0)")
    e("ds_read_b128 %s, v%d offset:%d" % (vr(vLo + 4 * j, 4), vR, j * 1024))
e("s_waitcnt lgkmcnt(0)")
poll()
stamp(key=True)
for t in range(4):
    for j in range(6):
        o = " offset:%d" % ((j % 3) * 1024) if j % 3 else ""
        e("buffer_store_dwordx4 %s, v%d, %s, s%d offen%s%s" % (vr(vLo + 24 * t + 4 * j, 4), vOff + j, srd(sO), sQ0, o, ST))
    e("s_add_i32 s%d, s%d, s%d" % (sQ0, sQ0, sStepB))
stamp(key=True)
e("s_branch L_fin")

e("L_compute:")
flag_init()
e("s_waitcnt lgkmcnt(0)")
e("s_barrier")
e("s_sub_u32 s%d, s%d, 1" % (sI, sWave))
e("s_mul_i32 s%d, s%d, %d" % (sT3, sI, BLK))
e("s_add_u32 s%d, s%d, %d" % (sT4, sT3, QRING + 4 * BLK))
e("s_mov_b32 s%d, 0" % sF)
e("v_mov_b32 v%d, %d" % (vFlagA, FLAG))
e("s_cmp_eq_u32 s%d, 5" % sWave)
e("s_cbranch_scc1 L_storer")
e("v_and_b32 v66, 15, v%d" % vLane)
e("v_lshrrev_b32 v67, 4, v%d" % vLane)
g_of(70, 66, 71)
e("v_mul_u32_u24 v68, 384, v66")
e("v_lshlrev_b32 v69, 4, v67")
e("v_xor_b32 v69, v69, v70")
e("v_add3_u32 v%d, v68, v69, s%d" % (vAK, sT3))
e("v_xor_b32 v%d, 64, v%d" % (vAK + 1, vAK))
e("v_add_u32 v%d, %d, v%d" % (vAQ, QRING, vAK))
e("v_add_u32 v%d, %d, v%d" % (vAQ + 1, QRING, vAK + 1))
e("v_lshrrev_b32 v69, 1, v67")
e("v_lshlrev_b32 v69, 4, v69")
e("v_xor_b32 v69, v69, v70")
e("v_and_b32 v71, 1, v67")
e("v_lshl_add_u32 v69, v71, 3, v69")
e("v_add3_u32 v%d, v68, v69, s%d" % (vW, sT4))
e("v_subrev_u32 v%d, %d, v%d" % (vW, 4 * BLK, vW))
for m in range(1, 4):
    e("v_xor_b32 v%d, %d, v%d" % (vW + m, 32 * m, vW))
e("v_lshlrev_b32 v69, 2, v67")
for i in range(4):
    e("v_add_u32 v71, %d, v69" % i)
    e("v_cmp_le_u32 s[%d:%d], v71, v66" % (sM + 2 * i, sM + 2 * i + 1))
e("s_ashr_i32 s%d, s%d, 31" % (sT0, sStepB))
e("s_mov_b32 s%d, s%d" % (sT1, sT0))
e("s_nop 1")
for i in range(4):
    e("s_xor_b64 s[%d:%d], s[%d:%d], s[%d:%d]" % (sM + 2 * i, sM + 2 * i + 1, sM + 2 * i, sM + 2 * i + 1, sT0, sT1))
e("s_mov_b32 s%d, 0xffff0000" % sHi)
e("v_mov_b32 v72, 0xffff")
e("v_mov_b32 v73, s%d" % sHi)
for k in range(2):
    e("v_cndmask_b32 v74, 0, v72, s[%d:%d]" % (sM + 4 * k, sM + 4 * k + 1))
    e("v_cndmask_b32 v75, 0, v73, s[%d:%d]" % (sM + 4 * k + 2, sM + 4 * k + 3))
    e("v_or_b32 v%d, v74, v75" % (vPM + k))
    e("v_not_b32 v%d, v%d" % (vPM + 2 + k, vPM + k))
e("v_lshrrev_b32 v69, 2, v%d" % vLane)
g_of(70, 69, 71)
e("v_mul_u32_u24 v68, 384, v69")
e("v_bfe_u32 v71, v%d, 1, 1" % vLane)
e("v_lshlrev_b32 v71, 4, v71")
e("v_xor_b32 v70, v70, v71")
e("v_and_b32 v71, 1, v%d" % vLane)
e("v_lshl_add_u32 v70, v71, 3, v70")
e("v_add3_u32 v%d, v68, v70, s%d" % (vAV, sT3))
for m in range(1, 4):
    e("v_xor_b32 v%d, %d, v%d" % (vAV + m, 32 * m, vAV))
e("v_lshlrev_b32 v%d, 4, v%d" % (vR, vLane))
e("v_add_u32 v%d, s%d, v%d" % (vR, sT4, vR))
e("s_cmp_eq_u32 s%d, 0" % sChunk)
e("s_cselect_b32 s%d, 0xff800000, 0" % sT2)
e("s_cmp_lt_u32 s%d, 2" % sI)
e("s_cselect_b32 s%d, s%d, 0" % (sInit0, sT2))
e("s_cmp_eq_u32 s%d, 0" % sI)
e("s_cselect_b32 s%d, s%d, 0" % (sInit1, sT2))
e("s_mov_b32 s%d, %s" % (sScale, f32hex(192 ** -0.5)))
if opts["mimic"]:
    e("s_mov_b32 s%d, %s" % (sLog2e, f32hex(1.4426950408889634)))
else:
    e("s_mov_b32 s%d, %s" % (sLog2e, f32hex(1.4426950408889634 * 192 ** -0.5)))
e("s_movk_i32 s%d, %d" % (sT3, 4 * BLK))

e("L_qk:")
for i in range(4):
    e("v_mov_b32 v%d, s%d" % (vS + i, sInit0))
    e("v_mov_b32 v%d, s%d" % (vS + 4 + i, sInit1))
e("s_mov_b32 s%d, 0" % sInit0)
e("s_mov_b32 s%d, 0" % sInit1)
for r in range(18):
    e("v_mov_b32 v%d, v%d" % (vP + r, vP + 6 + r))
e("s_add_u32 s%d, s%d, 1" % (sT1, sI))
e("v_mov_b32 v%d, s%d" % (vCnt, sT1))
e("s_add_u32 s%d, s%d, 19" % (sNeed, sI))
e("s_mul_i32 s%d, s%d, 6" % (sNeed, sNeed))
poll()
stamp()


def qk_reads(i):
    o = (i >> 1) * 128
    e("ds_read_b128 %s, v%d offset:%d" % (vr(vQ + 4 * i, 4), vAQ + (i & 1), o))
    for j in range(3):
        e("ds_read_b128 %s, v%d offset:%d" % (vr(vK + 12 * (i & 3) + 4 * j, 4), vAK + (i & 1), o + j * BLK))


for i in range(3):
    qk_reads(i)
for k in range(6):
    e("s_waitcnt lgkmcnt(%d)" % (4 * min(2, 5 - k)))
    if k == 5:
        e("ds_write_b32 v%d, v%d" % (vDoneA, vCnt))
    for j in range(3):
        c = "0" if (k == 0 and j == 2) else vr(vS + 4 * j, 4)
        e("v_mfma_f32_16x16x32_bf16 %s, %s, %s, %s" % (vr(vS + 4 * j, 4), vr(vK + 12 * (k & 3) + 4 * j, 4), vr(vQ + 4 * k, 4), c))
    if k + 3 < 6:
        qk_reads(k + 3)
e("v_add_u32 v%d, %d, v%d" % (vAK, 4 * BLK, vAK))
e("v_add_u32 v%d, %d, v%d" % (vAK + 1, 4 * BLK, vAK + 1))
e("v_add_u32 v%d, s%d, v%d" % (vAQ, sT3, vAQ))
e("v_add_u32 v%d, s%d, v%d" % (vAQ + 1, sT3, vAQ + 1))
e("s_sub_i32 s%d, 0, s%d" % (sT3, sT3))
e("s_add_u32 s%d, s%d, %d" % (sI, sI, NC))
e("s_nop 2")
for i in range(4):
    e("v_cndmask_b32 v%d, v%d, v%d, s[%d:%d]" % (vX + i, vS + i, vS + 8 + i, sM + 2 * i, sM + 2 * i + 1))
xs = [vX + i for i in range(4)] + [vS + 4 + i for i in range(4)]
ys = [vX + i for i in range(8)]
if opts["mimic"]:
    for p in range(4):
        e("v_cvt_pk_bf16_f32 v%d, v%d, v%d" % (vT + p, xs[2 * p], xs[2 * p + 1]))
    for p in range(4):
        e("v_lshlrev_b32 v%d, 16, v%d" % (ys[2 * p], vT + p))
        e("v_and_b32 v%d, s%d, v%d" % (ys[2 * p + 1], sHi, vT + p))
    for p in range(8):
        e("v_mul_f32 v%d, s%d, v%d" % (ys[p], sScale, ys[p]))
    for p in range(4):
        e("v_cvt_pk_bf16_f32 v%d, v%d, v%d" % (vT + p, ys[2 * p], ys[2 * p + 1]))
    for p in range(4):
        e("v_lshlrev_b32 v%d, 16, v%d" % (ys[2 * p], vT + p))
        e("v_and_b32 v%d, s%d, v%d" % (ys[2 * p + 1], sHi, vT + p))
else:
    ys = xs
m, m2 = vT + 4, vT + 5
e("v_max3_f32 v%d, v%d, v%d, v%d" % (m, ys[0], ys[1], ys[2]))
e("v_max3_f32 v%d, v%d, v%d, v%d" % (m2, ys[3], ys[4], ys[5]))
e("v_max3_f32 v%d, v%d, v%d, v%d" % (m, m, ys[6], ys[7]))
e("v_max_f32 v%d, v%d, v%d" % (m, m, m2))
e("v_mov_b32 v%d, v%d" % (m2, m))
e("s_nop 1")
e("v_permlane16_swap_b32 v%d, v%d" % (m, m2))
e("s_nop 0")
e("v_max_f32 v%d, v%d, v%d" % (m, m, m2))
e("v_mov_b32 v%d, v%d" % (m2, m))
e("s_nop 1")
e("v_permlane32_swap_b32 v%d, v%d" % (m, m2))
e("s_nop 0")
e("v_max_f32 v%d, v%d, v%d" % (m, m, m2))
e("v_mul_f32 v%d, s%d, v%d" % (m, sLog2e, m))
es = [vX + i for i in range(8)]
for p in range(8):
    e("v_fma_f32 v%d, v%d, s%d, -v%d" % (es[p], ys[p], sLog2e, m))
for p in range(8):
    e("v_exp_f32 v%d, v%d" % (es[p], es[p]))
sm, sm2 = vT + 6, vT + 7
e("v_add_f32 v%d, v%d, v%d" % (sm, es[0], es[1]))
e("v_add_f32 v%d, v%d, v%d" % (sm2, es[2], es[3]))
e("v_add_f32 v%d, v%d, v%d" % (sm, sm, es[4]))
e("v_add_f32 v%d, v%d, v%d" % (sm2, sm2, es[5]))
e("v_add_f32 v%d, v%d, v%d" % (sm, sm, es[6]))
e("v_add_f32 v%d, v%d, v%d" % (sm2, sm2, es[7]))
e("v_add_f32 v%d, v%d, v%d" % (sm, sm, sm2))
e("v_mov_b32 v%d, v%d" % (sm2, sm))
e("s_nop 1")
e("v_permlane16_swap_b32 v%d, v%d" % (sm, sm2))
e("s_nop 0")
e("v_add_f32 v%d, v%d, v%d" % (sm, sm, sm2))
e("v_mov_b32 v%d, v%d" % (sm2, sm))
e("s_nop 1")
e("v_permlane32_swap_b32 v%d, v%d" % (sm, sm2))
e("s_nop 0")
e("v_add_f32 v%d, v%d, v%d" % (sm, sm, sm2))
e("v_rcp_f32 v%d, v%d" % (sm, sm))
e("s_nop 0")
for p in range(8):
    e("v_mul_f32 v%d, v%d, v%d" % (es[p], es[p], sm))
PN = vP + 18
e("v_cvt_pk_bf16_f32 v%d, v%d, v%d" % (vT, es[0], es[1]))
e("v_cvt_pk_bf16_f32 v%d, v%d, v%d" % (vT + 1, es[2], es[3]))
e("v_cvt_pk_bf16_f32 v%d, v%d, v%d" % (PN + 2, es[4], es[5]))
e("v_cvt_pk_bf16_f32 v%d, v%d, v%d" % (PN + 3, es[6], es[7]))
e("v_and_b32 v%d, v%d, v%d" % (PN, vT, vPM + 2))
e("v_and_b32 v%d, v%d, v%d" % (PN + 1, vT + 1, vPM + 3))
e("v_and_b32 v%d, v%d, v%d" % (PN + 4, vT, vPM))
e("v_and_b32 v%d, v%d, v%d" % (PN + 5, vT + 1, vPM + 1))
stamp()
e("s_cmp_lt_u32 s%d, 16" % sI)
e("s_cbranch_scc1 L_qk")

e("s_sub_u32 s%d, s%d, 16" % (sI, sI))
EARLY = opts["early"]
assert not EARLY
sSt, sSt4, sRel = 66, 67, 68
e("s_mul_i32 s%d, s%d, s%d" % (sSt, sI, sStepB))
e("s_add_i32 s%d, s%d, s%d" % (sSt, sSt, sQ0))
e("s_lshl_b32 s%d, s%d, 2" % (sSt4, sStepB))
e("s_add_i32 s%d, s%d, s%d" % (sSt, sSt, sSt4))
e("v_mov_b32 v%d, 32" % vCnt)
if EARLY and opts["rel2"]:
    e("s_getreg_b32 s%d, hwreg(HW_REG_XCC_ID)" % sRel)
    e("s_and_b32 s%d, s%d, 7" % (sRel, sRel))
    e("s_bitcmp1_b32 %d, s%d" % (opts["emask"], sRel))
    e("s_cselect_b32 s%d, %d, %d" % (sRel, opts["rel2"], opts["rel"]))
elif EARLY:
    e("s_mov_b32 s%d, %d" % (sRel, opts["rel"]))


def store_block(vb):
    for j in range(6):
        o = " offset:%d" % ((j % 3) * 1024) if j % 3 else ""
        e("buffer_store_dwordx4 %s, v%d, %s, s%d offen%s%s" % (vr(vb + 4 * j, 4), vOff + j, srd(sO), sSt, o, ST))


e("L_pv:")
if EARLY:
    e("s_cmp_lt_u32 s%d, 12" % sI)
    e("s_cbranch_scc1 L_noearly")
    e("s_mov_b32 s%d, s%d" % (sNeed, sRel))
    poll()
    if opts["stamp"] == 3:
        stamp(key=True)
    for h in range(EARLY):
        store_block(vHold + 24 * h)
        e("s_add_i32 s%d, s%d, s%d" % (sSt, sSt, sSt4))
    e("L_noearly:")
e("s_add_u32 s%d, s%d, 36" % (sNeed, sI))
e("s_mul_i32 s%d, s%d, 6" % (sNeed, sNeed))
poll()
stamp()


def va_reads(t):
    for j in range(2):
        e("ds_read_b64_tr_b16 %s, v%d offset:%d" % (vr(vVa + 4 * (t & 7) + 2 * j, 2), vAV + (t & 3), (t >> 2) * 128 + j * BLK))


for t in range(6):
    va_reads(t)
for t in range(12):
    e("s_waitcnt lgkmcnt(%d)" % (2 * min(5, 11 - t)))
    e("v_mfma_f32_16x16x32_bf16 %s, %s, %s, 0" % (vr(vAcc + 4 * t, 4), vr(vVa + 4 * (t & 7), 4), vr(vP, 4)))
    if t + 6 < 12:
        va_reads(t + 6)
e("s_add_u32 s%d, s%d, 6" % (sNeed, sNeed))
poll()
stamp()
for t in range(12):
    e("ds_read_b64_tr_b16 %s, v%d offset:%d" % (vr(vVb + 2 * t, 2), vAV + (t & 3), (t >> 2) * 128 + 2 * BLK))


def o_out(t):
    e("v_cvt_pk_bf16_f32 v%d, v%d, v%d" % (vOp + 2 * t, vAcc + 4 * t, vAcc + 4 * t + 1))
    e("v_cvt_pk_bf16_f32 v%d, v%d, v%d" % (vOp + 2 * t + 1, vAcc + 4 * t + 2, vAcc + 4 * t + 3))
    e("ds_write_b64 v%d, %s offset:%d" % (vW + (t & 3), vr(vOp + 2 * t, 2), (t >> 2) * 128))


LAG = 4
for t in range(12):
    nwr = max(0, t - LAG)
    e("s_waitcnt lgkmcnt(%d)" % min(15, 11 - t + nwr))
    e("v_mfma_f32_16x16x16_bf16 %s, %s, %s, %s" % (vr(vAcc + 4 * t, 4), vr(vVb + 2 * t, 2), vr(vP + 4, 2), vr(vAcc + 4 * t, 4)))
    if t >= LAG:
        o_out(t - LAG)
for t in range(12 - LAG, 12):
    o_out(t)
e("s_cmp_ge_u32 s%d, 12" % sI)
e("s_cbranch_scc1 L_last")


def readback(vbase):
    e("s_waitcnt lgkmcnt(0)")
    for j in range(6):
        e("ds_read_b128 %s, v%d offset:%d" % (vr(vbase + 4 * j, 4), vR, j * 1024))


e("s_cmp_ge_u32 s%d, 8" % sI)
e("s_cbranch_scc1 L_rb2")
e("s_cmp_ge_u32 s%d, 4" % sI)
e("s_cbranch_scc1 L_rb1")
for m in range(4):
    e("v_add_u32 v%d, %d, v%d" % (vW + m, 4 * BLK, vW + m))
e("s_waitcnt lgkmcnt(0)")
e("ds_write_b32 v%d, v%d" % (vDoneA, vCnt))
e("s_branch L_rbdone")
e("L_rb1:")
readback(vHold)
e("s_branch L_rbdone")
e("L_rb2:")
readback(vHold + 24)
e("L_rbdone:")
e("s_add_u32 s%d, s%d, %d" % (sI, sI, NC))
for r in range(18):
    e("v_mov_b32 v%d, v%d" % (vP + r, vP + 6 + r))
for m in range(4):
    e("v_add_u32 v%d, %d, v%d" % (vAV + m, 4 * BLK, vAV + m))
e("s_waitcnt lgkmcnt(0)")
stamp()
e("s_branch L_pv")
e("L_last:")
if opts["stamp"] == 3 and not EARLY:
    stamp(key=True)
readback(vAcc)
if opts["late"]:
    e("s_mov_b32 s%d, %d" % (sNeed, 6 * opts["late"]))
    poll()
for h in range(EARLY, 3):
    if h == 2:
        e("s_waitcnt lgkmcnt(0)")
    store_block(vHold + 24 * h if h < 2 else vAcc)
    if h < 2:
        e("s_add_i32 s%d, s%d, s%d" % (sSt, sSt, sSt4))
stamp(key=True)
e("L_fin:")
if opts["stamp"]:
    e("s_waitcnt vmcnt(0)")
    e("s_mov_b32 s%d, 61" % sStampIdx)
    stamp(True)
    e("s_getreg_b32 s62, hwreg(HW_REG_XCC_ID)")
    e("v_writelane_b32 v%d, s62, 62" % vStamp)
    e("s_load_dwordx2 s[%d:%d], s[0:1], 40" % (sQ, sQ + 1))
    e("s_mov_b32 s%d, %d" % (sQ + 2, NBYTES))
    e("s_mul_i32 s62, s2, %d" % (NW * 256))
    e("v_lshlrev_b32 v0, 2, v0")
    e("s_waitcnt lgkmcnt(0)")
    e("buffer_store_dword v%d, v0, %s, s62 offen" % (vStamp, srd(sQ)))
if opts["spin"]:
    if opts["leak"]:
        if opts["leak"] == "fin":
            e("s_waitcnt vmcnt(0)")
            leak("fin")
        e("s_sub_u32 s62, s64, s60")
        e("s_lshl_b32 s62, s62, 2")
        e("s_add_u32 s%d, s62, %d" % (sLeak, opts["spin"]))
    else:
        e("s_mov_b32 s%d, %d" % (sLeak, opts["spin"]))
    e("L_spin:")
    e("s_sleep 4")
    e("s_memrealtime s[62:63]")
    e("s_waitcnt lgkmcnt(0)")
    e("s_sub_u32 s62, s62, s60")
    e("s_cmp_lt_u32 s62, s%d" % sLeak)
    e("s_cbranch_scc1 L_spin")
e("L_end:")
e("s_endpgm")

hdr = """; Sliding-window (w=32) attention, B=1 H=32 S=2048 D=192, bf16.  Generated by gen9.py (hand-written generator).
; kernarg: q, k, v, out, debug, ws
; One workgroup per 256 query rows.  Wave 0 streams 16-row blocks into LDS by LDS-DMA (all K, all Q, all V);
; waves 1..4 each take every 4th 16-query task (S^T = K Q^T, softmax, O^T = V^T P^T with 16x16 MFMAs).
; Hand-off inside the workgroup through LDS counters; outputs stay in registers until the loads are done.
; @launch grid=(256,1,1) block=(%d,1,1) lds=%d
.amdgcn_target "amdgcn-amd-amdhsa--gfx950"
.text
.globl %s_kernel
.p2align 8
.type %s_kernel,@function
%s_kernel:
""" % (64 * NW, LDS, NAME, NAME, NAME)

ftr = """
.section .rodata,"a"
.p2align 6
.amdhsa_kernel %s_kernel
  .amdhsa_next_free_vgpr %d
  .amdhsa_next_free_sgpr 80
  .amdhsa_accum_offset %d
  .amdhsa_group_segment_fixed_size 0
  .amdhsa_kernarg_size 48
  .amdhsa_user_sgpr_count 2
  .amdhsa_user_sgpr_kernarg_segment_ptr 1
  .amdhsa_system_sgpr_workgroup_id_x 1
.end_amdhsa_kernel
""" % (NAME, NVGPR, NVGPR)

open(sys.argv[1], "w").write(hdr + "\n".join(L) + ftr)
```

```python
import sys
import struct

NAME = "standalone__sliding_local_fixed_window__prompt"

opts = dict(
    ld="nt",
    st="nt",
    xcdmap=1,
    mimic=1,
    w=21,
    gran=3,
    pre=6,
    open=2,
    early=0,
    rel=48,
    srel=24,
    srel2=0,
    rel2=0,
    emask=0xaa,
    dyn=7,
    w2=36,
    boost=0,
    blen=5,
    bst=16,
    late=0,
    sleep=1,
    prio=3,
    stamp=0,
    spin=0,
    leak="",
)
for a in sys.argv[2:]:
    k, v = a.split("=")
    assert k in opts, k
    opts[k] = v if isinstance(opts[k], str) else int(v, 0)

LD = (" " + opts["ld"].replace("+", " ")) if opts["ld"] else ""
ST = (" " + opts["st"].replace("+", " ")) if opts["st"] else ""
NC = 4

BLK = 6144
KV = 0
QRING = 18 * BLK
FLAG = 26 * BLK
DONE = FLAG + 256
NW = NC + 2
LDS = FLAG + 256 * NW
NBYTES = 32 * 2048 * 384

L = []


def e(s=""):
    L.append("    " + s if s and not s.endswith(":") else s)


def f32hex(x):
    return "0x%08x" % struct.unpack("<I", struct.pack("<f", x))[0]


sQ, sK, sV, sO = 12, 16, 20, 24
sWave = 28
sStepB = 29
sKV0 = 30
sQ0 = 31
sMinOff = 32
sChunk = 33
sI = 34
sF = 35
sM = 36
sScale = 44
sLog2e = 45
sT0, sT1, sT2, sT3, sT4 = 46, 47, 48, 49, 50
sHi = 52
sNeed = 53
sOff = 54
sLds = 55
sInit0, sInit1 = 56, 57
sStampIdx = 58
sLeak = 59

vOff = 1
vLane = 7
vAK = 8
vAQ = 10
vAV = 12
vW = 16
vR = 20
vPM = 21
vFlagA = 25
vDoneA = 26
vF = 27
vCnt = 28
vP = 30
vVb = 56
vVa = 80
vOp = vVa
vAcc = 112
vHold = 160
vQ = 56
vK = 80
vS = 128
vX = 140
vT = 148
vStamp = 208
NVGPR = 216


def srd(s):
    return "s[%d:%d]" % (s, s + 3)


def vr(a, n):
    return "v[%d:%d]" % (a, a + n - 1) if n > 1 else "v%d" % a


def stamp(always=False, key=False):
    if opts["stamp"] == 1 or (opts["stamp"] and always) or (opts["stamp"] >= 3 and key):
        e("s_memrealtime s[62:63]")
        e("s_mov_b32 m0, s%d" % sStampIdx)
        e("s_waitcnt lgkmcnt(0)")
        e("v_writelane_b32 v%d, s62, m0" % vStamp)
        e("s_add_u32 s%d, s%d, 1" % (sStampIdx, sStampIdx))


def leak(name):
    if opts["leak"] != name:
        return
    e("s_waitcnt lgkmcnt(0)")
    e("s_memrealtime s[64:65]")
    e("s_waitcnt lgkmcnt(0)")


def gfun(r):
    return ((((r >> 2) ^ (r >> 3)) & 1) << 2) | (r & 2) | ((r >> 3) & 1)


def g_of(vdst, vrow, vtmp):
    e("v_lshrrev_b32 v%d, 1, v%d" % (vtmp, vrow))
    e("v_xor_b32 v%d, v%d, v%d" % (vtmp, vtmp, vrow))
    e("v_and_b32 v%d, 4, v%d" % (vtmp, vtmp))
    e("v_and_or_b32 v%d, v%d, 2, v%d" % (vtmp, vrow, vtmp))
    e("v_bfe_u32 v%d, v%d, 3, 1" % (vdst, vrow))
    e("v_or_b32 v%d, v%d, v%d" % (vdst, vdst, vtmp))
    e("v_lshlrev_b32 v%d, 4, v%d" % (vdst, vdst))


def dma_block(s_srd, s_off, s_lds, lds, before=None, after=None):
    setm0 = (lambda x: e("s_mov_b32 m0, %d" % x)) if s_lds is None else (lambda x: e("s_add_u32 m0, s%d, %d" % (s_lds, x)))
    for j in range(6):
        if j % 3 == 0:
            setm0(lds + 1024 * j)
        did = before(j) if before else False
        if j % 3 == 0 and not did:
            e("s_nop 0")
        o = " offset:%d" % ((j % 3) * 1024) if j % 3 else ""
        e("buffer_load_dwordx4 v%d, %s, s%d offen%s%s lds" % (vOff + j, srd(s_srd), s_off, o, LD))
        if after:
            after(j)


def pub(cnt):
    if cnt:
        e("v_add_u32 v%d, %d, v%d" % (vCnt, cnt, vCnt))
        e("ds_write_b32 v%d, v%d" % (vFlagA, vCnt))


npoll = [0]


def poll():
    n = npoll[0]
    npoll[0] += 1
    e("s_cmp_ge_u32 s%d, s%d" % (sF, sNeed))
    e("s_cbranch_scc1 L_go%d" % n)
    e("L_poll%d:" % n)
    e("ds_read_b32 v%d, v%d" % (vF, vFlagA))
    e("s_waitcnt lgkmcnt(0)")
    e("v_readfirstlane_b32 s%d, v%d" % (sF, vF))
    e("s_nop 0")
    e("s_cmp_ge_u32 s%d, s%d" % (sF, sNeed))
    e("s_cbranch_scc1 L_go%d" % n)
    if opts["sleep"]:
        e("s_sleep %d" % opts["sleep"])
    e("s_branch L_poll%d" % n)
    e("L_go%d:" % n)


def flag_init(loader=False):
    va = vFlagA if loader else vDoneA
    e("v_lshlrev_b32 v%d, 2, v0" % va)
    e("v_add_u32 v%d, %d, v%d" % (va, FLAG, va))
    if loader:
        e("v_mov_b32 v%d, 0" % vF)
    else:
        e("s_sub_u32 s%d, s%d, 4" % (sT0, sWave))
        e("v_mov_b32 v%d, s%d" % (vF, sT0))
    e("ds_write_b32 v%d, v%d" % (va, vF))


e("s_cmp_ge_u32 s2, 256")
e("s_cbranch_scc1 L_end")
if opts["spin"] or opts["stamp"]:
    e("s_memrealtime s[60:61]")
e("s_load_dwordx2 s[%d:%d], s[0:1], 8" % (sK, sK + 1))
e("s_load_dwordx2 s[%d:%d], s[0:1], 0" % (sQ, sQ + 1))
e("s_load_dwordx2 s[%d:%d], s[0:1], 16" % (sV, sV + 1))
e("s_load_dwordx2 s[%d:%d], s[0:1], 24" % (sO, sO + 1))
e("v_and_b32 v%d, 63, v0" % vLane)
e("v_readfirstlane_b32 s%d, v0" % sWave)
e("v_lshrrev_b32 v65, 1, v%d" % vLane)
e("v_and_b32 v65, 28, v65")
e("s_movk_i32 s%d, 0x50" % sT4)
e("v_mov_b32 v67, 3072")
for j in range(3):
    tab = sum(gfun((8 * j + l) // 3) << (4 * l) for l in range(8))
    assert all(gfun((8 * (j + 3) + l) // 3) == gfun((8 * j + l) // 3) ^ 5 for l in range(8))
    e("s_mov_b32 s%d, 0x%x" % (sT3, tab))
    e("v_bfe_u32 v66, s%d, v65, 3" % sT3)
    e("v_xor_b32 v66, v66, v%d" % vLane)
    e("v_lshlrev_b32 v%d, 4, v66" % (vOff + j))
    e("v_xad_u32 v%d, v%d, s%d, v67" % (vOff + 3 + j, vOff + j, sT4))
e("s_mov_b32 s%d, %d" % (sK + 2, NBYTES))
e("s_mov_b32 s%d, 0x20000" % (sK + 3))
for s in (sQ, sV, sO):
    e("s_mov_b32 s%d, s%d" % (s + 2, sK + 2))
    e("s_mov_b32 s%d, s%d" % (s + 3, sK + 3))
e("s_and_b32 s%d, s2, 7" % sT1)
e("s_lshr_b32 s%d, s2, 6" % sT2)
if opts["xcdmap"] == 1:
    e("s_lshl3_add_u32 s%d, s%d, s%d" % (sT1, sT2, sT1))
else:
    e("s_lshl2_add_u32 s%d, s%d, s%d" % (sT1, sT1, sT2))
e("s_bfe_u32 s%d, s2, 0x30003" % sChunk)
e("s_mul_i32 s%d, s%d, %d" % (sMinOff, sT1, 2048 * 384))
e("s_lshl_b32 s%d, s%d, 4" % (sT2, sChunk))
e("s_bitcmp1_b32 s%d, 0" % sChunk)
e("s_cselect_b32 s%d, -1, 1" % sStepB)
e("s_cselect_b32 s%d, 15, -2" % sKV0)
e("s_cselect_b32 s%d, 15, 0" % sQ0)
e("s_add_i32 s%d, s%d, s%d" % (sKV0, sKV0, sT2))
e("s_add_i32 s%d, s%d, s%d" % (sQ0, sQ0, sT2))
e("s_mulk_i32 s%d, %d" % (sStepB, BLK))
e("s_mulk_i32 s%d, %d" % (sKV0, BLK))
e("s_mulk_i32 s%d, %d" % (sQ0, BLK))
e("s_add_i32 s%d, s%d, s%d" % (sKV0, sKV0, sMinOff))
e("s_add_i32 s%d, s%d, s%d" % (sQ0, sQ0, sMinOff))
e("s_lshr_b32 s%d, s%d, 6" % (sWave, sWave))
if opts["stamp"]:
    e("s_waitcnt lgkmcnt(0)")
    e("v_mov_b32 v%d, 0" % vStamp)
    e("v_writelane_b32 v%d, s60, 0" % vStamp)
    e("s_mov_b32 s%d, 1" % sStampIdx)
    stamp()
if opts["leak"]:
    e("s_waitcnt lgkmcnt(0)")
    e("s_mov_b32 s64, s60")
e("s_cmp_lg_u32 s%d, 0" % sWave)
e("s_cbranch_scc1 L_compute")

W, G, PRE, DYN, W2 = opts["w"], opts["gran"], opts["pre"], opts["dyn"], opts["w2"]
assert 6 % G == 0 and 2 <= PRE <= 6 and W2 <= 36 and W2 + 6 * opts["open"] <= 60
sW = 72
sMaskP, sEncP, sIss, sTk = 70, 71, 69, 68


def enc(w):
    return (w & 15) | ((w >> 4) << 22)


if opts["prio"]:
    e("s_setprio %d" % opts["prio"])
sV0, sV2 = 66, 67
e("s_max_i32 s%d, s%d, s%d" % (sV0, sKV0, sMinOff))
e("s_add_i32 s%d, s%d, s%d" % (sT1, sV0, sStepB))
e("s_add_i32 s%d, s%d, s%d" % (sOff, sKV0, sStepB))
e("s_add_i32 s%d, s%d, s%d" % (sV2, sOff, sStepB))
e("s_waitcnt lgkmcnt(0)")
dma_block(sK, sV0, None, KV)
dma_block(sK, sT1, None, KV + BLK)
for n in range(2, PRE):
    e("s_add_i32 s%d, s%d, s%d" % (sOff, sOff, sStepB))
    dma_block(sK, sOff, None, KV + n * BLK)
e("s_add_i32 s%d, s%d, s%d" % (sOff, sOff, sStepB))
flag_init(True)
e("v_and_b32 v%d, 3, v%d" % (vDoneA, vLane))
e("v_lshlrev_b32 v%d, 8, v%d" % (vDoneA, vDoneA))
e("v_add_u32 v%d, %d, v%d" % (vDoneA, DONE, vDoneA))
e("s_mov_b32 s%d, 0xc0000f" % sMaskP)
e("s_mov_b32 s%d, 0x%x" % (sEncP, enc(W - G)))
e("s_mov_b32 s%d, %d" % (sIss, 6 * PRE + 3))
e("s_mov_b32 s%d, %d" % (sTk, PRE - 25 - 3))
e("s_mov_b32 s%d, s%d" % (sT0, sOff))
e("s_mov_b32 s%d, %d" % (sLds, PRE * BLK))
e("s_mov_b32 s%d, %d" % (sI, PRE))
e("s_mov_b64 s[%d:%d], s[%d:%d]" % (sW, sW + 1, sK, sK + 1))
e("s_mov_b32 s%d, s%d" % (sW + 2, sK + 2))
e("s_mov_b32 s%d, s%d" % (sW + 3, sK + 3))
events = {PRE + 1, 18, 26, 34, 36, 52} | ({52 - opts["open"]} if opts["open"] else set())
BON, BOFF = (opts["bst"], 34), (opts["bst"] + opts["blen"], 34 + opts["blen"])
if opts["boost"]:
    events |= set(BON) | set(BOFF)
evm = sum(1 << x for x in events)
sEv = 76
e("s_mov_b32 s%d, 0x%x" % (sEv, evm & 0xffffffff))
e("s_mov_b32 s%d, 0x%x" % (sEv + 1, evm >> 32))
e("s_waitcnt lgkmcnt(0)")
e("s_barrier")
e("L_ld:")
assert G == 3


def look():
    e("s_getreg_b32 s%d, hwreg(HW_REG_IB_STS)" % sT3)
    e("s_and_b32 s%d, s%d, s%d" % (sT3, sT3, sMaskP))
    e("s_cmp_le_u32 s%d, s%d" % (sT3, sEncP))


def before(j):
    if j % G:
        return False
    look()
    e("s_cbranch_scc0 L_dw%d" % j)
    e("L_dk%d:" % j)
    return True


def after(j):
    if j == 2:
        e("ds_read_b32 v%d, v%d" % (vF, vDoneA))
    if j == 5:
        e("s_lshr_b32 s%d, s%d, 18" % (sT4, sT3))
        e("s_add_u32 s%d, s%d, s%d" % (sT3, sT3, sT4))
        e("s_and_b32 s%d, s%d, 63" % (sT3, sT3))
        e("s_sub_u32 s%d, s%d, s%d" % (sT3, sIss, sT3))
        e("v_mov_b32 v%d, s%d" % (vCnt, sT3))
        e("ds_write_b32 v%d, v%d" % (vFlagA, vCnt))


dma_block(sW, sT0, sLds, 0, before, after)
e("s_add_u32 s%d, s%d, 6" % (sIss, sIss))
e("s_add_u32 s%d, s%d, 1" % (sI, sI))
e("s_add_i32 s%d, s%d, s%d" % (sT0, sT0, sStepB))
e("s_add_u32 s%d, s%d, %d" % (sLds, sLds, BLK))
e("s_waitcnt lgkmcnt(1)")
e("v_cmp_ge_i32 vcc, s%d, v%d" % (sTk, vF))
e("s_add_i32 s%d, s%d, 1" % (sTk, sTk))
e("s_cbranch_vccnz L_free_again")
e("L_free_ok:")
e("s_bitcmp1_b64 s[%d:%d], s%d" % (sEv, sEv + 1, sI))
e("s_cbranch_scc0 L_ld")
e("s_cmp_eq_u32 s%d, 18" % sI)
e("s_cselect_b64 s[%d:%d], s[%d:%d], s[%d:%d]" % (sW, sW + 1, sQ, sQ + 1, sW, sW + 1))
e("s_cselect_b32 s%d, s%d, s%d" % (sT0, sQ0, sT0))
e("s_cmp_eq_u32 s%d, 26" % sI)
e("s_cselect_b32 s%d, %d, s%d" % (sLds, QRING, sLds))
e("s_cmp_eq_u32 s%d, 34" % sI)
e("s_cselect_b64 s[%d:%d], s[%d:%d], s[%d:%d]" % (sW, sW + 1, sV, sV + 1, sW, sW + 1))
e("s_cselect_b32 s%d, s%d, s%d" % (sT0, sV0, sT0))
e("s_cselect_b32 s%d, 0, s%d" % (sLds, sLds))
e("s_cselect_b32 s%d, -2, s%d" % (sTk, sTk))
e("s_cmp_eq_u32 s%d, 36" % sI)
e("s_cselect_b32 s%d, s%d, s%d" % (sT0, sV2, sT0))
if opts["boost"]:
    for x in BON:
        e("s_cmp_eq_u32 s%d, %d" % (sI, x))
        e("s_cselect_b32 s%d, 0x%x, s%d" % (sEncP, enc(W + opts["boost"] - G), sEncP))
    for x in BOFF:
        e("s_cmp_eq_u32 s%d, %d" % (sI, x))
        e("s_cselect_b32 s%d, 0x%x, s%d" % (sEncP, enc(W - G), sEncP))
if opts["open"]:
    e("s_cmp_eq_u32 s%d, %d" % (sI, 52 - opts["open"]))
    e("s_cselect_b32 s%d, s%d, s%d" % (sEncP, sMaskP, sEncP))
e("s_cmp_lt_u32 s%d, 52" % sI)
e("s_cbranch_scc1 L_ld")
stamp(key=True)
leak("ldiss")
for k, rem in enumerate(range(W2 + 6 * opts["open"], -1, -3)):
    vc = (vCnt, vF)[k & 1]
    e("v_mov_b32 v%d, %d" % (vc, 312 - rem))
    e("s_waitcnt vmcnt(%d)" % rem)
    if rem % 6 == 0:
        e("ds_write_b32 v%d, v%d" % (vFlagA, vc))
    if rem in (opts["srel"], opts["srel2"] or -1):
        e("ds_write_b32 v%d, v%d offset:%d" % (vFlagA, vc, 5 * 256))
stamp(key=True)
leak("lddone")
e("s_branch L_fin")
for j in (0, 3):
    e("L_dw%d:" % j)
    for r in range(DYN - 1):
        look()
        e("s_cbranch_scc1 L_dk%d" % j)
    e("s_waitcnt vmcnt(%d)" % (W2 - G))
    e("s_branch L_dk%d" % j)
e("L_free_again:")
e("ds_read_b32 v%d, v%d" % (vF, vDoneA))
e("s_waitcnt lgkmcnt(0)")
e("v_cmp_gt_i32 vcc, s%d, v%d" % (sTk, vF))
e("s_cbranch_vccnz L_free_again")
e("s_branch L_free_ok")

vLo = 64


e("L_storer:")
e("v_and_b32 v%d, 3, v%d" % (vDoneA, vLane))
e("v_lshlrev_b32 v%d, 8, v%d" % (vDoneA, vDoneA))
e("v_add_u32 v%d, %d, v%d" % (vDoneA, DONE, vDoneA))
e("v_lshlrev_b32 v%d, 4, v%d" % (vR, vLane))
e("v_add_u32 v%d, %d, v%d" % (vR, QRING, vR))
if opts["srel2"]:
    e("s_getreg_b32 s%d, hwreg(HW_REG_XCC_ID)" % sNeed)
    e("s_and_b32 s%d, s%d, 7" % (sNeed, sNeed))
    e("s_bitcmp1_b32 %d, s%d" % (opts["emask"], sNeed))
    e("s_cselect_b32 s%d, %d, %d" % (sNeed, opts["srel2"], opts["srel"]))
    e("s_sub_u32 s%d, 312, s%d" % (sNeed, sNeed))
else:
    e("s_mov_b32 s%d, %d" % (sNeed, 312 - opts["srel"]))
e("v_mov_b32 v%d, %d" % (vFlagA, FLAG + 5 * 256))
assert opts["srel"] % 3 == 0 and opts["srel2"] % 3 == 0
e("L_ofree:")
e("s_sleep 2")
e("ds_read_b32 v%d, v%d" % (vF, vDoneA))
e("s_waitcnt lgkmcnt(0)")
e("v_cmp_gt_i32 vcc, 32, v%d" % vF)
e("s_cbranch_vccnz L_ofree")
for j in range(24):
    if j == 12:
        e("s_waitcnt lgkmcnt(0)")
    e("ds_read_b128 %s, v%d offset:%d" % (vr(vLo + 4 * j, 4), vR, j * 1024))
e("s_waitcnt lgkmcnt(0)")
poll()
stamp(key=True)
for t in range(4):
    for j in range(6):
        o = " offset:%d" % ((j % 3) * 1024) if j % 3 else ""
        e("buffer_store_dwordx4 %s, v%d, %s, s%d offen%s%s" % (vr(vLo + 24 * t + 4 * j, 4), vOff + j, srd(sO), sQ0, o, ST))
    e("s_add_i32 s%d, s%d, s%d" % (sQ0, sQ0, sStepB))
stamp(key=True)
e("s_branch L_fin")

e("L_compute:")
flag_init()
e("s_waitcnt lgkmcnt(0)")
e("s_barrier")
e("s_sub_u32 s%d, s%d, 1" % (sI, sWave))
e("s_mul_i32 s%d, s%d, %d" % (sT3, sI, BLK))
e("s_add_u32 s%d, s%d, %d" % (sT4, sT3, QRING + 4 * BLK))
e("s_mov_b32 s%d, 0" % sF)
e("v_mov_b32 v%d, %d" % (vFlagA, FLAG))
e("s_cmp_eq_u32 s%d, 5" % sWave)
e("s_cbranch_scc1 L_storer")
e("v_and_b32 v66, 15, v%d" % vLane)
e("v_lshrrev_b32 v67, 4, v%d" % vLane)
g_of(70, 66, 71)
e("v_mul_u32_u24 v68, 384, v66")
e("v_lshlrev_b32 v69, 4, v67")
e("v_xor_b32 v69, v69, v70")
e("v_add3_u32 v%d, v68, v69, s%d" % (vAK, sT3))
e("v_xor_b32 v%d, 64, v%d" % (vAK + 1, vAK))
e("v_add_u32 v%d, %d, v%d" % (vAQ, QRING, vAK))
e("v_add_u32 v%d, %d, v%d" % (vAQ + 1, QRING, vAK + 1))
e("v_lshrrev_b32 v69, 1, v67")
e("v_lshlrev_b32 v69, 4, v69")
e("v_xor_b32 v69, v69, v70")
e("v_and_b32 v71, 1, v67")
e("v_lshl_add_u32 v69, v71, 3, v69")
e("v_add3_u32 v%d, v68, v69, s%d" % (vW, sT4))
e("v_subrev_u32 v%d, %d, v%d" % (vW, 4 * BLK, vW))
for m in range(1, 4):
    e("v_xor_b32 v%d, %d, v%d" % (vW + m, 32 * m, vW))
e("v_lshlrev_b32 v69, 2, v67")
for i in range(4):
    e("v_add_u32 v71, %d, v69" % i)
    e("v_cmp_le_u32 s[%d:%d], v71, v66" % (sM + 2 * i, sM + 2 * i + 1))
e("s_ashr_i32 s%d, s%d, 31" % (sT0, sStepB))
e("s_mov_b32 s%d, s%d" % (sT1, sT0))
e("s_nop 1")
for i in range(4):
    e("s_xor_b64 s[%d:%d], s[%d:%d], s[%d:%d]" % (sM + 2 * i, sM + 2 * i + 1, sM + 2 * i, sM + 2 * i + 1, sT0, sT1))
e("s_mov_b32 s%d, 0xffff0000" % sHi)
e("v_mov_b32 v72, 0xffff")
e("v_mov_b32 v73, s%d" % sHi)
for k in range(2):
    e("v_cndmask_b32 v74, 0, v72, s[%d:%d]" % (sM + 4 * k, sM + 4 * k + 1))
    e("v_cndmask_b32 v75, 0, v73, s[%d:%d]" % (sM + 4 * k + 2, sM + 4 * k + 3))
    e("v_or_b32 v%d, v74, v75" % (vPM + k))
    e("v_not_b32 v%d, v%d" % (vPM + 2 + k, vPM + k))
e("v_lshrrev_b32 v69, 2, v%d" % vLane)
g_of(70, 69, 71)
e("v_mul_u32_u24 v68, 384, v69")
e("v_bfe_u32 v71, v%d, 1, 1" % vLane)
e("v_lshlrev_b32 v71, 4, v71")
e("v_xor_b32 v70, v70, v71")
e("v_and_b32 v71, 1, v%d" % vLane)
e("v_lshl_add_u32 v70, v71, 3, v70")
e("v_add3_u32 v%d, v68, v70, s%d" % (vAV, sT3))
for m in range(1, 4):
    e("v_xor_b32 v%d, %d, v%d" % (vAV + m, 32 * m, vAV))
e("v_lshlrev_b32 v%d, 4, v%d" % (vR, vLane))
e("v_add_u32 v%d, s%d, v%d" % (vR, sT4, vR))
e("s_cmp_eq_u32 s%d, 0" % sChunk)
e("s_cselect_b32 s%d, 0xff800000, 0" % sT2)
e("s_cmp_lt_u32 s%d, 2" % sI)
e("s_cselect_b32 s%d, s%d, 0" % (sInit0, sT2))
e("s_cmp_eq_u32 s%d, 0" % sI)
e("s_cselect_b32 s%d, s%d, 0" % (sInit1, sT2))
e("s_mov_b32 s%d, %s" % (sScale, f32hex(192 ** -0.5)))
if opts["mimic"]:
    e("s_mov_b32 s%d, %s" % (sLog2e, f32hex(1.4426950408889634)))
else:
    e("s_mov_b32 s%d, %s" % (sLog2e, f32hex(1.4426950408889634 * 192 ** -0.5)))
e("s_movk_i32 s%d, %d" % (sT3, 4 * BLK))

e("L_qk:")
for i in range(4):
    e("v_mov_b32 v%d, s%d" % (vS + i, sInit0))
    e("v_mov_b32 v%d, s%d" % (vS + 4 + i, sInit1))
e("s_mov_b32 s%d, 0" % sInit0)
e("s_mov_b32 s%d, 0" % sInit1)
for r in range(18):
    e("v_mov_b32 v%d, v%d" % (vP + r, vP + 6 + r))
e("s_add_u32 s%d, s%d, 1" % (sT1, sI))
e("v_mov_b32 v%d, s%d" % (vCnt, sT1))
e("s_add_u32 s%d, s%d, 19" % (sNeed, sI))
e("s_mul_i32 s%d, s%d, 6" % (sNeed, sNeed))
poll()
stamp()


def qk_reads(i):
    o = (i >> 1) * 128
    e("ds_read_b128 %s, v%d offset:%d" % (vr(vQ + 4 * i, 4), vAQ + (i & 1), o))
    for j in range(3):
        e("ds_read_b128 %s, v%d offset:%d" % (vr(vK + 12 * (i & 3) + 4 * j, 4), vAK + (i & 1), o + j * BLK))


for i in range(3):
    qk_reads(i)
for k in range(6):
    e("s_waitcnt lgkmcnt(%d)" % (4 * min(2, 5 - k)))
    if k == 5:
        e("ds_write_b32 v%d, v%d" % (vDoneA, vCnt))
    for j in range(3):
        c = "0" if (k == 0 and j == 2) else vr(vS + 4 * j, 4)
        e("v_mfma_f32_16x16x32_bf16 %s, %s, %s, %s" % (vr(vS + 4 * j, 4), vr(vK + 12 * (k & 3) + 4 * j, 4), vr(vQ + 4 * k, 4), c))
    if k + 3 < 6:
        qk_reads(k + 3)
e("v_add_u32 v%d, %d, v%d" % (vAK, 4 * BLK, vAK))
e("v_add_u32 v%d, %d, v%d" % (vAK + 1, 4 * BLK, vAK + 1))
e("v_add_u32 v%d, s%d, v%d" % (vAQ, sT3, vAQ))
e("v_add_u32 v%d, s%d, v%d" % (vAQ + 1, sT3, vAQ + 1))
e("s_sub_i32 s%d, 0, s%d" % (sT3, sT3))
e("s_add_u32 s%d, s%d, %d" % (sI, sI, NC))
e("s_nop 2")
for i in range(4):
    e("v_cndmask_b32 v%d, v%d, v%d, s[%d:%d]" % (vX + i, vS + i, vS + 8 + i, sM + 2 * i, sM + 2 * i + 1))
xs = [vX + i for i in range(4)] + [vS + 4 + i for i in range(4)]
ys = [vX + i for i in range(8)]
if opts["mimic"]:
    for p in range(4):
        e("v_cvt_pk_bf16_f32 v%d, v%d, v%d" % (vT + p, xs[2 * p], xs[2 * p + 1]))
    for p in range(4):
        e("v_lshlrev_b32 v%d, 16, v%d" % (ys[2 * p], vT + p))
        e("v_and_b32 v%d, s%d, v%d" % (ys[2 * p + 1], sHi, vT + p))
    for p in range(8):
        e("v_mul_f32 v%d, s%d, v%d" % (ys[p], sScale, ys[p]))
    for p in range(4):
        e("v_cvt_pk_bf16_f32 v%d, v%d, v%d" % (vT + p, ys[2 * p], ys[2 * p + 1]))
    for p in range(4):
        e("v_lshlrev_b32 v%d, 16, v%d" % (ys[2 * p], vT + p))
        e("v_and_b32 v%d, s%d, v%d" % (ys[2 * p + 1], sHi, vT + p))
else:
    ys = xs
m, m2 = vT + 4, vT + 5
e("v_max3_f32 v%d, v%d, v%d, v%d" % (m, ys[0], ys[1], ys[2]))
e("v_max3_f32 v%d, v%d, v%d, v%d" % (m2, ys[3], ys[4], ys[5]))
e("v_max3_f32 v%d, v%d, v%d, v%d" % (m, m, ys[6], ys[7]))
e("v_max_f32 v%d, v%d, v%d" % (m, m, m2))
e("v_mov_b32 v%d, v%d" % (m2, m))
e("s_nop 1")
e("v_permlane16_swap_b32 v%d, v%d" % (m, m2))
e("s_nop 0")
e("v_max_f32 v%d, v%d, v%d" % (m, m, m2))
e("v_mov_b32 v%d, v%d" % (m2, m))
e("s_nop 1")
e("v_permlane32_swap_b32 v%d, v%d" % (m, m2))
e("s_nop 0")
e("v_max_f32 v%d, v%d, v%d" % (m, m, m2))
e("v_mul_f32 v%d, s%d, v%d" % (m, sLog2e, m))
es = [vX + i for i in range(8)]
for p in range(8):
    e("v_fma_f32 v%d, v%d, s%d, -v%d" % (es[p], ys[p], sLog2e, m))
for p in range(8):
    e("v_exp_f32 v%d, v%d" % (es[p], es[p]))
sm, sm2 = vT + 6, vT + 7
e("v_add_f32 v%d, v%d, v%d" % (sm, es[0], es[1]))
e("v_add_f32 v%d, v%d, v%d" % (sm2, es[2], es[3]))
e("v_add_f32 v%d, v%d, v%d" % (sm, sm, es[4]))
e("v_add_f32 v%d, v%d, v%d" % (sm2, sm2, es[5]))
e("v_add_f32 v%d, v%d, v%d" % (sm, sm, es[6]))
e("v_add_f32 v%d, v%d, v%d" % (sm2, sm2, es[7]))
e("v_add_f32 v%d, v%d, v%d" % (sm, sm, sm2))
e("v_mov_b32 v%d, v%d" % (sm2, sm))
e("s_nop 1")
e("v_permlane16_swap_b32 v%d, v%d" % (sm, sm2))
e("s_nop 0")
e("v_add_f32 v%d, v%d, v%d" % (sm, sm, sm2))
e("v_mov_b32 v%d, v%d" % (sm2, sm))
e("s_nop 1")
e("v_permlane32_swap_b32 v%d, v%d" % (sm, sm2))
e("s_nop 0")
e("v_add_f32 v%d, v%d, v%d" % (sm, sm, sm2))
e("v_rcp_f32 v%d, v%d" % (sm, sm))
e("s_nop 0")
for p in range(8):
    e("v_mul_f32 v%d, v%d, v%d" % (es[p], es[p], sm))
PN = vP + 18
e("v_cvt_pk_bf16_f32 v%d, v%d, v%d" % (vT, es[0], es[1]))
e("v_cvt_pk_bf16_f32 v%d, v%d, v%d" % (vT + 1, es[2], es[3]))
e("v_cvt_pk_bf16_f32 v%d, v%d, v%d" % (PN + 2, es[4], es[5]))
e("v_cvt_pk_bf16_f32 v%d, v%d, v%d" % (PN + 3, es[6], es[7]))
e("v_and_b32 v%d, v%d, v%d" % (PN, vT, vPM + 2))
e("v_and_b32 v%d, v%d, v%d" % (PN + 1, vT + 1, vPM + 3))
e("v_and_b32 v%d, v%d, v%d" % (PN + 4, vT, vPM))
e("v_and_b32 v%d, v%d, v%d" % (PN + 5, vT + 1, vPM + 1))
stamp()
e("s_cmp_lt_u32 s%d, 16" % sI)
e("s_cbranch_scc1 L_qk")

e("s_sub_u32 s%d, s%d, 16" % (sI, sI))
EARLY = opts["early"]
assert not EARLY
sSt, sSt4, sRel = 66, 67, 68
e("s_mul_i32 s%d, s%d, s%d" % (sSt, sI, sStepB))
e("s_add_i32 s%d, s%d, s%d" % (sSt, sSt, sQ0))
e("s_lshl_b32 s%d, s%d, 2" % (sSt4, sStepB))
e("s_add_i32 s%d, s%d, s%d" % (sSt, sSt, sSt4))
e("v_mov_b32 v%d, 32" % vCnt)
if EARLY and opts["rel2"]:
    e("s_getreg_b32 s%d, hwreg(HW_REG_XCC_ID)" % sRel)
    e("s_and_b32 s%d, s%d, 7" % (sRel, sRel))
    e("s_bitcmp1_b32 %d, s%d" % (opts["emask"], sRel))
    e("s_cselect_b32 s%d, %d, %d" % (sRel, opts["rel2"], opts["rel"]))
elif EARLY:
    e("s_mov_b32 s%d, %d" % (sRel, opts["rel"]))


def store_block(vb):
    for j in range(6):
        o = " offset:%d" % ((j % 3) * 1024) if j % 3 else ""
        e("buffer_store_dwordx4 %s, v%d, %s, s%d offen%s%s" % (vr(vb + 4 * j, 4), vOff + j, srd(sO), sSt, o, ST))


e("L_pv:")
if EARLY:
    e("s_cmp_lt_u32 s%d, 12" % sI)
    e("s_cbranch_scc1 L_noearly")
    e("s_mov_b32 s%d, s%d" % (sNeed, sRel))
    poll()
    if opts["stamp"] == 3:
        stamp(key=True)
    for h in range(EARLY):
        store_block(vHold + 24 * h)
        e("s_add_i32 s%d, s%d, s%d" % (sSt, sSt, sSt4))
    e("L_noearly:")
e("s_add_u32 s%d, s%d, 36" % (sNeed, sI))
e("s_mul_i32 s%d, s%d, 6" % (sNeed, sNeed))
poll()
stamp()


def va_reads(t):
    for j in range(2):
        e("ds_read_b64_tr_b16 %s, v%d offset:%d" % (vr(vVa + 4 * (t & 7) + 2 * j, 2), vAV + (t & 3), (t >> 2) * 128 + j * BLK))


for t in range(6):
    va_reads(t)
for t in range(12):
    e("s_waitcnt lgkmcnt(%d)" % (2 * min(5, 11 - t)))
    e("v_mfma_f32_16x16x32_bf16 %s, %s, %s, 0" % (vr(vAcc + 4 * t, 4), vr(vVa + 4 * (t & 7), 4), vr(vP, 4)))
    if t + 6 < 12:
        va_reads(t + 6)
e("s_add_u32 s%d, s%d, 6" % (sNeed, sNeed))
poll()
stamp()
for t in range(12):
    e("ds_read_b64_tr_b16 %s, v%d offset:%d" % (vr(vVb + 2 * t, 2), vAV + (t & 3), (t >> 2) * 128 + 2 * BLK))


def o_out(t):
    e("v_cvt_pk_bf16_f32 v%d, v%d, v%d" % (vOp + 2 * t, vAcc + 4 * t, vAcc + 4 * t + 1))
    e("v_cvt_pk_bf16_f32 v%d, v%d, v%d" % (vOp + 2 * t + 1, vAcc + 4 * t + 2, vAcc + 4 * t + 3))
    e("ds_write_b64 v%d, %s offset:%d" % (vW + (t & 3), vr(vOp + 2 * t, 2), (t >> 2) * 128))


LAG = 4
for t in range(12):
    nwr = max(0, t - LAG)
    e("s_waitcnt lgkmcnt(%d)" % min(15, 11 - t + nwr))
    e("v_mfma_f32_16x16x16_bf16 %s, %s, %s, %s" % (vr(vAcc + 4 * t, 4), vr(vVb + 2 * t, 2), vr(vP + 4, 2), vr(vAcc + 4 * t, 4)))
    if t >= LAG:
        o_out(t - LAG)
for t in range(12 - LAG, 12):
    o_out(t)
e("s_cmp_ge_u32 s%d, 12" % sI)
e("s_cbranch_scc1 L_last")


def readback(vbase):
    e("s_waitcnt lgkmcnt(0)")
    for j in range(6):
        e("ds_read_b128 %s, v%d offset:%d" % (vr(vbase + 4 * j, 4), vR, j * 1024))


e("s_cmp_ge_u32 s%d, 8" % sI)
e("s_cbranch_scc1 L_rb2")
e("s_cmp_ge_u32 s%d, 4" % sI)
e("s_cbranch_scc1 L_rb1")
for m in range(4):
    e("v_add_u32 v%d, %d, v%d" % (vW + m, 4 * BLK, vW + m))
e("s_waitcnt lgkmcnt(0)")
e("ds_write_b32 v%d, v%d" % (vDoneA, vCnt))
e("s_branch L_rbdone")
e("L_rb1:")
readback(vHold)
e("s_branch L_rbdone")
e("L_rb2:")
readback(vHold + 24)
e("L_rbdone:")
e("s_add_u32 s%d, s%d, %d" % (sI, sI, NC))
for r in range(18):
    e("v_mov_b32 v%d, v%d" % (vP + r, vP + 6 + r))
for m in range(4):
    e("v_add_u32 v%d, %d, v%d" % (vAV + m, 4 * BLK, vAV + m))
e("s_waitcnt lgkmcnt(0)")
stamp()
e("s_branch L_pv")
e("L_last:")
if opts["stamp"] == 3 and not EARLY:
    stamp(key=True)
readback(vAcc)
if opts["late"]:
    e("s_mov_b32 s%d, %d" % (sNeed, 6 * opts["late"]))
    poll()
for h in range(EARLY, 3):
    if h == 2:
        e("s_waitcnt lgkmcnt(0)")
    store_block(vHold + 24 * h if h < 2 else vAcc)
    if h < 2:
        e("s_add_i32 s%d, s%d, s%d" % (sSt, sSt, sSt4))
stamp(key=True)
e("L_fin:")
if opts["stamp"]:
    e("s_waitcnt vmcnt(0)")
    e("s_mov_b32 s%d, 61" % sStampIdx)
    stamp(True)
    e("s_getreg_b32 s62, hwreg(HW_REG_XCC_ID)")
    e("v_writelane_b32 v%d, s62, 62" % vStamp)
    e("s_load_dwordx2 s[%d:%d], s[0:1], 40" % (sQ, sQ + 1))
    e("s_mov_b32 s%d, %d" % (sQ + 2, NBYTES))
    e("s_mul_i32 s62, s2, %d" % (NW * 256))
    e("v_lshlrev_b32 v0, 2, v0")
    e("s_waitcnt lgkmcnt(0)")
    e("buffer_store_dword v%d, v0, %s, s62 offen" % (vStamp, srd(sQ)))
if opts["spin"]:
    if opts["leak"]:
        if opts["leak"] == "fin":
            e("s_waitcnt vmcnt(0)")
            leak("fin")
        e("s_sub_u32 s62, s64, s60")
        e("s_lshl_b32 s62, s62, 2")
        e("s_add_u32 s%d, s62, %d" % (sLeak, opts["spin"]))
    else:
        e("s_mov_b32 s%d, %d" % (sLeak, opts["spin"]))
    e("L_spin:")
    e("s_sleep 4")
    e("s_memrealtime s[62:63]")
    e("s_waitcnt lgkmcnt(0)")
    e("s_sub_u32 s62, s62, s60")
    e("s_cmp_lt_u32 s62, s%d" % sLeak)
    e("s_cbranch_scc1 L_spin")
e("L_end:")
e("s_endpgm")

hdr = """; Sliding-window (w=32) attention, B=1 H=32 S=2048 D=192, bf16.  Generated by gen9.py (hand-written generator).
; kernarg: q, k, v, out, debug, ws
; One workgroup per 256 query rows.  Wave 0 streams 16-row blocks into LDS by LDS-DMA (all K, all Q, all V);
; waves 1..4 each take every 4th 16-query task (S^T = K Q^T, softmax, O^T = V^T P^T with 16x16 MFMAs).
; Hand-off inside the workgroup through LDS counters; outputs stay in registers until the loads are done.
; @launch grid=(256,1,1) block=(%d,1,1) lds=%d
.amdgcn_target "amdgcn-amd-amdhsa--gfx950"
.text
.globl %s_kernel
.p2align 8
.type %s_kernel,@function
%s_kernel:
""" % (64 * NW, LDS, NAME, NAME, NAME)

ftr = """
.section .rodata,"a"
.p2align 6
.amdhsa_kernel %s_kernel
  .amdhsa_next_free_vgpr %d
  .amdhsa_next_free_sgpr 80
  .amdhsa_accum_offset %d
  .amdhsa_group_segment_fixed_size 0
  .amdhsa_kernarg_size 48
  .amdhsa_user_sgpr_count 2
  .amdhsa_user_sgpr_kernarg_segment_ptr 1
  .amdhsa_system_sgpr_workgroup_id_x 1
.end_amdhsa_kernel
""" % (NAME, NVGPR, NVGPR)

open(sys.argv[1], "w").write(hdr + "\n".join(L) + ftr)
```

```python
import sys
import struct

NAME = "standalone__sliding_local_fixed_window__prompt"

opts = dict(
    ld="nt",
    st="sc1",
    xcdmap=1,
    mimic=1,
    w=21,
    gran=3,
    pre=5,
    open=2,
    early=0,
    rel=48,
    srel=18,
    srel2=0,
    rel2=0,
    emask=0xaa,
    dyn=6,
    w2=36,
    tlb=0,
    wodd=0,
    dyn2=0,
    dry=1,
    pad=0,
    tvm=0,
    tmask=0x55,
    boost=0,
    blen=5,
    bst=16,
    late=0,
    sleep=1,
    prio=3,
    stamp=0,
    spin=0,
    leak="",
)
for a in sys.argv[2:]:
    k, v = a.split("=")
    assert k in opts, k
    opts[k] = v if isinstance(opts[k], str) else int(v, 0)

LD = (" " + opts["ld"].replace("+", " ")) if opts["ld"] else ""
ST = (" " + opts["st"].replace("+", " ")) if opts["st"] else ""
NC = 4

BLK = 6144
KV = 0
QRING = 18 * BLK
FLAG = 26 * BLK
DONE = FLAG + 256
NW = NC + 2
LDS = FLAG + 256 * NW
NBYTES = 32 * 2048 * 384

L = []


def e(s=""):
    L.append("    " + s if s and not s.endswith(":") else s)


def f32hex(x):
    return "0x%08x" % struct.unpack("<I", struct.pack("<f", x))[0]


sQ, sK, sV, sO = 12, 16, 20, 24
sWave = 28
sStepB = 29
sKV0 = 30
sQ0 = 31
sMinOff = 32
sChunk = 33
sI = 34
sF = 35
sM = 36
sScale = 44
sLog2e = 45
sT0, sT1, sT2, sT3, sT4 = 46, 47, 48, 49, 50
sHi = 52
sNeed = 53
sOff = 54
sLds = 55
sInit0, sInit1 = 56, 57
sStampIdx = 58
sLeak = 59

vOff = 1
vLane = 7
vAK = 8
vAQ = 10
vAV = 12
vW = 16
vR = 20
vPM = 21
vFlagA = 25
vDoneA = 26
vF = 27
vCnt = 28
vP = 30
vVb = 56
vVa = 80
vOp = vVa
vAcc = 112
vHold = 160
vQ = 56
vK = 80
vS = 128
vX = 140
vT = 148
vStamp = 208
NVGPR = 216


def srd(s):
    return "s[%d:%d]" % (s, s + 3)


def vr(a, n):
    return "v[%d:%d]" % (a, a + n - 1) if n > 1 else "v%d" % a


def stamp(always=False, key=False):
    if opts["stamp"] == 1 or (opts["stamp"] and always) or (opts["stamp"] >= 3 and key):
        e("s_memrealtime s[62:63]")
        e("s_mov_b32 m0, s%d" % sStampIdx)
        e("s_waitcnt lgkmcnt(0)")
        e("v_writelane_b32 v%d, s62, m0" % vStamp)
        e("s_add_u32 s%d, s%d, 1" % (sStampIdx, sStampIdx))


def leak(name):
    if opts["leak"] != name:
        return
    e("s_waitcnt lgkmcnt(0)")
    e("s_memrealtime s[64:65]")
    e("s_waitcnt lgkmcnt(0)")


def gfun(r):
    return ((((r >> 2) ^ (r >> 3)) & 1) << 2) | (r & 2) | ((r >> 3) & 1)


def g_of(vdst, vrow, vtmp):
    e("v_lshrrev_b32 v%d, 1, v%d" % (vtmp, vrow))
    e("v_xor_b32 v%d, v%d, v%d" % (vtmp, vtmp, vrow))
    e("v_and_b32 v%d, 4, v%d" % (vtmp, vtmp))
    e("v_and_or_b32 v%d, v%d, 2, v%d" % (vtmp, vrow, vtmp))
    e("v_bfe_u32 v%d, v%d, 3, 1" % (vdst, vrow))
    e("v_or_b32 v%d, v%d, v%d" % (vdst, vdst, vtmp))
    e("v_lshlrev_b32 v%d, 4, v%d" % (vdst, vdst))


def dma_block(s_srd, s_off, s_lds, lds, before=None, after=None):
    setm0 = (lambda x: e("s_mov_b32 m0, %d" % x)) if s_lds is None else (lambda x: e("s_add_u32 m0, s%d, %d" % (s_lds, x)))
    for j in range(6):
        if j % 3 == 0:
            setm0(lds + 1024 * j)
        did = before(j) if before else False
        if j % 3 == 0 and not did:
            e("s_nop 0")
        o = " offset:%d" % ((j % 3) * 1024) if j % 3 else ""
        e("buffer_load_dwordx4 v%d, %s, s%d offen%s%s lds" % (vOff + j, srd(s_srd), s_off, o, LD))
        if after:
            after(j)


def pub(cnt):
    if cnt:
        e("v_add_u32 v%d, %d, v%d" % (vCnt, cnt, vCnt))
        e("ds_write_b32 v%d, v%d" % (vFlagA, vCnt))


npoll = [0]


def poll():
    n = npoll[0]
    npoll[0] += 1
    e("s_cmp_ge_u32 s%d, s%d" % (sF, sNeed))
    e("s_cbranch_scc1 L_go%d" % n)
    e("L_poll%d:" % n)
    e("ds_read_b32 v%d, v%d" % (vF, vFlagA))
    e("s_waitcnt lgkmcnt(0)")
    e("v_readfirstlane_b32 s%d, v%d" % (sF, vF))
    e("s_nop 0")
    e("s_cmp_ge_u32 s%d, s%d" % (sF, sNeed))
    e("s_cbranch_scc1 L_go%d" % n)
    if opts["sleep"]:
        e("s_sleep %d" % opts["sleep"])
    e("s_branch L_poll%d" % n)
    e("L_go%d:" % n)


def flag_init(loader=False):
    va = vFlagA if loader else vDoneA
    e("v_lshlrev_b32 v%d, 2, v0" % va)
    e("v_add_u32 v%d, %d, v%d" % (va, FLAG, va))
    if loader:
        e("v_mov_b32 v%d, 0" % vF)
    else:
        e("s_sub_u32 s%d, s%d, 4" % (sT0, sWave))
        e("v_mov_b32 v%d, s%d" % (vF, sT0))
    e("ds_write_b32 v%d, v%d" % (va, vF))


e("s_cmp_ge_u32 s2, 256")
e("s_cbranch_scc1 L_end")
if opts["spin"] or opts["stamp"]:
    e("s_memrealtime s[60:61]")
e("s_load_dwordx2 s[%d:%d], s[0:1], 8" % (sK, sK + 1))
e("s_load_dwordx2 s[%d:%d], s[0:1], 0" % (sQ, sQ + 1))
e("s_load_dwordx2 s[%d:%d], s[0:1], 16" % (sV, sV + 1))
e("s_load_dwordx2 s[%d:%d], s[0:1], 24" % (sO, sO + 1))
e("v_and_b32 v%d, 63, v0" % vLane)
e("v_readfirstlane_b32 s%d, v0" % sWave)
e("v_lshrrev_b32 v65, 1, v%d" % vLane)
e("v_and_b32 v65, 28, v65")
e("s_movk_i32 s%d, 0x50" % sT4)
e("v_mov_b32 v67, 3072")
for j in range(3):
    tab = sum(gfun((8 * j + l) // 3) << (4 * l) for l in range(8))
    assert all(gfun((8 * (j + 3) + l) // 3) == gfun((8 * j + l) // 3) ^ 5 for l in range(8))
    e("s_mov_b32 s%d, 0x%x" % (sT3, tab))
    e("v_bfe_u32 v66, s%d, v65, 3" % sT3)
    e("v_xor_b32 v66, v66, v%d" % vLane)
    e("v_lshlrev_b32 v%d, 4, v66" % (vOff + j))
    e("v_xad_u32 v%d, v%d, s%d, v67" % (vOff + 3 + j, vOff + j, sT4))
e("s_mov_b32 s%d, %d" % (sK + 2, NBYTES))
e("s_mov_b32 s%d, 0x20000" % (sK + 3))
for s in (sQ, sV, sO):
    e("s_mov_b32 s%d, s%d" % (s + 2, sK + 2))
    e("s_mov_b32 s%d, s%d" % (s + 3, sK + 3))
e("s_and_b32 s%d, s2, 7" % sT1)
e("s_lshr_b32 s%d, s2, 6" % sT2)
if opts["xcdmap"] == 1:
    e("s_lshl3_add_u32 s%d, s%d, s%d" % (sT1, sT2, sT1))
else:
    e("s_lshl2_add_u32 s%d, s%d, s%d" % (sT1, sT1, sT2))
e("s_bfe_u32 s%d, s2, 0x30003" % sChunk)
e("s_mul_i32 s%d, s%d, %d" % (sMinOff, sT1, 2048 * 384))
e("s_lshl_b32 s%d, s%d, 4" % (sT2, sChunk))
e("s_bitcmp1_b32 s%d, 0" % sChunk)
e("s_cselect_b32 s%d, -1, 1" % sStepB)
e("s_cselect_b32 s%d, 15, -2" % sKV0)
e("s_cselect_b32 s%d, 15, 0" % sQ0)
e("s_add_i32 s%d, s%d, s%d" % (sKV0, sKV0, sT2))
e("s_add_i32 s%d, s%d, s%d" % (sQ0, sQ0, sT2))
e("s_mulk_i32 s%d, %d" % (sStepB, BLK))
e("s_mulk_i32 s%d, %d" % (sKV0, BLK))
e("s_mulk_i32 s%d, %d" % (sQ0, BLK))
e("s_add_i32 s%d, s%d, s%d" % (sKV0, sKV0, sMinOff))
e("s_add_i32 s%d, s%d, s%d" % (sQ0, sQ0, sMinOff))
e("s_lshr_b32 s%d, s%d, 6" % (sWave, sWave))
if opts["stamp"]:
    e("s_waitcnt lgkmcnt(0)")
    e("v_mov_b32 v%d, 0" % vStamp)
    e("v_writelane_b32 v%d, s60, 0" % vStamp)
    e("s_mov_b32 s%d, 1" % sStampIdx)
    stamp()
if opts["leak"]:
    e("s_waitcnt lgkmcnt(0)")
    e("s_mov_b32 s64, s60")
e("s_cmp_lg_u32 s%d, 0" % sWave)
e("s_cbranch_scc1 L_compute")

W, G, PRE, DYN, W2 = opts["w"], opts["gran"], opts["pre"], opts["dyn"], opts["w2"]
assert 6 % G == 0 and 2 <= PRE <= 6 and W2 <= 36 and W2 + 6 * opts["open"] <= 60
sW = 72
sMaskP, sEncP, sIss, sTk = 70, 71, 69, 68


def enc(w):
    return (w & 15) | ((w >> 4) << 22)


if opts["prio"]:
    e("s_setprio %d" % opts["prio"])
sV0, sV2 = 66, 67
e("s_max_i32 s%d, s%d, s%d" % (sV0, sKV0, sMinOff))
e("s_add_i32 s%d, s%d, s%d" % (sT1, sV0, sStepB))
e("s_add_i32 s%d, s%d, s%d" % (sOff, sKV0, sStepB))
e("s_add_i32 s%d, s%d, s%d" % (sV2, sOff, sStepB))
e("s_waitcnt lgkmcnt(0)")
dma_block(sK, sV0, None, KV)
dma_block(sK, sT1, None, KV + BLK)
for n in range(2, PRE):
    e("s_add_i32 s%d, s%d, s%d" % (sOff, sOff, sStepB))
    dma_block(sK, sOff, None, KV + n * BLK)
e("s_add_i32 s%d, s%d, s%d" % (sOff, sOff, sStepB))
flag_init(True)
e("v_and_b32 v%d, 3, v%d" % (vDoneA, vLane))
e("v_lshlrev_b32 v%d, 8, v%d" % (vDoneA, vDoneA))
e("v_add_u32 v%d, %d, v%d" % (vDoneA, DONE, vDoneA))
e("s_mov_b32 s%d, 0xc0000f" % sMaskP)
e("s_mov_b32 s%d, 0x%x" % (sEncP, enc(W - G)))
if opts["wodd"]:
    assert not opts["boost"]
    e("s_getreg_b32 s%d, hwreg(HW_REG_XCC_ID)" % sT3)
    e("s_and_b32 s%d, s%d, 7" % (sT3, sT3))
    e("s_bitcmp1_b32 %d, s%d" % (opts["emask"], sT3))
    e("s_cselect_b32 s%d, 0x%x, s%d" % (sEncP, enc(opts["wodd"] - G), sEncP))
e("s_mov_b32 s%d, %d" % (sIss, 6 * PRE + 3))
e("s_mov_b32 s%d, %d" % (sTk, PRE - 25 - 3))
e("s_mov_b32 s%d, s%d" % (sT0, sOff))
e("s_mov_b32 s%d, %d" % (sLds, PRE * BLK))
e("s_mov_b32 s%d, %d" % (sI, PRE))
e("s_mov_b64 s[%d:%d], s[%d:%d]" % (sW, sW + 1, sK, sK + 1))
e("s_mov_b32 s%d, s%d" % (sW + 2, sK + 2))
e("s_mov_b32 s%d, s%d" % (sW + 3, sK + 3))
events = {PRE + 1, 18, 26, 34, 36, 52} | ({52 - opts["open"]} if opts["open"] else set())
BON, BOFF = (opts["bst"], 34), (opts["bst"] + opts["blen"], 34 + opts["blen"])
if opts["boost"]:
    events |= set(BON) | set(BOFF)
evm = sum(1 << x for x in events)
sEv = 76
e("s_mov_b32 s%d, 0x%x" % (sEv, evm & 0xffffffff))
e("s_mov_b32 s%d, 0x%x" % (sEv + 1, evm >> 32))
e("s_waitcnt lgkmcnt(0)")
e("s_barrier")
e("L_ld:")
assert G == 3


def look():
    e("s_getreg_b32 s%d, hwreg(HW_REG_IB_STS)" % sT3)
    e("s_and_b32 s%d, s%d, s%d" % (sT3, sT3, sMaskP))
    e("s_cmp_le_u32 s%d, s%d" % (sT3, sEncP))


def before(j):
    if j % G:
        return False
    look()
    e("s_cbranch_scc0 L_dw%d" % j)
    e("L_dk%d:" % j)
    return True


def after(j):
    if j == 2:
        e("ds_read_b32 v%d, v%d" % (vF, vDoneA))
    if j == 5:
        e("s_lshr_b32 s%d, s%d, 18" % (sT4, sT3))
        e("s_add_u32 s%d, s%d, s%d" % (sT3, sT3, sT4))
        e("s_and_b32 s%d, s%d, 63" % (sT3, sT3))
        e("s_sub_u32 s%d, s%d, s%d" % (sT3, sIss, sT3))
        e("v_mov_b32 v%d, s%d" % (vCnt, sT3))
        e("ds_write_b32 v%d, v%d" % (vFlagA, vCnt))


dma_block(sW, sT0, sLds, 0, before, after)
e("s_add_u32 s%d, s%d, 6" % (sIss, sIss))
e("s_add_u32 s%d, s%d, 1" % (sI, sI))
e("s_add_i32 s%d, s%d, s%d" % (sT0, sT0, sStepB))
e("s_add_u32 s%d, s%d, %d" % (sLds, sLds, BLK))
e("s_waitcnt lgkmcnt(1)")
e("v_cmp_ge_i32 vcc, s%d, v%d" % (sTk, vF))
e("s_add_i32 s%d, s%d, 1" % (sTk, sTk))
e("s_cbranch_vccnz L_free_again")
e("L_free_ok:")
e("s_bitcmp1_b64 s[%d:%d], s%d" % (sEv, sEv + 1, sI))
e("s_cbranch_scc0 L_ld")
e("s_cmp_eq_u32 s%d, 18" % sI)
e("s_cselect_b64 s[%d:%d], s[%d:%d], s[%d:%d]" % (sW, sW + 1, sQ, sQ + 1, sW, sW + 1))
e("s_cselect_b32 s%d, s%d, s%d" % (sT0, sQ0, sT0))
e("s_cmp_eq_u32 s%d, 26" % sI)
e("s_cselect_b32 s%d, %d, s%d" % (sLds, QRING, sLds))
e("s_cmp_eq_u32 s%d, 34" % sI)
e("s_cselect_b64 s[%d:%d], s[%d:%d], s[%d:%d]" % (sW, sW + 1, sV, sV + 1, sW, sW + 1))
e("s_cselect_b32 s%d, s%d, s%d" % (sT0, sV0, sT0))
e("s_cselect_b32 s%d, 0, s%d" % (sLds, sLds))
e("s_cselect_b32 s%d, -2, s%d" % (sTk, sTk))
e("s_cmp_eq_u32 s%d, 36" % sI)
e("s_cselect_b32 s%d, s%d, s%d" % (sT0, sV2, sT0))
if opts["boost"]:
    for x in BON:
        e("s_cmp_eq_u32 s%d, %d" % (sI, x))
        e("s_cselect_b32 s%d, 0x%x, s%d" % (sEncP, enc(W + opts["boost"] - G), sEncP))
    for x in BOFF:
        e("s_cmp_eq_u32 s%d, %d" % (sI, x))
        e("s_cselect_b32 s%d, 0x%x, s%d" % (sEncP, enc(W - G), sEncP))
if opts["open"]:
    e("s_cmp_eq_u32 s%d, %d" % (sI, 52 - opts["open"]))
    e("s_cselect_b32 s%d, s%d, s%d" % (sEncP, sMaskP, sEncP))
e("s_cmp_lt_u32 s%d, 52" % sI)
e("s_cbranch_scc1 L_ld")
stamp(key=True)
leak("ldiss")
for k, rem in enumerate(range(W2 + 6 * opts["open"], -1, -3)):
    vc = (vCnt, vF)[k & 1]
    e("v_mov_b32 v%d, %d" % (vc, 312 - rem))
    e("s_waitcnt vmcnt(%d)" % rem)
    if rem % 6 == 0:
        e("ds_write_b32 v%d, v%d" % (vFlagA, vc))
    if rem in (opts["srel"], opts["srel2"] or -1):
        e("ds_write_b32 v%d, v%d offset:%d" % (vFlagA, vc, 5 * 256))
stamp(key=True)
leak("lddone")
e("s_branch L_fin")
for j in (0, 3):
    e("L_dw%d:" % j)
    for r in range((DYN if j == 0 or not opts["dyn2"] else opts["dyn2"]) - 1):
        look()
        e("s_cbranch_scc1 L_dk%d" % j)
    e("s_waitcnt vmcnt(%d)" % (W2 - G))
    e("s_branch L_dk%d" % j)
e("L_free_again:")
e("ds_read_b32 v%d, v%d" % (vF, vDoneA))
e("s_waitcnt lgkmcnt(0)")
e("v_cmp_gt_i32 vcc, s%d, v%d" % (sTk, vF))
e("s_cbranch_vccnz L_free_again")
e("s_branch L_free_ok")

vLo = 64


for _ in range(opts["pad"]):
    e("s_nop 0")
e("L_storer:")
if opts["tlb"]:
    e("s_mul_i32 s%d, s%d, %d" % (sT0, sChunk, 16 * BLK))
    e("s_add_u32 s%d, s%d, s%d" % (sT0, sT0, sMinOff))
    e("s_add_u32 s%d, s%d, %d" % (sT1, sT0, 16 * BLK - 4))
    e("s_sub_i32 s%d, s%d, %d" % (sT0, sT0, 2 * BLK))
    e("s_max_i32 s%d, s%d, s%d" % (sT0, sT0, sMinOff))
    e("v_mov_b32 v64, s%d" % sT1)
    e("v_writelane_b32 v64, s%d, 0" % sT0)
    e("s_mov_b64 exec, 3")
    for k, sr in enumerate((sQ, sV, sO) if opts["tlb"] == 1 else (sQ, sV, sO, sK)):
        e("buffer_load_dword v%d, v64, %s, 0 offen nt" % (65 + k, srd(sr)))
    e("s_mov_b64 exec, -1")
e("v_and_b32 v%d, 3, v%d" % (vDoneA, vLane))
e("v_lshlrev_b32 v%d, 8, v%d" % (vDoneA, vDoneA))
e("v_add_u32 v%d, %d, v%d" % (vDoneA, DONE, vDoneA))
e("v_lshlrev_b32 v%d, 4, v%d" % (vR, vLane))
e("v_add_u32 v%d, %d, v%d" % (vR, QRING, vR))
if opts["srel2"]:
    e("s_getreg_b32 s%d, hwreg(HW_REG_XCC_ID)" % sNeed)
    e("s_and_b32 s%d, s%d, 7" % (sNeed, sNeed))
    e("s_bitcmp1_b32 %d, s%d" % (opts["emask"], sNeed))
    e("s_cselect_b32 s%d, %d, %d" % (sNeed, opts["srel2"], opts["srel"]))
    e("s_sub_u32 s%d, 312, s%d" % (sNeed, sNeed))
else:
    e("s_mov_b32 s%d, %d" % (sNeed, 312 - opts["srel"]))
e("v_mov_b32 v%d, %d" % (vFlagA, FLAG + 5 * 256))
assert opts["srel"] % 3 == 0 and opts["srel2"] % 3 == 0
e("L_ofree:")
e("s_sleep 2")
e("ds_read_b32 v%d, v%d" % (vF, vDoneA))
e("s_waitcnt lgkmcnt(0)")
e("v_cmp_gt_i32 vcc, 32, v%d" % vF)
e("s_cbranch_vccnz L_ofree")
if opts["tlb"]:
    e("s_waitcnt vmcnt(0)")
for j in range(24):
    if j == 12:
        e("s_waitcnt lgkmcnt(0)")
    e("ds_read_b128 %s, v%d offset:%d" % (vr(vLo + 4 * j, 4), vR, j * 1024))
e("s_waitcnt lgkmcnt(0)")
poll()
stamp(key=True)
for t in range(4):
    for j in range(6):
        o = " offset:%d" % ((j % 3) * 1024) if j % 3 else ""
        e("buffer_store_dwordx4 %s, v%d, %s, s%d offen%s%s" % (vr(vLo + 24 * t + 4 * j, 4), vOff + j, srd(sO), sQ0, o, ST))
    e("s_add_i32 s%d, s%d, s%d" % (sQ0, sQ0, sStepB))
stamp(key=True)
e("s_branch L_fin")

e("L_compute:")
flag_init()
e("s_waitcnt lgkmcnt(0)")
e("s_barrier")
e("s_sub_u32 s%d, s%d, 1" % (sI, sWave))
e("s_mul_i32 s%d, s%d, %d" % (sT3, sI, BLK))
e("s_add_u32 s%d, s%d, %d" % (sT4, sT3, QRING + 4 * BLK))
e("s_mov_b32 s%d, 0" % sF)
e("v_mov_b32 v%d, %d" % (vFlagA, FLAG))
e("s_cmp_eq_u32 s%d, 5" % sWave)
e("s_cbranch_scc1 L_storer")
e("v_and_b32 v66, 15, v%d" % vLane)
e("v_lshrrev_b32 v67, 4, v%d" % vLane)
g_of(70, 66, 71)
e("v_mul_u32_u24 v68, 384, v66")
e("v_lshlrev_b32 v69, 4, v67")
e("v_xor_b32 v69, v69, v70")
e("v_add3_u32 v%d, v68, v69, s%d" % (vAK, sT3))
e("v_xor_b32 v%d, 64, v%d" % (vAK + 1, vAK))
e("v_add_u32 v%d, %d, v%d" % (vAQ, QRING, vAK))
e("v_add_u32 v%d, %d, v%d" % (vAQ + 1, QRING, vAK + 1))
e("v_lshrrev_b32 v69, 1, v67")
e("v_lshlrev_b32 v69, 4, v69")
e("v_xor_b32 v69, v69, v70")
e("v_and_b32 v71, 1, v67")
e("v_lshl_add_u32 v69, v71, 3, v69")
e("v_add3_u32 v%d, v68, v69, s%d" % (vW, sT4))
e("v_subrev_u32 v%d, %d, v%d" % (vW, 4 * BLK, vW))
for m in range(1, 4):
    e("v_xor_b32 v%d, %d, v%d" % (vW + m, 32 * m, vW))
e("v_lshlrev_b32 v69, 2, v67")
for i in range(4):
    e("v_add_u32 v71, %d, v69" % i)
    e("v_cmp_le_u32 s[%d:%d], v71, v66" % (sM + 2 * i, sM + 2 * i + 1))
e("s_ashr_i32 s%d, s%d, 31" % (sT0, sStepB))
e("s_mov_b32 s%d, s%d" % (sT1, sT0))
e("s_nop 1")
for i in range(4):
    e("s_xor_b64 s[%d:%d], s[%d:%d], s[%d:%d]" % (sM + 2 * i, sM + 2 * i + 1, sM + 2 * i, sM + 2 * i + 1, sT0, sT1))
e("s_mov_b32 s%d, 0xffff0000" % sHi)
e("v_mov_b32 v72, 0xffff")
e("v_mov_b32 v73, s%d" % sHi)
for k in range(2):
    e("v_cndmask_b32 v74, 0, v72, s[%d:%d]" % (sM + 4 * k, sM + 4 * k + 1))
    e("v_cndmask_b32 v75, 0, v73, s[%d:%d]" % (sM + 4 * k + 2, sM + 4 * k + 3))
    e("v_or_b32 v%d, v74, v75" % (vPM + k))
    e("v_not_b32 v%d, v%d" % (vPM + 2 + k, vPM + k))
e("v_lshrrev_b32 v69, 2, v%d" % vLane)
g_of(70, 69, 71)
e("v_mul_u32_u24 v68, 384, v69")
e("v_bfe_u32 v71, v%d, 1, 1" % vLane)
e("v_lshlrev_b32 v71, 4, v71")
e("v_xor_b32 v70, v70, v71")
e("v_and_b32 v71, 1, v%d" % vLane)
e("v_lshl_add_u32 v70, v71, 3, v70")
e("v_add3_u32 v%d, v68, v70, s%d" % (vAV, sT3))
for m in range(1, 4):
    e("v_xor_b32 v%d, %d, v%d" % (vAV + m, 32 * m, vAV))
e("v_lshlrev_b32 v%d, 4, v%d" % (vR, vLane))
e("v_add_u32 v%d, s%d, v%d" % (vR, sT4, vR))
if opts["dry"]:
    e("s_lshl2_add_u32 s%d, s%d, 12" % (sI, sI))
    e("s_mov_b32 s%d, -1" % sF)
    e("s_mov_b64 exec, 0")
    e("s_branch L_qk")
    e("L_real:")
    e("s_mov_b64 exec, -1")
    e("s_mov_b32 s%d, 0" % sF)
    e("s_sub_u32 s%d, s%d, 1" % (sI, sWave))
e("s_cmp_eq_u32 s%d, 0" % sChunk)
e("s_cselect_b32 s%d, 0xff800000, 0" % sT2)
e("s_cmp_lt_u32 s%d, 2" % sI)
e("s_cselect_b32 s%d, s%d, 0" % (sInit0, sT2))
e("s_cmp_eq_u32 s%d, 0" % sI)
e("s_cselect_b32 s%d, s%d, 0" % (sInit1, sT2))
e("s_mov_b32 s%d, %s" % (sScale, f32hex(192 ** -0.5)))
if opts["mimic"]:
    e("s_mov_b32 s%d, %s" % (sLog2e, f32hex(1.4426950408889634)))
else:
    e("s_mov_b32 s%d, %s" % (sLog2e, f32hex(1.4426950408889634 * 192 ** -0.5)))
e("s_movk_i32 s%d, %d" % (sT3, 4 * BLK))

e("L_qk:")
for i in range(4):
    e("v_mov_b32 v%d, s%d" % (vS + i, sInit0))
    e("v_mov_b32 v%d, s%d" % (vS + 4 + i, sInit1))
e("s_mov_b32 s%d, 0" % sInit0)
e("s_mov_b32 s%d, 0" % sInit1)
for r in range(18):
    e("v_mov_b32 v%d, v%d" % (vP + r, vP + 6 + r))
e("s_add_u32 s%d, s%d, 1" % (sT1, sI))
e("v_mov_b32 v%d, s%d" % (vCnt, sT1))
e("s_add_u32 s%d, s%d, 19" % (sNeed, sI))
e("s_mul_i32 s%d, s%d, 6" % (sNeed, sNeed))
poll()
stamp()


def qk_reads(i):
    o = (i >> 1) * 128
    e("ds_read_b128 %s, v%d offset:%d" % (vr(vQ + 4 * i, 4), vAQ + (i & 1), o))
    for j in range(3):
        e("ds_read_b128 %s, v%d offset:%d" % (vr(vK + 12 * (i & 3) + 4 * j, 4), vAK + (i & 1), o + j * BLK))


for i in range(3):
    qk_reads(i)
for k in range(6):
    e("s_waitcnt lgkmcnt(%d)" % (4 * min(2, 5 - k)))
    if k == 5:
        e("ds_write_b32 v%d, v%d" % (vDoneA, vCnt))
    for j in range(3):
        c = "0" if (k == 0 and j == 2) else vr(vS + 4 * j, 4)
        e("v_mfma_f32_16x16x32_bf16 %s, %s, %s, %s" % (vr(vS + 4 * j, 4), vr(vK + 12 * (k & 3) + 4 * j, 4), vr(vQ + 4 * k, 4), c))
    if k + 3 < 6:
        qk_reads(k + 3)
e("v_add_u32 v%d, %d, v%d" % (vAK, 4 * BLK, vAK))
e("v_add_u32 v%d, %d, v%d" % (vAK + 1, 4 * BLK, vAK + 1))
e("v_add_u32 v%d, s%d, v%d" % (vAQ, sT3, vAQ))
e("v_add_u32 v%d, s%d, v%d" % (vAQ + 1, sT3, vAQ + 1))
e("s_sub_i32 s%d, 0, s%d" % (sT3, sT3))
e("s_add_u32 s%d, s%d, %d" % (sI, sI, NC))
e("s_nop 2")
for i in range(4):
    e("v_cndmask_b32 v%d, v%d, v%d, s[%d:%d]" % (vX + i, vS + i, vS + 8 + i, sM + 2 * i, sM + 2 * i + 1))
xs = [vX + i for i in range(4)] + [vS + 4 + i for i in range(4)]
ys = [vX + i for i in range(8)]
if opts["mimic"]:
    for p in range(4):
        e("v_cvt_pk_bf16_f32 v%d, v%d, v%d" % (vT + p, xs[2 * p], xs[2 * p + 1]))
    for p in range(4):
        e("v_lshlrev_b32 v%d, 16, v%d" % (ys[2 * p], vT + p))
        e("v_and_b32 v%d, s%d, v%d" % (ys[2 * p + 1], sHi, vT + p))
    for p in range(8):
        e("v_mul_f32 v%d, s%d, v%d" % (ys[p], sScale, ys[p]))
    for p in range(4):
        e("v_cvt_pk_bf16_f32 v%d, v%d, v%d" % (vT + p, ys[2 * p], ys[2 * p + 1]))
    for p in range(4):
        e("v_lshlrev_b32 v%d, 16, v%d" % (ys[2 * p], vT + p))
        e("v_and_b32 v%d, s%d, v%d" % (ys[2 * p + 1], sHi, vT + p))
else:
    ys = xs
m, m2 = vT + 4, vT + 5
e("v_max3_f32 v%d, v%d, v%d, v%d" % (m, ys[0], ys[1], ys[2]))
e("v_max3_f32 v%d, v%d, v%d, v%d" % (m2, ys[3], ys[4], ys[5]))
e("v_max3_f32 v%d, v%d, v%d, v%d" % (m, m, ys[6], ys[7]))
e("v_max_f32 v%d, v%d, v%d" % (m, m, m2))
e("v_mov_b32 v%d, v%d" % (m2, m))
e("s_nop 1")
e("v_permlane16_swap_b32 v%d, v%d" % (m, m2))
e("s_nop 0")
e("v_max_f32 v%d, v%d, v%d" % (m, m, m2))
e("v_mov_b32 v%d, v%d" % (m2, m))
e("s_nop 1")
e("v_permlane32_swap_b32 v%d, v%d" % (m, m2))
e("s_nop 0")
e("v_max_f32 v%d, v%d, v%d" % (m, m, m2))
e("v_mul_f32 v%d, s%d, v%d" % (m, sLog2e, m))
es = [vX + i for i in range(8)]
for p in range(8):
    e("v_fma_f32 v%d, v%d, s%d, -v%d" % (es[p], ys[p], sLog2e, m))
for p in range(8):
    e("v_exp_f32 v%d, v%d" % (es[p], es[p]))
sm, sm2 = vT + 6, vT + 7
e("v_add_f32 v%d, v%d, v%d" % (sm, es[0], es[1]))
e("v_add_f32 v%d, v%d, v%d" % (sm2, es[2], es[3]))
e("v_add_f32 v%d, v%d, v%d" % (sm, sm, es[4]))
e("v_add_f32 v%d, v%d, v%d" % (sm2, sm2, es[5]))
e("v_add_f32 v%d, v%d, v%d" % (sm, sm, es[6]))
e("v_add_f32 v%d, v%d, v%d" % (sm2, sm2, es[7]))
e("v_add_f32 v%d, v%d, v%d" % (sm, sm, sm2))
e("v_mov_b32 v%d, v%d" % (sm2, sm))
e("s_nop 1")
e("v_permlane16_swap_b32 v%d, v%d" % (sm, sm2))
e("s_nop 0")
e("v_add_f32 v%d, v%d, v%d" % (sm, sm, sm2))
e("v_mov_b32 v%d, v%d" % (sm2, sm))
e("s_nop 1")
e("v_permlane32_swap_b32 v%d, v%d" % (sm, sm2))
e("s_nop 0")
e("v_add_f32 v%d, v%d, v%d" % (sm, sm, sm2))
e("v_rcp_f32 v%d, v%d" % (sm, sm))
e("s_nop 0")
for p in range(8):
    e("v_mul_f32 v%d, v%d, v%d" % (es[p], es[p], sm))
PN = vP + 18
e("v_cvt_pk_bf16_f32 v%d, v%d, v%d" % (vT, es[0], es[1]))
e("v_cvt_pk_bf16_f32 v%d, v%d, v%d" % (vT + 1, es[2], es[3]))
e("v_cvt_pk_bf16_f32 v%d, v%d, v%d" % (PN + 2, es[4], es[5]))
e("v_cvt_pk_bf16_f32 v%d, v%d, v%d" % (PN + 3, es[6], es[7]))
e("v_and_b32 v%d, v%d, v%d" % (PN, vT, vPM + 2))
e("v_and_b32 v%d, v%d, v%d" % (PN + 1, vT + 1, vPM + 3))
e("v_and_b32 v%d, v%d, v%d" % (PN + 4, vT, vPM))
e("v_and_b32 v%d, v%d, v%d" % (PN + 5, vT + 1, vPM + 1))
stamp()
e("s_cmp_lt_u32 s%d, 16" % sI)
e("s_cbranch_scc1 L_qk")

e("s_sub_u32 s%d, s%d, 16" % (sI, sI))
EARLY = opts["early"]
assert not EARLY
sSt, sSt4, sRel = 66, 67, 68
e("s_mul_i32 s%d, s%d, s%d" % (sSt, sI, sStepB))
e("s_add_i32 s%d, s%d, s%d" % (sSt, sSt, sQ0))
e("s_lshl_b32 s%d, s%d, 2" % (sSt4, sStepB))
e("s_add_i32 s%d, s%d, s%d" % (sSt, sSt, sSt4))
e("v_mov_b32 v%d, 32" % vCnt)
if EARLY and opts["rel2"]:
    e("s_getreg_b32 s%d, hwreg(HW_REG_XCC_ID)" % sRel)
    e("s_and_b32 s%d, s%d, 7" % (sRel, sRel))
    e("s_bitcmp1_b32 %d, s%d" % (opts["emask"], sRel))
    e("s_cselect_b32 s%d, %d, %d" % (sRel, opts["rel2"], opts["rel"]))
elif EARLY:
    e("s_mov_b32 s%d, %d" % (sRel, opts["rel"]))


def store_block(vb, vm=0):
    for j in range(6):
        if vm:
            e("s_waitcnt vmcnt(%d)" % (vm - 1))
        o = " offset:%d" % ((j % 3) * 1024) if j % 3 else ""
        e("buffer_store_dwordx4 %s, v%d, %s, s%d offen%s%s" % (vr(vb + 4 * j, 4), vOff + j, srd(sO), sSt, o, ST))


e("L_pv:")
if EARLY:
    e("s_cmp_lt_u32 s%d, 12" % sI)
    e("s_cbranch_scc1 L_noearly")
    e("s_mov_b32 s%d, s%d" % (sNeed, sRel))
    poll()
    if opts["stamp"] == 3:
        stamp(key=True)
    for h in range(EARLY):
        store_block(vHold + 24 * h)
        e("s_add_i32 s%d, s%d, s%d" % (sSt, sSt, sSt4))
    e("L_noearly:")
e("s_add_u32 s%d, s%d, 36" % (sNeed, sI))
e("s_mul_i32 s%d, s%d, 6" % (sNeed, sNeed))
poll()
stamp()


def va_reads(t):
    for j in range(2):
        e("ds_read_b64_tr_b16 %s, v%d offset:%d" % (vr(vVa + 4 * (t & 7) + 2 * j, 2), vAV + (t & 3), (t >> 2) * 128 + j * BLK))


for t in range(6):
    va_reads(t)
for t in range(12):
    e("s_waitcnt lgkmcnt(%d)" % (2 * min(5, 11 - t)))
    e("v_mfma_f32_16x16x32_bf16 %s, %s, %s, 0" % (vr(vAcc + 4 * t, 4), vr(vVa + 4 * (t & 7), 4), vr(vP, 4)))
    if t + 6 < 12:
        va_reads(t + 6)
e("s_add_u32 s%d, s%d, 6" % (sNeed, sNeed))
poll()
stamp()
for t in range(12):
    e("ds_read_b64_tr_b16 %s, v%d offset:%d" % (vr(vVb + 2 * t, 2), vAV + (t & 3), (t >> 2) * 128 + 2 * BLK))


def o_out(t):
    e("v_cvt_pk_bf16_f32 v%d, v%d, v%d" % (vOp + 2 * t, vAcc + 4 * t, vAcc + 4 * t + 1))
    e("v_cvt_pk_bf16_f32 v%d, v%d, v%d" % (vOp + 2 * t + 1, vAcc + 4 * t + 2, vAcc + 4 * t + 3))
    e("ds_write_b64 v%d, %s offset:%d" % (vW + (t & 3), vr(vOp + 2 * t, 2), (t >> 2) * 128))


LAG = 4
for t in range(12):
    nwr = max(0, t - LAG)
    e("s_waitcnt lgkmcnt(%d)" % min(15, 11 - t + nwr))
    e("v_mfma_f32_16x16x16_bf16 %s, %s, %s, %s" % (vr(vAcc + 4 * t, 4), vr(vVb + 2 * t, 2), vr(vP + 4, 2), vr(vAcc + 4 * t, 4)))
    if t >= LAG:
        o_out(t - LAG)
for t in range(12 - LAG, 12):
    o_out(t)
e("s_cmp_ge_u32 s%d, 12" % sI)
e("s_cbranch_scc1 L_last")


def readback(vbase):
    e("s_waitcnt lgkmcnt(0)")
    for j in range(6):
        e("ds_read_b128 %s, v%d offset:%d" % (vr(vbase + 4 * j, 4), vR, j * 1024))


e("s_cmp_ge_u32 s%d, 8" % sI)
e("s_cbranch_scc1 L_rb2")
e("s_cmp_ge_u32 s%d, 4" % sI)
e("s_cbranch_scc1 L_rb1")
for m in range(4):
    e("v_add_u32 v%d, %d, v%d" % (vW + m, 4 * BLK, vW + m))
e("s_waitcnt lgkmcnt(0)")
e("ds_write_b32 v%d, v%d" % (vDoneA, vCnt))
e("s_branch L_rbdone")
e("L_rb1:")
readback(vHold)
e("s_branch L_rbdone")
e("L_rb2:")
readback(vHold + 24)
e("L_rbdone:")
e("s_add_u32 s%d, s%d, %d" % (sI, sI, NC))
for r in range(18):
    e("v_mov_b32 v%d, v%d" % (vP + r, vP + 6 + r))
for m in range(4):
    e("v_add_u32 v%d, %d, v%d" % (vAV + m, 4 * BLK, vAV + m))
e("s_waitcnt lgkmcnt(0)")
if opts["dry"]:
    e("s_cbranch_execz L_real")
stamp()
e("s_branch L_pv")
e("L_last:")
if opts["dry"]:
    e("s_cbranch_execz L_real")
if opts["stamp"] == 3 and not EARLY:
    stamp(key=True)
readback(vAcc)
if opts["late"]:
    e("s_mov_b32 s%d, %d" % (sNeed, 6 * opts["late"]))
    poll()
def final_stores(vm):
    for h in range(3):
        if h == 2:
            e("s_waitcnt lgkmcnt(0)")
        store_block(vHold + 24 * h if h < 2 else vAcc, vm)
        if h < 2:
            e("s_add_i32 s%d, s%d, s%d" % (sSt, sSt, sSt4))


if opts["tvm"]:
    e("s_getreg_b32 s%d, hwreg(HW_REG_XCC_ID)" % sT0)
    e("s_and_b32 s%d, s%d, 7" % (sT0, sT0))
    e("s_bitcmp0_b32 %d, s%d" % (opts["tmask"], sT0))
    e("s_cbranch_scc1 L_nothr")
    final_stores(opts["tvm"])
    stamp(key=True)
    e("s_branch L_fin")
    e("L_nothr:")
final_stores(0)
stamp(key=True)
e("L_fin:")
if opts["stamp"]:
    e("s_waitcnt vmcnt(0)")
    e("s_mov_b32 s%d, 61" % sStampIdx)
    stamp(True)
    e("s_getreg_b32 s62, hwreg(HW_REG_XCC_ID)")
    e("v_writelane_b32 v%d, s62, 62" % vStamp)
    e("s_load_dwordx2 s[%d:%d], s[0:1], 40" % (sQ, sQ + 1))
    e("s_mov_b32 s%d, %d" % (sQ + 2, NBYTES))
    e("s_mul_i32 s62, s2, %d" % (NW * 256))
    e("v_lshlrev_b32 v0, 2, v0")
    e("s_waitcnt lgkmcnt(0)")
    e("buffer_store_dword v%d, v0, %s, s62 offen" % (vStamp, srd(sQ)))
if opts["spin"]:
    if opts["leak"]:
        if opts["leak"] == "fin":
            e("s_waitcnt vmcnt(0)")
            leak("fin")
        e("s_sub_u32 s62, s64, s60")
        e("s_lshl_b32 s62, s62, 2")
        e("s_add_u32 s%d, s62, %d" % (sLeak, opts["spin"]))
    else:
        e("s_mov_b32 s%d, %d" % (sLeak, opts["spin"]))
    e("L_spin:")
    e("s_sleep 4")
    e("s_memrealtime s[62:63]")
    e("s_waitcnt lgkmcnt(0)")
    e("s_sub_u32 s62, s62, s60")
    e("s_cmp_lt_u32 s62, s%d" % sLeak)
    e("s_cbranch_scc1 L_spin")
e("L_end:")
e("s_endpgm")

hdr = """; Sliding-window (w=32) attention, B=1 H=32 S=2048 D=192, bf16.  Generated by gen9.py (hand-written generator).
; kernarg: q, k, v, out, debug, ws
; One workgroup per 256 query rows.  Wave 0 streams 16-row blocks into LDS by LDS-DMA (all K, all Q, all V);
; waves 1..4 each take every 4th 16-query task (S^T = K Q^T, softmax, O^T = V^T P^T with 16x16 MFMAs).
; Hand-off inside the workgroup through LDS counters; outputs stay in registers until the loads are done.
; @launch grid=(256,1,1) block=(%d,1,1) lds=%d
.amdgcn_target "amdgcn-amd-amdhsa--gfx950"
.text
.globl %s_kernel
.p2align 8
.type %s_kernel,@function
%s_kernel:
""" % (64 * NW, LDS, NAME, NAME, NAME)

ftr = """
.section .rodata,"a"
.p2align 6
.amdhsa_kernel %s_kernel
  .amdhsa_next_free_vgpr %d
  .amdhsa_next_free_sgpr 80
  .amdhsa_accum_offset %d
  .amdhsa_group_segment_fixed_size 0
  .amdhsa_kernarg_size 48
  .amdhsa_user_sgpr_count 2
  .amdhsa_user_sgpr_kernarg_segment_ptr 1
  .amdhsa_system_sgpr_workgroup_id_x 1
.end_amdhsa_kernel
""" % (NAME, NVGPR, NVGPR)

open(sys.argv[1], "w").write(hdr + "\n".join(L) + ftr)
```

```python
import sys
import struct

NAME = "standalone__sliding_local_fixed_window__prompt"

opts = dict(
    ld="nt",
    st="sc1",
    xcdmap=1,
    mimic=1,
    w=21,
    gran=3,
    pre=5,
    open=2,
    srel=18,
    dyn=6,
    w2=36,
    dyn2=0,
    dry=1,
    boost=0,
    blen=5,
    bst=16,
    sleep=1,
    prio=3,
    stamp=0,
    spin=0,
    leak="",
)
for a in sys.argv[2:]:
    k, v = a.split("=")
    assert k in opts, k
    opts[k] = v if isinstance(opts[k], str) else int(v, 0)

LD = (" " + opts["ld"].replace("+", " ")) if opts["ld"] else ""
ST = (" " + opts["st"].replace("+", " ")) if opts["st"] else ""
NC = 4

BLK = 6144
KV = 0
QRING = 18 * BLK
FLAG = 26 * BLK
DONE = FLAG + 256
NW = NC + 3
LDS = FLAG + 256 * NW
NBYTES = 32 * 2048 * 384

L = []


def e(s=""):
    L.append("    " + s if s and not s.endswith(":") else s)


def f32hex(x):
    return "0x%08x" % struct.unpack("<I", struct.pack("<f", x))[0]


sQ, sK, sV, sO = 12, 16, 20, 24
sWave = 28
sStepB = 29
sKV0 = 30
sQ0 = 31
sMinOff = 32
sChunk = 33
sI = 34
sF = 35
sM = 36
sScale = 44
sLog2e = 45
sT0, sT1, sT2, sT3, sT4 = 46, 47, 48, 49, 50
sHi = 52
sNeed = 53
sOff = 54
sLds = 55
sInit0, sInit1 = 56, 57
sStampIdx = 58
sLeak = 59

vOff = 1
vLane = 7
vAK = 8
vAQ = 10
vAV = 12
vW = 16
vR = 20
vPM = 21
vFlagA = 25
vDoneA = 26
vF = 27
vCnt = 28
vP = 30
vVb = 56
vVa = 80
vOp = vVa
vAcc = 112
vHold = 160
vQ = 56
vK = 80
vS = 128
vX = 140
vT = 148
vStamp = 224
NVGPR = 232


def srd(s):
    return "s[%d:%d]" % (s, s + 3)


def vr(a, n):
    return "v[%d:%d]" % (a, a + n - 1) if n > 1 else "v%d" % a


def stamp(always=False, key=False):
    if opts["stamp"] == 1 or (opts["stamp"] and always) or (opts["stamp"] >= 3 and key):
        e("s_memrealtime s[62:63]")
        e("s_mov_b32 m0, s%d" % sStampIdx)
        e("s_waitcnt lgkmcnt(0)")
        e("v_writelane_b32 v%d, s62, m0" % vStamp)
        e("s_add_u32 s%d, s%d, 1" % (sStampIdx, sStampIdx))


def leak(name):
    if opts["leak"] != name:
        return
    e("s_waitcnt lgkmcnt(0)")
    e("s_memrealtime s[64:65]")
    e("s_waitcnt lgkmcnt(0)")


def gfun(r):
    return ((((r >> 2) ^ (r >> 3)) & 1) << 2) | (r & 2) | ((r >> 3) & 1)


def g_of(vdst, vrow, vtmp):
    e("v_lshrrev_b32 v%d, 1, v%d" % (vtmp, vrow))
    e("v_xor_b32 v%d, v%d, v%d" % (vtmp, vtmp, vrow))
    e("v_and_b32 v%d, 4, v%d" % (vtmp, vtmp))
    e("v_and_or_b32 v%d, v%d, 2, v%d" % (vtmp, vrow, vtmp))
    e("v_bfe_u32 v%d, v%d, 3, 1" % (vdst, vrow))
    e("v_or_b32 v%d, v%d, v%d" % (vdst, vdst, vtmp))
    e("v_lshlrev_b32 v%d, 4, v%d" % (vdst, vdst))


def dma_block(s_srd, s_off, s_lds, lds, before=None, after=None):
    setm0 = (lambda x: e("s_mov_b32 m0, %d" % x)) if s_lds is None else (lambda x: e("s_add_u32 m0, s%d, %d" % (s_lds, x)))
    for j in range(6):
        if j % 3 == 0:
            setm0(lds + 1024 * j)
        did = before(j) if before else False
        if j % 3 == 0 and not did:
            e("s_nop 0")
        o = " offset:%d" % ((j % 3) * 1024) if j % 3 else ""
        e("buffer_load_dwordx4 v%d, %s, s%d offen%s%s lds" % (vOff + j, srd(s_srd), s_off, o, LD))
        if after:
            after(j)


def pub(cnt):
    if cnt:
        e("v_add_u32 v%d, %d, v%d" % (vCnt, cnt, vCnt))
        e("ds_write_b32 v%d, v%d" % (vFlagA, vCnt))


npoll = [0]


def poll():
    n = npoll[0]
    npoll[0] += 1
    e("s_cmp_ge_u32 s%d, s%d" % (sF, sNeed))
    e("s_cbranch_scc1 L_go%d" % n)
    e("L_poll%d:" % n)
    e("ds_read_b32 v%d, v%d" % (vF, vFlagA))
    e("s_waitcnt lgkmcnt(0)")
    e("v_readfirstlane_b32 s%d, v%d" % (sF, vF))
    e("s_nop 0")
    e("s_cmp_ge_u32 s%d, s%d" % (sF, sNeed))
    e("s_cbranch_scc1 L_go%d" % n)
    if opts["sleep"]:
        e("s_sleep %d" % opts["sleep"])
    e("s_branch L_poll%d" % n)
    e("L_go%d:" % n)


def flag_init(loader=False):
    va = vFlagA if loader else vDoneA
    e("v_lshlrev_b32 v%d, 2, v0" % va)
    e("v_add_u32 v%d, %d, v%d" % (va, FLAG, va))
    if loader:
        e("v_mov_b32 v%d, 0" % vF)
    else:
        e("s_sub_u32 s%d, s%d, 4" % (sT0, sWave))
        e("s_min_i32 s%d, s%d, 0" % (sT0, sT0))
        e("v_mov_b32 v%d, s%d" % (vF, sT0))
    e("ds_write_b32 v%d, v%d" % (va, vF))


e("s_cmp_ge_u32 s2, 256")
e("s_cbranch_scc1 L_end")
if opts["spin"] or opts["stamp"]:
    e("s_memrealtime s[60:61]")
e("s_load_dwordx2 s[%d:%d], s[0:1], 8" % (sK, sK + 1))
e("s_load_dwordx2 s[%d:%d], s[0:1], 0" % (sQ, sQ + 1))
e("s_load_dwordx2 s[%d:%d], s[0:1], 16" % (sV, sV + 1))
e("s_load_dwordx2 s[%d:%d], s[0:1], 24" % (sO, sO + 1))
e("v_and_b32 v%d, 63, v0" % vLane)
e("v_readfirstlane_b32 s%d, v0" % sWave)
e("v_lshrrev_b32 v65, 1, v%d" % vLane)
e("v_and_b32 v65, 28, v65")
e("s_movk_i32 s%d, 0x50" % sT4)
e("v_mov_b32 v67, 3072")
for j in range(3):
    tab = sum(gfun((8 * j + l) // 3) << (4 * l) for l in range(8))
    assert all(gfun((8 * (j + 3) + l) // 3) == gfun((8 * j + l) // 3) ^ 5 for l in range(8))
    e("s_mov_b32 s%d, 0x%x" % (sT3, tab))
    e("v_bfe_u32 v66, s%d, v65, 3" % sT3)
    e("v_xor_b32 v66, v66, v%d" % vLane)
    e("v_lshlrev_b32 v%d, 4, v66" % (vOff + j))
    e("v_xad_u32 v%d, v%d, s%d, v67" % (vOff + 3 + j, vOff + j, sT4))
e("s_mov_b32 s%d, %d" % (sK + 2, NBYTES))
e("s_mov_b32 s%d, 0x20000" % (sK + 3))
for s in (sQ, sV, sO):
    e("s_mov_b32 s%d, s%d" % (s + 2, sK + 2))
    e("s_mov_b32 s%d, s%d" % (s + 3, sK + 3))
e("s_and_b32 s%d, s2, 7" % sT1)
e("s_lshr_b32 s%d, s2, 6" % sT2)
if opts["xcdmap"] == 1:
    e("s_lshl3_add_u32 s%d, s%d, s%d" % (sT1, sT2, sT1))
else:
    e("s_lshl2_add_u32 s%d, s%d, s%d" % (sT1, sT1, sT2))
e("s_bfe_u32 s%d, s2, 0x30003" % sChunk)
e("s_mul_i32 s%d, s%d, %d" % (sMinOff, sT1, 2048 * 384))
e("s_lshl_b32 s%d, s%d, 4" % (sT2, sChunk))
e("s_bitcmp1_b32 s%d, 0" % sChunk)
e("s_cselect_b32 s%d, -1, 1" % sStepB)
e("s_cselect_b32 s%d, 15, -2" % sKV0)
e("s_cselect_b32 s%d, 15, 0" % sQ0)
e("s_add_i32 s%d, s%d, s%d" % (sKV0, sKV0, sT2))
e("s_add_i32 s%d, s%d, s%d" % (sQ0, sQ0, sT2))
e("s_mulk_i32 s%d, %d" % (sStepB, BLK))
e("s_mulk_i32 s%d, %d" % (sKV0, BLK))
e("s_mulk_i32 s%d, %d" % (sQ0, BLK))
e("s_add_i32 s%d, s%d, s%d" % (sKV0, sKV0, sMinOff))
e("s_add_i32 s%d, s%d, s%d" % (sQ0, sQ0, sMinOff))
e("s_lshr_b32 s%d, s%d, 6" % (sWave, sWave))
if opts["stamp"]:
    e("s_waitcnt lgkmcnt(0)")
    e("v_mov_b32 v%d, 0" % vStamp)
    e("v_writelane_b32 v%d, s60, 0" % vStamp)
    e("s_mov_b32 s%d, 1" % sStampIdx)
    stamp()
if opts["leak"]:
    e("s_waitcnt lgkmcnt(0)")
    e("s_mov_b32 s64, s60")
e("s_cmp_lg_u32 s%d, 0" % sWave)
e("s_cbranch_scc1 L_compute")

W, G, PRE, DYN, W2 = opts["w"], opts["gran"], opts["pre"], opts["dyn"], opts["w2"]
assert 6 % G == 0 and 2 <= PRE <= 6 and W2 <= 36 and W2 + 6 * opts["open"] <= 60
sW = 72
sMaskP, sEncP, sIss, sTk = 70, 71, 69, 68


def enc(w):
    return (w & 15) | ((w >> 4) << 22)


if opts["prio"]:
    e("s_setprio %d" % opts["prio"])
sV0, sV2 = 66, 67
e("s_max_i32 s%d, s%d, s%d" % (sV0, sKV0, sMinOff))
e("s_add_i32 s%d, s%d, s%d" % (sT1, sV0, sStepB))
e("s_add_i32 s%d, s%d, s%d" % (sOff, sKV0, sStepB))
e("s_add_i32 s%d, s%d, s%d" % (sV2, sOff, sStepB))
e("s_waitcnt lgkmcnt(0)")
dma_block(sK, sV0, None, KV)
dma_block(sK, sT1, None, KV + BLK)
for n in range(2, PRE):
    e("s_add_i32 s%d, s%d, s%d" % (sOff, sOff, sStepB))
    dma_block(sK, sOff, None, KV + n * BLK)
e("s_add_i32 s%d, s%d, s%d" % (sOff, sOff, sStepB))
flag_init(True)
e("v_and_b32 v%d, 3, v%d" % (vDoneA, vLane))
e("v_lshlrev_b32 v%d, 8, v%d" % (vDoneA, vDoneA))
e("v_add_u32 v%d, %d, v%d" % (vDoneA, DONE, vDoneA))
e("s_mov_b32 s%d, 0xc0000f" % sMaskP)
e("s_mov_b32 s%d, 0x%x" % (sEncP, enc(W - G)))
e("s_mov_b32 s%d, %d" % (sIss, 6 * PRE + 3))
e("s_mov_b32 s%d, %d" % (sTk, PRE - 25 - 3))
e("s_mov_b32 s%d, s%d" % (sT0, sOff))
e("s_mov_b32 s%d, %d" % (sLds, PRE * BLK))
e("s_mov_b32 s%d, %d" % (sI, PRE))
e("s_mov_b64 s[%d:%d], s[%d:%d]" % (sW, sW + 1, sK, sK + 1))
e("s_mov_b32 s%d, s%d" % (sW + 2, sK + 2))
e("s_mov_b32 s%d, s%d" % (sW + 3, sK + 3))
events = {PRE + 1, 18, 26, 34, 36, 52} | ({52 - opts["open"]} if opts["open"] else set())
BON, BOFF = (opts["bst"], 34), (opts["bst"] + opts["blen"], 34 + opts["blen"])
if opts["boost"]:
    events |= set(BON) | set(BOFF)
evm = sum(1 << x for x in events)
sEv = 76
e("s_mov_b32 s%d, 0x%x" % (sEv, evm & 0xffffffff))
e("s_mov_b32 s%d, 0x%x" % (sEv + 1, evm >> 32))
e("s_waitcnt lgkmcnt(0)")
e("s_barrier")
e("L_ld:")
assert G == 3


def look():
    e("s_getreg_b32 s%d, hwreg(HW_REG_IB_STS)" % sT3)
    e("s_and_b32 s%d, s%d, s%d" % (sT3, sT3, sMaskP))
    e("s_cmp_le_u32 s%d, s%d" % (sT3, sEncP))


def before(j):
    if j % G:
        return False
    look()
    e("s_cbranch_scc0 L_dw%d" % j)
    e("L_dk%d:" % j)
    return True


def after(j):
    if j == 2:
        e("ds_read_b32 v%d, v%d" % (vF, vDoneA))
    if j == 5:
        e("s_lshr_b32 s%d, s%d, 18" % (sT4, sT3))
        e("s_add_u32 s%d, s%d, s%d" % (sT3, sT3, sT4))
        e("s_and_b32 s%d, s%d, 63" % (sT3, sT3))
        e("s_sub_u32 s%d, s%d, s%d" % (sT3, sIss, sT3))
        e("v_mov_b32 v%d, s%d" % (vCnt, sT3))
        e("ds_write_b32 v%d, v%d" % (vFlagA, vCnt))


dma_block(sW, sT0, sLds, 0, before, after)
e("s_add_u32 s%d, s%d, 6" % (sIss, sIss))
e("s_add_u32 s%d, s%d, 1" % (sI, sI))
e("s_add_i32 s%d, s%d, s%d" % (sT0, sT0, sStepB))
e("s_add_u32 s%d, s%d, %d" % (sLds, sLds, BLK))
e("s_waitcnt lgkmcnt(1)")
e("v_cmp_ge_i32 vcc, s%d, v%d" % (sTk, vF))
e("s_add_i32 s%d, s%d, 1" % (sTk, sTk))
e("s_cbranch_vccnz L_free_again")
e("L_free_ok:")
e("s_bitcmp1_b64 s[%d:%d], s%d" % (sEv, sEv + 1, sI))
e("s_cbranch_scc0 L_ld")
e("s_cmp_eq_u32 s%d, 18" % sI)
e("s_cselect_b64 s[%d:%d], s[%d:%d], s[%d:%d]" % (sW, sW + 1, sQ, sQ + 1, sW, sW + 1))
e("s_cselect_b32 s%d, s%d, s%d" % (sT0, sQ0, sT0))
e("s_cmp_eq_u32 s%d, 26" % sI)
e("s_cselect_b32 s%d, %d, s%d" % (sLds, QRING, sLds))
e("s_cmp_eq_u32 s%d, 34" % sI)
e("s_cselect_b64 s[%d:%d], s[%d:%d], s[%d:%d]" % (sW, sW + 1, sV, sV + 1, sW, sW + 1))
e("s_cselect_b32 s%d, s%d, s%d" % (sT0, sV0, sT0))
e("s_cselect_b32 s%d, 0, s%d" % (sLds, sLds))
e("s_cselect_b32 s%d, -2, s%d" % (sTk, sTk))
e("s_cmp_eq_u32 s%d, 36" % sI)
e("s_cselect_b32 s%d, s%d, s%d" % (sT0, sV2, sT0))
if opts["boost"]:
    for x in BON:
        e("s_cmp_eq_u32 s%d, %d" % (sI, x))
        e("s_cselect_b32 s%d, 0x%x, s%d" % (sEncP, enc(W + opts["boost"] - G), sEncP))
    for x in BOFF:
        e("s_cmp_eq_u32 s%d, %d" % (sI, x))
        e("s_cselect_b32 s%d, 0x%x, s%d" % (sEncP, enc(W - G), sEncP))
if opts["open"]:
    e("s_cmp_eq_u32 s%d, %d" % (sI, 52 - opts["open"]))
    e("s_cselect_b32 s%d, s%d, s%d" % (sEncP, sMaskP, sEncP))
e("s_cmp_lt_u32 s%d, 52" % sI)
e("s_cbranch_scc1 L_ld")
stamp(key=True)
leak("ldiss")
for k, rem in enumerate(range(W2 + 6 * opts["open"], -1, -3)):
    vc = (vCnt, vF)[k & 1]
    e("v_mov_b32 v%d, %d" % (vc, 312 - rem))
    e("s_waitcnt vmcnt(%d)" % rem)
    if rem % 6 == 0:
        e("ds_write_b32 v%d, v%d" % (vFlagA, vc))
    if rem == opts["srel"]:
        e("ds_write_b32 v%d, v%d offset:%d" % (vFlagA, vc, 5 * 256))
stamp(key=True)
leak("lddone")
e("s_branch L_fin")
for j in (0, 3):
    e("L_dw%d:" % j)
    for r in range((DYN if j == 0 or not opts["dyn2"] else opts["dyn2"]) - 1):
        look()
        e("s_cbranch_scc1 L_dk%d" % j)
    e("s_waitcnt vmcnt(%d)" % (W2 - G))
    e("s_branch L_dk%d" % j)
e("L_free_again:")
e("ds_read_b32 v%d, v%d" % (vF, vDoneA))
e("s_waitcnt lgkmcnt(0)")
e("v_cmp_gt_i32 vcc, s%d, v%d" % (sTk, vF))
e("s_cbranch_vccnz L_free_again")
e("s_branch L_free_ok")

vLo = 32
e("L_storer:")
e("v_and_b32 v%d, 3, v%d" % (vDoneA, vLane))
e("v_lshlrev_b32 v%d, 8, v%d" % (vDoneA, vDoneA))
e("v_add_u32 v%d, %d, v%d" % (vDoneA, DONE, vDoneA))
e("v_lshlrev_b32 v%d, 4, v%d" % (vR, vLane))
e("v_add_u32 v%d, %d, v%d" % (vR, QRING, vR))
e("v_lshlrev_b32 v%d, 2, v%d" % (vAK, vLane))
e("v_add_u32 v%d, %d, v%d" % (vAK, FLAG + 6 * 256, vAK))
e("s_movk_i32 s%d, %d" % (sNeed, 312 - opts["srel"]))
e("v_mov_b32 v%d, %d" % (vFlagA, FLAG + 5 * 256))
assert opts["srel"] % 3 == 0


def fetch(tag, s_lvl, vb, base):
    e("L_ofree%s:" % tag)
    e("s_sleep 1")
    e("ds_read_b32 v%d, v%d" % (vF, vDoneA))
    e("s_waitcnt lgkmcnt(0)")
    e("v_cmp_gt_i32 vcc, %s, v%d" % (s_lvl, vF))
    e("s_cbranch_vccnz L_ofree%s" % tag)
    for j in range(24):
        if j == 12:
            e("s_waitcnt lgkmcnt(0)")
        e("ds_read_b128 %s, v%d offset:%d" % (vr(vb + 4 * j, 4), vR, base + j * 1024))
    e("s_waitcnt lgkmcnt(0)")


def store4(vb):
    for t in range(4):
        for j in range(6):
            o = " offset:%d" % ((j % 3) * 1024) if j % 3 else ""
            e("buffer_store_dwordx4 %s, v%d, %s, s%d offen%s%s" % (vr(vb + 24 * t + 4 * j, 4), vOff + j, srd(sO), sQ0, o, ST))
        e("s_add_i32 s%d, s%d, s%d" % (sQ0, sQ0, sStepB))


e("s_cmp_eq_u32 s%d, 5" % sWave)
e("s_cselect_b32 s%d, 32, 34" % sT0)
e("s_cselect_b32 s%d, 0, 8" % sT1)
e("s_mul_i32 s%d, s%d, s%d" % (sT1, sT1, sStepB))
e("s_add_i32 s%d, s%d, s%d" % (sQ0, sQ0, sT1))
e("v_mov_b32 v%d, 1" % vCnt)
fetch("a", "s%d" % sT0, vLo, 0)
e("s_cmp_eq_u32 s%d, 5" % sWave)
e("s_cbranch_scc0 L_st_wait")
e("ds_write_b32 v%d, v%d" % (vAK, vCnt))
e("v_mov_b32 v%d, 2" % vAQ)
fetch("b", "33", vLo + 96, 4 * BLK)
e("ds_write_b32 v%d, v%d" % (vAK, vAQ))
e("L_st_wait:")
poll()
stamp(key=True)
store4(vLo)
e("s_cmp_eq_u32 s%d, 5" % sWave)
e("s_cbranch_scc0 L_st_end")
store4(vLo + 96)
e("L_st_end:")
stamp(key=True)
e("s_branch L_fin")

e("L_compute:")
flag_init()
e("s_waitcnt lgkmcnt(0)")
e("s_barrier")
e("s_sub_u32 s%d, s%d, 1" % (sI, sWave))
e("s_mul_i32 s%d, s%d, %d" % (sT3, sI, BLK))
e("s_add_u32 s%d, s%d, %d" % (sT4, sT3, QRING + 4 * BLK))
e("s_mov_b32 s%d, 0" % sF)
e("v_mov_b32 v%d, %d" % (vFlagA, FLAG))
e("s_cmp_ge_u32 s%d, 5" % sWave)
e("s_cbranch_scc1 L_storer")
e("v_and_b32 v66, 15, v%d" % vLane)
e("v_lshrrev_b32 v67, 4, v%d" % vLane)
g_of(70, 66, 71)
e("v_mul_u32_u24 v68, 384, v66")
e("v_lshlrev_b32 v69, 4, v67")
e("v_xor_b32 v69, v69, v70")
e("v_add3_u32 v%d, v68, v69, s%d" % (vAK, sT3))
e("v_xor_b32 v%d, 64, v%d" % (vAK + 1, vAK))
e("v_add_u32 v%d, %d, v%d" % (vAQ, QRING, vAK))
e("v_add_u32 v%d, %d, v%d" % (vAQ + 1, QRING, vAK + 1))
e("v_lshrrev_b32 v69, 1, v67")
e("v_lshlrev_b32 v69, 4, v69")
e("v_xor_b32 v69, v69, v70")
e("v_and_b32 v71, 1, v67")
e("v_lshl_add_u32 v69, v71, 3, v69")
e("v_add3_u32 v%d, v68, v69, s%d" % (vW, sT4))
e("v_subrev_u32 v%d, %d, v%d" % (vW, 4 * BLK, vW))
for m in range(1, 4):
    e("v_xor_b32 v%d, %d, v%d" % (vW + m, 32 * m, vW))
e("v_lshlrev_b32 v69, 2, v67")
for i in range(4):
    e("v_add_u32 v71, %d, v69" % i)
    e("v_cmp_le_u32 s[%d:%d], v71, v66" % (sM + 2 * i, sM + 2 * i + 1))
e("s_ashr_i32 s%d, s%d, 31" % (sT0, sStepB))
e("s_mov_b32 s%d, s%d" % (sT1, sT0))
e("s_nop 1")
for i in range(4):
    e("s_xor_b64 s[%d:%d], s[%d:%d], s[%d:%d]" % (sM + 2 * i, sM + 2 * i + 1, sM + 2 * i, sM + 2 * i + 1, sT0, sT1))
e("s_mov_b32 s%d, 0xffff0000" % sHi)
e("v_mov_b32 v72, 0xffff")
e("v_mov_b32 v73, s%d" % sHi)
for k in range(2):
    e("v_cndmask_b32 v74, 0, v72, s[%d:%d]" % (sM + 4 * k, sM + 4 * k + 1))
    e("v_cndmask_b32 v75, 0, v73, s[%d:%d]" % (sM + 4 * k + 2, sM + 4 * k + 3))
    e("v_or_b32 v%d, v74, v75" % (vPM + k))
    e("v_not_b32 v%d, v%d" % (vPM + 2 + k, vPM + k))
e("v_lshrrev_b32 v69, 2, v%d" % vLane)
g_of(70, 69, 71)
e("v_mul_u32_u24 v68, 384, v69")
e("v_bfe_u32 v71, v%d, 1, 1" % vLane)
e("v_lshlrev_b32 v71, 4, v71")
e("v_xor_b32 v70, v70, v71")
e("v_and_b32 v71, 1, v%d" % vLane)
e("v_lshl_add_u32 v70, v71, 3, v70")
e("v_add3_u32 v%d, v68, v70, s%d" % (vAV, sT3))
for m in range(1, 4):
    e("v_xor_b32 v%d, %d, v%d" % (vAV + m, 32 * m, vAV))
e("v_lshlrev_b32 v%d, 4, v%d" % (vR, vLane))
e("v_add_u32 v%d, s%d, v%d" % (vR, sT4, vR))
if opts["dry"]:
    e("s_mov_b32 s%d, 12" % sI)
    e("s_mov_b32 s%d, -1" % sF)
    e("s_mov_b64 vcc, 0")
    e("s_mov_b64 exec, 0")
    e("s_branch L_qk")
    e("L_real:")
    e("s_mov_b64 exec, -1")
    e("s_mov_b32 s%d, 0" % sF)
    e("s_sub_u32 s%d, s%d, 1" % (sI, sWave))
e("s_cmp_eq_u32 s%d, 0" % sChunk)
e("s_cselect_b32 s%d, 0xff800000, 0" % sT2)
e("s_cmp_lt_u32 s%d, 2" % sI)
e("s_cselect_b32 s%d, s%d, 0" % (sInit0, sT2))
e("s_cmp_eq_u32 s%d, 0" % sI)
e("s_cselect_b32 s%d, s%d, 0" % (sInit1, sT2))
e("s_mov_b32 s%d, %s" % (sScale, f32hex(192 ** -0.5)))
if opts["mimic"]:
    e("s_mov_b32 s%d, %s" % (sLog2e, f32hex(1.4426950408889634)))
else:
    e("s_mov_b32 s%d, %s" % (sLog2e, f32hex(1.4426950408889634 * 192 ** -0.5)))
e("s_movk_i32 s%d, %d" % (sT3, 4 * BLK))

e("L_qk:")
for i in range(4):
    e("v_mov_b32 v%d, s%d" % (vS + i, sInit0))
    e("v_mov_b32 v%d, s%d" % (vS + 4 + i, sInit1))
e("s_mov_b32 s%d, 0" % sInit0)
e("s_mov_b32 s%d, 0" % sInit1)
for r in range(18):
    e("v_mov_b32 v%d, v%d" % (vP + r, vP + 6 + r))
e("s_add_u32 s%d, s%d, 1" % (sT1, sI))
e("v_mov_b32 v%d, s%d" % (vCnt, sT1))
e("s_add_u32 s%d, s%d, 19" % (sNeed, sI))
e("s_mul_i32 s%d, s%d, 6" % (sNeed, sNeed))
poll()
stamp()


def qk_reads(i):
    o = (i >> 1) * 128
    e("ds_read_b128 %s, v%d offset:%d" % (vr(vQ + 4 * i, 4), vAQ + (i & 1), o))
    for j in range(3):
        e("ds_read_b128 %s, v%d offset:%d" % (vr(vK + 12 * (i & 3) + 4 * j, 4), vAK + (i & 1), o + j * BLK))


for i in range(3):
    qk_reads(i)
for k in range(6):
    e("s_waitcnt lgkmcnt(%d)" % (4 * min(2, 5 - k)))
    if k == 5:
        e("ds_write_b32 v%d, v%d" % (vDoneA, vCnt))
    for j in range(3):
        c = "0" if (k == 0 and j == 2) else vr(vS + 4 * j, 4)
        e("v_mfma_f32_16x16x32_bf16 %s, %s, %s, %s" % (vr(vS + 4 * j, 4), vr(vK + 12 * (k & 3) + 4 * j, 4), vr(vQ + 4 * k, 4), c))
    if k + 3 < 6:
        qk_reads(k + 3)
e("v_add_u32 v%d, %d, v%d" % (vAK, 4 * BLK, vAK))
e("v_add_u32 v%d, %d, v%d" % (vAK + 1, 4 * BLK, vAK + 1))
e("v_add_u32 v%d, s%d, v%d" % (vAQ, sT3, vAQ))
e("v_add_u32 v%d, s%d, v%d" % (vAQ + 1, sT3, vAQ + 1))
e("s_sub_i32 s%d, 0, s%d" % (sT3, sT3))
e("s_add_u32 s%d, s%d, %d" % (sI, sI, NC))
e("s_nop 2")
for i in range(4):
    e("v_cndmask_b32 v%d, v%d, v%d, s[%d:%d]" % (vX + i, vS + i, vS + 8 + i, sM + 2 * i, sM + 2 * i + 1))
xs = [vX + i for i in range(4)] + [vS + 4 + i for i in range(4)]
ys = [vX + i for i in range(8)]
if opts["mimic"]:
    for p in range(4):
        e("v_cvt_pk_bf16_f32 v%d, v%d, v%d" % (vT + p, xs[2 * p], xs[2 * p + 1]))
    for p in range(4):
        e("v_lshlrev_b32 v%d, 16, v%d" % (ys[2 * p], vT + p))
        e("v_and_b32 v%d, s%d, v%d" % (ys[2 * p + 1], sHi, vT + p))
    for p in range(8):
        e("v_mul_f32 v%d, s%d, v%d" % (ys[p], sScale, ys[p]))
    for p in range(4):
        e("v_cvt_pk_bf16_f32 v%d, v%d, v%d" % (vT + p, ys[2 * p], ys[2 * p + 1]))
    for p in range(4):
        e("v_lshlrev_b32 v%d, 16, v%d" % (ys[2 * p], vT + p))
        e("v_and_b32 v%d, s%d, v%d" % (ys[2 * p + 1], sHi, vT + p))
else:
    ys = xs
m, m2 = vT + 4, vT + 5
e("v_max3_f32 v%d, v%d, v%d, v%d" % (m, ys[0], ys[1], ys[2]))
e("v_max3_f32 v%d, v%d, v%d, v%d" % (m2, ys[3], ys[4], ys[5]))
e("v_max3_f32 v%d, v%d, v%d, v%d" % (m, m, ys[6], ys[7]))
e("v_max_f32 v%d, v%d, v%d" % (m, m, m2))
e("v_mov_b32 v%d, v%d" % (m2, m))
e("s_nop 1")
e("v_permlane16_swap_b32 v%d, v%d" % (m, m2))
e("s_nop 0")
e("v_max_f32 v%d, v%d, v%d" % (m, m, m2))
e("v_mov_b32 v%d, v%d" % (m2, m))
e("s_nop 1")
e("v_permlane32_swap_b32 v%d, v%d" % (m, m2))
e("s_nop 0")
e("v_max_f32 v%d, v%d, v%d" % (m, m, m2))
e("v_mul_f32 v%d, s%d, v%d" % (m, sLog2e, m))
es = [vX + i for i in range(8)]
for p in range(8):
    e("v_fma_f32 v%d, v%d, s%d, -v%d" % (es[p], ys[p], sLog2e, m))
for p in range(8):
    e("v_exp_f32 v%d, v%d" % (es[p], es[p]))
sm, sm2 = vT + 6, vT + 7
e("v_add_f32 v%d, v%d, v%d" % (sm, es[0], es[1]))
e("v_add_f32 v%d, v%d, v%d" % (sm2, es[2], es[3]))
e("v_add_f32 v%d, v%d, v%d" % (sm, sm, es[4]))
e("v_add_f32 v%d, v%d, v%d" % (sm2, sm2, es[5]))
e("v_add_f32 v%d, v%d, v%d" % (sm, sm, es[6]))
e("v_add_f32 v%d, v%d, v%d" % (sm2, sm2, es[7]))
e("v_add_f32 v%d, v%d, v%d" % (sm, sm, sm2))
e("v_mov_b32 v%d, v%d" % (sm2, sm))
e("s_nop 1")
e("v_permlane16_swap_b32 v%d, v%d" % (sm, sm2))
e("s_nop 0")
e("v_add_f32 v%d, v%d, v%d" % (sm, sm, sm2))
e("v_mov_b32 v%d, v%d" % (sm2, sm))
e("s_nop 1")
e("v_permlane32_swap_b32 v%d, v%d" % (sm, sm2))
e("s_nop 0")
e("v_add_f32 v%d, v%d, v%d" % (sm, sm, sm2))
e("v_rcp_f32 v%d, v%d" % (sm, sm))
e("s_nop 0")
for p in range(8):
    e("v_mul_f32 v%d, v%d, v%d" % (es[p], es[p], sm))
PN = vP + 18
e("v_cvt_pk_bf16_f32 v%d, v%d, v%d" % (vT, es[0], es[1]))
e("v_cvt_pk_bf16_f32 v%d, v%d, v%d" % (vT + 1, es[2], es[3]))
e("v_cvt_pk_bf16_f32 v%d, v%d, v%d" % (PN + 2, es[4], es[5]))
e("v_cvt_pk_bf16_f32 v%d, v%d, v%d" % (PN + 3, es[6], es[7]))
e("v_and_b32 v%d, v%d, v%d" % (PN, vT, vPM + 2))
e("v_and_b32 v%d, v%d, v%d" % (PN + 1, vT + 1, vPM + 3))
e("v_and_b32 v%d, v%d, v%d" % (PN + 4, vT, vPM))
e("v_and_b32 v%d, v%d, v%d" % (PN + 5, vT + 1, vPM + 1))
stamp()
e("s_cmp_lt_u32 s%d, 16" % sI)
e("s_cbranch_scc1 L_qk")

sSt, sWs = 66, 67
e("s_sub_u32 s%d, s%d, 4" % (sSt, sI))
e("s_sub_u32 s%d, s%d, 16" % (sI, sI))
e("s_mul_i32 s%d, s%d, s%d" % (sSt, sSt, sStepB))
e("s_add_i32 s%d, s%d, s%d" % (sSt, sSt, sQ0))
e("s_movk_i32 s%d, %d" % (sWs, 4 * BLK))
e("v_mov_b32 v%d, 32" % vCnt)
e("L_pv:")
e("s_add_u32 s%d, s%d, 36" % (sNeed, sI))
e("s_mul_i32 s%d, s%d, 6" % (sNeed, sNeed))
poll()
stamp()


def va_reads(t):
    for j in range(2):
        e("ds_read_b64_tr_b16 %s, v%d offset:%d" % (vr(vVa + 4 * (t & 7) + 2 * j, 2), vAV + (t & 3), (t >> 2) * 128 + j * BLK))


for t in range(6):
    va_reads(t)
for t in range(12):
    e("s_waitcnt lgkmcnt(%d)" % (2 * min(5, 11 - t)))
    e("v_mfma_f32_16x16x32_bf16 %s, %s, %s, 0" % (vr(vAcc + 4 * t, 4), vr(vVa + 4 * (t & 7), 4), vr(vP, 4)))
    if t + 6 < 12:
        va_reads(t + 6)
e("s_add_u32 s%d, s%d, 6" % (sNeed, sNeed))
e("s_lshr_b32 s%d, s%d, 2" % (sT0, sI))
e("s_sub_i32 s%d, s%d, 1" % (sT0, sT0))
e("L_copied:")
e("ds_read_b32 v%d, v%d offset:%d" % (vF, vFlagA, 6 * 256))
e("s_waitcnt lgkmcnt(0)")
e("v_cmp_gt_i32 vcc, s%d, v%d" % (sT0, vF))
e("s_cbranch_vccnz L_copied")
poll()
stamp()
for t in range(12):
    e("ds_read_b64_tr_b16 %s, v%d offset:%d" % (vr(vVb + 2 * t, 2), vAV + (t & 3), (t >> 2) * 128 + 2 * BLK))


def o_out(t):
    e("v_cvt_pk_bf16_f32 v%d, v%d, v%d" % (vOp + 2 * t, vAcc + 4 * t, vAcc + 4 * t + 1))
    e("v_cvt_pk_bf16_f32 v%d, v%d, v%d" % (vOp + 2 * t + 1, vAcc + 4 * t + 2, vAcc + 4 * t + 3))
    e("ds_write_b64 v%d, %s offset:%d" % (vW + (t & 3), vr(vOp + 2 * t, 2), (t >> 2) * 128))


LAG = 4
for t in range(12):
    nwr = max(0, t - LAG)
    e("s_waitcnt lgkmcnt(%d)" % min(15, 11 - t + nwr))
    e("v_mfma_f32_16x16x16_bf16 %s, %s, %s, %s" % (vr(vAcc + 4 * t, 4), vr(vVb + 2 * t, 2), vr(vP + 4, 2), vr(vAcc + 4 * t, 4)))
    if t >= LAG:
        o_out(t - LAG)
for t in range(12 - LAG, 12):
    o_out(t)
e("s_cmp_ge_u32 s%d, 12" % sI)
e("s_cbranch_scc1 L_last")


def readback(vbase):
    e("s_waitcnt lgkmcnt(0)")
    for j in range(6):
        e("ds_read_b128 %s, v%d offset:%d" % (vr(vbase + 4 * j, 4), vR, j * 1024))


e("s_add_u32 s%d, s%d, %d" % (sI, sI, NC))
for r in range(18):
    e("v_mov_b32 v%d, v%d" % (vP + r, vP + 6 + r))
for m in range(4):
    e("v_add_u32 v%d, %d, v%d" % (vAV + m, 4 * BLK, vAV + m))
for m in range(4):
    e("v_add_u32 v%d, s%d, v%d" % (vW + m, sWs, vW + m))
e("s_sub_i32 s%d, 0, s%d" % (sWs, sWs))
e("s_waitcnt lgkmcnt(0)")
e("ds_write_b32 v%d, v%d" % (vDoneA, vCnt))
if opts["dry"]:
    e("s_cbranch_execz L_real")
stamp()
e("v_add_u32 v%d, 1, v%d" % (vCnt, vCnt))
e("s_branch L_pv")
e("L_last:")
if opts["stamp"] >= 3:
    stamp(key=True)
readback(vAcc)
for j in range(6):
    o = " offset:%d" % ((j % 3) * 1024) if j % 3 else ""
    e("s_waitcnt lgkmcnt(%d)" % (5 - j))
    e("buffer_store_dwordx4 %s, v%d, %s, s%d offen%s%s" % (vr(vAcc + 4 * j, 4), vOff + j, srd(sO), sSt, o, ST))
stamp(key=True)
e("L_fin:")
if opts["stamp"]:
    e("s_waitcnt vmcnt(0)")
    e("s_mov_b32 s%d, 61" % sStampIdx)
    stamp(True)
    e("s_getreg_b32 s62, hwreg(HW_REG_XCC_ID)")
    e("v_writelane_b32 v%d, s62, 62" % vStamp)
    e("s_load_dwordx2 s[%d:%d], s[0:1], 40" % (sQ, sQ + 1))
    e("s_mov_b32 s%d, %d" % (sQ + 2, NBYTES))
    e("s_mul_i32 s62, s2, %d" % (NW * 256))
    e("v_lshlrev_b32 v0, 2, v0")
    e("s_waitcnt lgkmcnt(0)")
    e("buffer_store_dword v%d, v0, %s, s62 offen" % (vStamp, srd(sQ)))
if opts["spin"]:
    if opts["leak"]:
        if opts["leak"] == "fin":
            e("s_waitcnt vmcnt(0)")
            leak("fin")
        e("s_sub_u32 s62, s64, s60")
        e("s_lshl_b32 s62, s62, 2")
        e("s_add_u32 s%d, s62, %d" % (sLeak, opts["spin"]))
    else:
        e("s_mov_b32 s%d, %d" % (sLeak, opts["spin"]))
    e("L_spin:")
    e("s_sleep 4")
    e("s_memrealtime s[62:63]")
    e("s_waitcnt lgkmcnt(0)")
    e("s_sub_u32 s62, s62, s60")
    e("s_cmp_lt_u32 s62, s%d" % sLeak)
    e("s_cbranch_scc1 L_spin")
e("L_end:")
e("s_endpgm")

hdr = """; Sliding-window (w=32) attention, B=1 H=32 S=2048 D=192, bf16.  Generated by gen11.py (hand-written generator).
; kernarg: q, k, v, out, debug, ws
; One workgroup per 256 query rows.  Wave 0 streams 16-row blocks into LDS by LDS-DMA (all K, all Q, all V);
; waves 1..4 each take every 4th 16-query task (S^T = K Q^T, softmax, O^T = V^T P^T with 16x16 MFMAs).
; Hand-off inside the workgroup through LDS counters; outputs stay in registers until the loads are done.
; @launch grid=(256,1,1) block=(%d,1,1) lds=%d
.amdgcn_target "amdgcn-amd-amdhsa--gfx950"
.text
.globl %s_kernel
.p2align 8
.type %s_kernel,@function
%s_kernel:
""" % (64 * NW, LDS, NAME, NAME, NAME)

ftr = """
.section .rodata,"a"
.p2align 6
.amdhsa_kernel %s_kernel
  .amdhsa_next_free_vgpr %d
  .amdhsa_next_free_sgpr 80
  .amdhsa_accum_offset %d
  .amdhsa_group_segment_fixed_size 0
  .amdhsa_kernarg_size 48
  .amdhsa_user_sgpr_count 2
  .amdhsa_user_sgpr_kernarg_segment_ptr 1
  .amdhsa_system_sgpr_workgroup_id_x 1
.end_amdhsa_kernel
""" % (NAME, NVGPR, NVGPR)

open(sys.argv[1], "w").write(hdr + "\n".join(L) + ftr)
```

```python
import sys
import struct

NAME = "standalone__sliding_local_fixed_window__prompt"

opts = dict(
    ld="nt",
    st="sc1",
    xcdmap=1,
    mimic=1,
    w=21,
    gran=3,
    pre=4,
    open=2,
    srel=24,
    dyn=6,
    w2=36,
    srel2=-1,
    emask=0x0f,
    ploop=1,
    align=12,
    near=1,
    dyn2=0,
    dry=1,
    boost=0,
    blen=5,
    bst=16,
    sleep=1,
    prio=3,
    stamp=0,
    spin=0,
    leak="",
)
for a in sys.argv[2:]:
    k, v = a.split("=")
    assert k in opts, k
    opts[k] = v if isinstance(opts[k], str) else int(v, 0)

LD = (" " + opts["ld"].replace("+", " ")) if opts["ld"] else ""
ST = (" " + opts["st"].replace("+", " ")) if opts["st"] else ""
NC = 4

BLK = 6144
KV = 0
QRING = 18 * BLK
FLAG = 26 * BLK
DONE = FLAG + 256
NW = NC + 3
LDS = FLAG + 256 * NW
NBYTES = 32 * 2048 * 384

L = []


def e(s=""):
    L.append("    " + s if s and not s.endswith(":") else s)


def f32hex(x):
    return "0x%08x" % struct.unpack("<I", struct.pack("<f", x))[0]


sQ, sK, sV, sO = 12, 16, 20, 24
sWave = 28
sStepB = 29
sKV0 = 30
sQ0 = 31
sMinOff = 32
sChunk = 33
sI = 34
sF = 35
sM = 36
sScale = 44
sLog2e = 45
sT0, sT1, sT2, sT3, sT4 = 46, 47, 48, 49, 50
sHi = 52
sNeed = 53
sOff = 54
sLds = 55
sInit0, sInit1 = 56, 57
sStampIdx = 58
sLeak = 59

vOff = 1
vLane = 7
vAK = 8
vAQ = 10
vAV = 12
vW = 16
vR = 20
vPM = 21
vFlagA = 25
vDoneA = 26
vF = 27
vCnt = 28
vP = 30
vVb = 56
vVa = 80
vOp = vVa
vAcc = 112
vHold = 160
vQ = 56
vK = 80
vS = 128
vX = 140
vT = 148
vStamp = 224
NVGPR = 232


def srd(s):
    return "s[%d:%d]" % (s, s + 3)


def vr(a, n):
    return "v[%d:%d]" % (a, a + n - 1) if n > 1 else "v%d" % a


def stamp(always=False, key=False):
    if opts["stamp"] == 1 or (opts["stamp"] and always) or (opts["stamp"] >= 3 and key):
        e("s_memrealtime s[62:63]")
        e("s_mov_b32 m0, s%d" % sStampIdx)
        e("s_waitcnt lgkmcnt(0)")
        e("v_writelane_b32 v%d, s62, m0" % vStamp)
        e("s_add_u32 s%d, s%d, 1" % (sStampIdx, sStampIdx))


def leak(name):
    if opts["leak"] != name:
        return
    e("s_waitcnt lgkmcnt(0)")
    e("s_memrealtime s[64:65]")
    e("s_waitcnt lgkmcnt(0)")


def gfun(r):
    return ((((r >> 2) ^ (r >> 3)) & 1) << 2) | (r & 2) | ((r >> 3) & 1)


def g_of(vdst, vrow, vtmp):
    e("v_lshrrev_b32 v%d, 1, v%d" % (vtmp, vrow))
    e("v_xor_b32 v%d, v%d, v%d" % (vtmp, vtmp, vrow))
    e("v_and_b32 v%d, 4, v%d" % (vtmp, vtmp))
    e("v_and_or_b32 v%d, v%d, 2, v%d" % (vtmp, vrow, vtmp))
    e("v_bfe_u32 v%d, v%d, 3, 1" % (vdst, vrow))
    e("v_or_b32 v%d, v%d, v%d" % (vdst, vdst, vtmp))
    e("v_lshlrev_b32 v%d, 4, v%d" % (vdst, vdst))


def dma_block(s_srd, s_off, s_lds, lds, before=None, after=None):
    setm0 = (lambda x: e("s_mov_b32 m0, %d" % x)) if s_lds is None else (lambda x: e("s_add_u32 m0, s%d, %d" % (s_lds, x)))
    for j in range(6):
        if j % 3 == 0:
            setm0(lds + 1024 * j)
        did = before(j) if before else False
        if j % 3 == 0 and not did:
            e("s_nop 0")
        o = " offset:%d" % ((j % 3) * 1024) if j % 3 else ""
        e("buffer_load_dwordx4 v%d, %s, s%d offen%s%s lds" % (vOff + j, srd(s_srd), s_off, o, LD))
        if after:
            after(j)


def pub(cnt):
    if cnt:
        e("v_add_u32 v%d, %d, v%d" % (vCnt, cnt, vCnt))
        e("ds_write_b32 v%d, v%d" % (vFlagA, vCnt))


npoll = [0]


def poll():
    n = npoll[0]
    npoll[0] += 1
    e("s_cmp_ge_u32 s%d, s%d" % (sF, sNeed))
    e("s_cbranch_scc1 L_go%d" % n)
    e("L_poll%d:" % n)
    e("ds_read_b32 v%d, v%d" % (vF, vFlagA))
    e("s_waitcnt lgkmcnt(0)")
    e("v_readfirstlane_b32 s%d, v%d" % (sF, vF))
    e("s_nop 0")
    e("s_cmp_ge_u32 s%d, s%d" % (sF, sNeed))
    e("s_cbranch_scc1 L_go%d" % n)
    if opts["sleep"]:
        e("s_sleep %d" % opts["sleep"])
    e("s_branch L_poll%d" % n)
    e("L_go%d:" % n)


def flag_init(loader=False):
    va = vFlagA if loader else vDoneA
    e("v_lshlrev_b32 v%d, 2, v0" % va)
    e("v_add_u32 v%d, %d, v%d" % (va, FLAG, va))
    if loader:
        e("v_mov_b32 v%d, 0" % vF)
    else:
        e("s_sub_u32 s%d, s%d, 4" % (sT0, sWave))
        e("s_min_i32 s%d, s%d, 0" % (sT0, sT0))
        e("v_mov_b32 v%d, s%d" % (vF, sT0))
    e("ds_write_b32 v%d, v%d" % (va, vF))


e("s_cmp_ge_u32 s2, 256")
e("s_cbranch_scc1 L_end")
if opts["spin"] or opts["stamp"]:
    e("s_memrealtime s[60:61]")
e("s_load_dwordx2 s[%d:%d], s[0:1], 8" % (sK, sK + 1))
e("s_load_dwordx2 s[%d:%d], s[0:1], 0" % (sQ, sQ + 1))
e("s_load_dwordx2 s[%d:%d], s[0:1], 16" % (sV, sV + 1))
e("s_load_dwordx2 s[%d:%d], s[0:1], 24" % (sO, sO + 1))
e("v_and_b32 v%d, 63, v0" % vLane)
e("v_readfirstlane_b32 s%d, v0" % sWave)
e("v_lshrrev_b32 v65, 1, v%d" % vLane)
e("v_and_b32 v65, 28, v65")
e("s_movk_i32 s%d, 0x50" % sT4)
e("v_mov_b32 v67, 3072")
for j in range(3):
    tab = sum(gfun((8 * j + l) // 3) << (4 * l) for l in range(8))
    assert all(gfun((8 * (j + 3) + l) // 3) == gfun((8 * j + l) // 3) ^ 5 for l in range(8))
    e("s_mov_b32 s%d, 0x%x" % (sT3, tab))
    e("v_bfe_u32 v66, s%d, v65, 3" % sT3)
    e("v_xor_b32 v66, v66, v%d" % vLane)
    e("v_lshlrev_b32 v%d, 4, v66" % (vOff + j))
    e("v_xad_u32 v%d, v%d, s%d, v67" % (vOff + 3 + j, vOff + j, sT4))
e("s_mov_b32 s%d, %d" % (sK + 2, NBYTES))
e("s_mov_b32 s%d, 0x20000" % (sK + 3))
for s in (sQ, sV, sO):
    e("s_mov_b32 s%d, s%d" % (s + 2, sK + 2))
    e("s_mov_b32 s%d, s%d" % (s + 3, sK + 3))
e("s_and_b32 s%d, s2, 7" % sT1)
e("s_lshr_b32 s%d, s2, 6" % sT2)
if opts["xcdmap"] == 1:
    e("s_lshl3_add_u32 s%d, s%d, s%d" % (sT1, sT2, sT1))
else:
    e("s_lshl2_add_u32 s%d, s%d, s%d" % (sT1, sT1, sT2))
e("s_bfe_u32 s%d, s2, 0x30003" % sChunk)
e("s_mul_i32 s%d, s%d, %d" % (sMinOff, sT1, 2048 * 384))
e("s_lshl_b32 s%d, s%d, 4" % (sT2, sChunk))
e("s_bitcmp1_b32 s%d, 0" % sChunk)
e("s_cselect_b32 s%d, -1, 1" % sStepB)
e("s_cselect_b32 s%d, 15, -2" % sKV0)
e("s_cselect_b32 s%d, 15, 0" % sQ0)
e("s_add_i32 s%d, s%d, s%d" % (sKV0, sKV0, sT2))
e("s_add_i32 s%d, s%d, s%d" % (sQ0, sQ0, sT2))
e("s_mulk_i32 s%d, %d" % (sStepB, BLK))
e("s_mulk_i32 s%d, %d" % (sKV0, BLK))
e("s_mulk_i32 s%d, %d" % (sQ0, BLK))
e("s_add_i32 s%d, s%d, s%d" % (sKV0, sKV0, sMinOff))
e("s_add_i32 s%d, s%d, s%d" % (sQ0, sQ0, sMinOff))
e("s_lshr_b32 s%d, s%d, 6" % (sWave, sWave))
if opts["stamp"]:
    e("s_waitcnt lgkmcnt(0)")
    e("v_mov_b32 v%d, 0" % vStamp)
    e("v_writelane_b32 v%d, s60, 0" % vStamp)
    e("s_mov_b32 s%d, 1" % sStampIdx)
    stamp()
if opts["leak"]:
    e("s_waitcnt lgkmcnt(0)")
    e("s_mov_b32 s64, s60")
e("s_cmp_lg_u32 s%d, 0" % sWave)
if opts["near"]:
    e("s_cbranch_scc0 L_loader")
    flag_init()
    e("s_waitcnt lgkmcnt(0)")
    e("s_barrier")
    e("s_branch L_compute")
    e("L_loader:")
else:
    e("s_cbranch_scc1 L_compute")

W, G, PRE, DYN, W2 = opts["w"], opts["gran"], opts["pre"], opts["dyn"], opts["w2"]
assert 6 % G == 0 and 2 <= PRE <= 6 and W2 <= 36 and W2 + 6 * opts["open"] <= 60
sW = 72
sMaskP, sEncP, sIss, sTk = 70, 71, 69, 68


def enc(w):
    return (w & 15) | ((w >> 4) << 22)


if opts["prio"]:
    e("s_setprio %d" % opts["prio"])
sV0, sV2 = 66, 67
e("s_max_i32 s%d, s%d, s%d" % (sV0, sKV0, sMinOff))
e("s_add_i32 s%d, s%d, s%d" % (sT1, sV0, sStepB))
e("s_add_i32 s%d, s%d, s%d" % (sOff, sKV0, sStepB))
e("s_add_i32 s%d, s%d, s%d" % (sV2, sOff, sStepB))
if opts["ploop"]:
    e("s_mov_b32 s%d, s%d" % (sOff, sV0))
    e("s_mov_b32 s%d, 0" % sLds)
    e("s_waitcnt lgkmcnt(0)")
    e("L_pre:")
    dma_block(sK, sOff, sLds, KV)
    e("s_add_i32 s%d, s%d, s%d" % (sOff, sOff, sStepB))
    e("s_addk_i32 s%d, %d" % (sLds, BLK))
    e("s_cmpk_eq_u32 s%d, %d" % (sLds, 2 * BLK))
    e("s_cselect_b32 s%d, s%d, s%d" % (sOff, sV2, sOff))
    e("s_cmpk_lt_u32 s%d, %d" % (sLds, PRE * BLK))
    e("s_cbranch_scc1 L_pre")
else:
    e("s_waitcnt lgkmcnt(0)")
    dma_block(sK, sV0, None, KV)
    dma_block(sK, sT1, None, KV + BLK)
    for n in range(2, PRE):
        e("s_add_i32 s%d, s%d, s%d" % (sOff, sOff, sStepB))
        dma_block(sK, sOff, None, KV + n * BLK)
    e("s_add_i32 s%d, s%d, s%d" % (sOff, sOff, sStepB))
flag_init(True)
e("v_and_b32 v%d, 3, v%d" % (vDoneA, vLane))
e("v_lshlrev_b32 v%d, 8, v%d" % (vDoneA, vDoneA))
e("v_add_u32 v%d, %d, v%d" % (vDoneA, DONE, vDoneA))
e("s_mov_b32 s%d, 0xc0000f" % sMaskP)
e("s_mov_b32 s%d, 0x%x" % (sEncP, enc(W - G)))
e("s_mov_b32 s%d, %d" % (sIss, 6 * PRE + 3))
e("s_mov_b32 s%d, %d" % (sTk, PRE - 25 - 3))
e("s_mov_b32 s%d, s%d" % (sT0, sOff))
e("s_mov_b32 s%d, %d" % (sLds, PRE * BLK))
e("s_mov_b32 s%d, %d" % (sI, PRE))
e("s_mov_b64 s[%d:%d], s[%d:%d]" % (sW, sW + 1, sK, sK + 1))
e("s_mov_b32 s%d, s%d" % (sW + 2, sK + 2))
e("s_mov_b32 s%d, s%d" % (sW + 3, sK + 3))
events = {PRE + 1, 18, 26, 34, 36, 52} | ({52 - opts["open"]} if opts["open"] else set())
BON, BOFF = (opts["bst"], 34), (opts["bst"] + opts["blen"], 34 + opts["blen"])
if opts["boost"]:
    events |= set(BON) | set(BOFF)
evm = sum(1 << x for x in events)
sEv = 76
e("s_mov_b32 s%d, 0x%x" % (sEv, evm & 0xffffffff))
e("s_mov_b32 s%d, 0x%x" % (sEv + 1, evm >> 32))
e("s_waitcnt lgkmcnt(0)")
if opts["stamp"] == 4:
    e("s_mov_b32 s78, 0")
e("s_barrier")
e("L_ld:")
assert G == 3


def look():
    e("s_getreg_b32 s%d, hwreg(HW_REG_IB_STS)" % sT3)
    e("s_and_b32 s%d, s%d, s%d" % (sT3, sT3, sMaskP))
    e("s_cmp_le_u32 s%d, s%d" % (sT3, sEncP))


def before(j):
    if j % G:
        return False
    look()
    e("s_cbranch_scc0 L_dw%d" % j)
    e("L_dk%d:" % j)
    return True


def after(j):
    if j == 2:
        e("ds_read_b32 v%d, v%d" % (vF, vDoneA))
    if j == 5:
        e("s_lshr_b32 s%d, s%d, 18" % (sT4, sT3))
        e("s_add_u32 s%d, s%d, s%d" % (sT3, sT3, sT4))
        e("s_and_b32 s%d, s%d, 63" % (sT3, sT3))
        e("s_sub_u32 s%d, s%d, s%d" % (sT3, sIss, sT3))
        e("v_mov_b32 v%d, s%d" % (vCnt, sT3))
        e("ds_write_b32 v%d, v%d" % (vFlagA, vCnt))


def slow_paths():
    for j in (0, 3):
        e("L_dw%d:" % j)
        for r in range((DYN if j == 0 or not opts["dyn2"] else opts["dyn2"]) - 1):
            look()
            e("s_cbranch_scc1 L_dk%d" % j)
        e("s_waitcnt vmcnt(%d)" % (W2 - G))
        e("s_branch L_dk%d" % j)
    e("L_free_again:")
    if opts["stamp"] == 4:
        e("s_add_u32 s78, s78, 1")
    e("ds_read_b32 v%d, v%d" % (vF, vDoneA))
    e("s_waitcnt lgkmcnt(0)")
    e("v_cmp_gt_i32 vcc, s%d, v%d" % (sTk, vF))
    e("s_cbranch_vccnz L_free_again")
    e("s_branch L_free_ok")


dma_block(sW, sT0, sLds, 0, before, after)
e("s_add_u32 s%d, s%d, 6" % (sIss, sIss))
e("s_add_u32 s%d, s%d, 1" % (sI, sI))
e("s_add_i32 s%d, s%d, s%d" % (sT0, sT0, sStepB))
e("s_add_u32 s%d, s%d, %d" % (sLds, sLds, BLK))
e("s_waitcnt lgkmcnt(1)")
e("v_cmp_ge_i32 vcc, s%d, v%d" % (sTk, vF))
e("s_add_i32 s%d, s%d, 1" % (sTk, sTk))
e("s_cbranch_vccnz L_free_again")
e("L_free_ok:")
e("s_bitcmp1_b64 s[%d:%d], s%d" % (sEv, sEv + 1, sI))
e("s_cbranch_scc0 L_ld")
if opts["ploop"]:
    e("s_branch L_event")
    slow_paths()
    e("L_event:")
if opts["stamp"] == 4:
    stamp(True)
e("s_cmp_eq_u32 s%d, 18" % sI)
e("s_cselect_b64 s[%d:%d], s[%d:%d], s[%d:%d]" % (sW, sW + 1, sQ, sQ + 1, sW, sW + 1))
e("s_cselect_b32 s%d, s%d, s%d" % (sT0, sQ0, sT0))
e("s_cmp_eq_u32 s%d, 26" % sI)
e("s_cselect_b32 s%d, %d, s%d" % (sLds, QRING, sLds))
e("s_cmp_eq_u32 s%d, 34" % sI)
e("s_cselect_b64 s[%d:%d], s[%d:%d], s[%d:%d]" % (sW, sW + 1, sV, sV + 1, sW, sW + 1))
e("s_cselect_b32 s%d, s%d, s%d" % (sT0, sV0, sT0))
e("s_cselect_b32 s%d, 0, s%d" % (sLds, sLds))
e("s_cselect_b32 s%d, -2, s%d" % (sTk, sTk))
e("s_cmp_eq_u32 s%d, 36" % sI)
e("s_cselect_b32 s%d, s%d, s%d" % (sT0, sV2, sT0))
if opts["boost"]:
    for x in BON:
        e("s_cmp_eq_u32 s%d, %d" % (sI, x))
        e("s_cselect_b32 s%d, 0x%x, s%d" % (sEncP, enc(W + opts["boost"] - G), sEncP))
    for x in BOFF:
        e("s_cmp_eq_u32 s%d, %d" % (sI, x))
        e("s_cselect_b32 s%d, 0x%x, s%d" % (sEncP, enc(W - G), sEncP))
if opts["open"]:
    e("s_cmp_eq_u32 s%d, %d" % (sI, 52 - opts["open"]))
    e("s_cselect_b32 s%d, s%d, s%d" % (sEncP, sMaskP, sEncP))
e("s_cmp_lt_u32 s%d, 52" % sI)
e("s_cbranch_scc1 L_ld")
stamp(key=True)
leak("ldiss")
for k, rem in enumerate(range(W2 + 6 * opts["open"], -1, -3)):
    vc = (vCnt, vF)[k & 1]
    e("v_mov_b32 v%d, %d" % (vc, 312 - rem))
    e("s_waitcnt vmcnt(%d)" % rem)
    if rem % 6 == 0:
        e("ds_write_b32 v%d, v%d" % (vFlagA, vc))
    if rem in (opts["srel"], opts["srel2"]):
        e("ds_write_b32 v%d, v%d offset:%d" % (vFlagA, vc, 5 * 256))
stamp(key=True)
if opts["stamp"] == 4:
    e("v_writelane_b32 v%d, s78, 63" % vStamp)
leak("lddone")
e("s_branch L_fin")
if not opts["ploop"]:
    slow_paths()

vLo = 32
e("L_storer:")
e("v_and_b32 v%d, 3, v%d" % (vDoneA, vLane))
e("v_lshlrev_b32 v%d, 8, v%d" % (vDoneA, vDoneA))
e("v_add_u32 v%d, %d, v%d" % (vDoneA, DONE, vDoneA))
e("v_lshlrev_b32 v%d, 4, v%d" % (vR, vLane))
e("v_add_u32 v%d, %d, v%d" % (vR, QRING, vR))
e("v_lshlrev_b32 v%d, 2, v%d" % (vAK, vLane))
e("v_add_u32 v%d, %d, v%d" % (vAK, FLAG + 6 * 256, vAK))
if opts["srel2"] >= 0:
    e("s_getreg_b32 s%d, hwreg(HW_REG_XCC_ID)" % sNeed)
    e("s_and_b32 s%d, s%d, 7" % (sNeed, sNeed))
    e("s_bitcmp1_b32 %d, s%d" % (opts["emask"], sNeed))
    e("s_cselect_b32 s%d, %d, %d" % (sNeed, opts["srel2"], opts["srel"]))
    e("s_sub_u32 s%d, 312, s%d" % (sNeed, sNeed))
else:
    e("s_movk_i32 s%d, %d" % (sNeed, 312 - opts["srel"]))
e("v_mov_b32 v%d, %d" % (vFlagA, FLAG + 5 * 256))
assert opts["srel"] % 3 == 0


def fetch(tag, s_lvl, vb, base):
    e("L_ofree%s:" % tag)
    e("s_sleep 1")
    e("ds_read_b32 v%d, v%d" % (vF, vDoneA))
    e("s_waitcnt lgkmcnt(0)")
    e("v_cmp_gt_i32 vcc, %s, v%d" % (s_lvl, vF))
    e("s_cbranch_vccnz L_ofree%s" % tag)
    for j in range(24):
        if j == 12:
            e("s_waitcnt lgkmcnt(0)")
        e("ds_read_b128 %s, v%d offset:%d" % (vr(vb + 4 * j, 4), vR, base + j * 1024))
    e("s_waitcnt lgkmcnt(0)")


def store4(vb):
    for t in range(4):
        for j in range(6):
            o = " offset:%d" % ((j % 3) * 1024) if j % 3 else ""
            e("buffer_store_dwordx4 %s, v%d, %s, s%d offen%s%s" % (vr(vb + 24 * t + 4 * j, 4), vOff + j, srd(sO), sQ0, o, ST))
        e("s_add_i32 s%d, s%d, s%d" % (sQ0, sQ0, sStepB))


e("s_cmp_eq_u32 s%d, 5" % sWave)
e("s_cselect_b32 s%d, 32, 34" % sT0)
e("s_cselect_b32 s%d, 0, 8" % sT1)
e("s_mul_i32 s%d, s%d, s%d" % (sT1, sT1, sStepB))
e("s_add_i32 s%d, s%d, s%d" % (sQ0, sQ0, sT1))
e("v_mov_b32 v%d, 1" % vCnt)
fetch("a", "s%d" % sT0, vLo, 0)
e("s_cmp_eq_u32 s%d, 5" % sWave)
e("s_cbranch_scc0 L_st_wait")
e("ds_write_b32 v%d, v%d" % (vAK, vCnt))
e("v_mov_b32 v%d, 2" % vAQ)
fetch("b", "33", vLo + 96, 4 * BLK)
e("ds_write_b32 v%d, v%d" % (vAK, vAQ))
e("L_st_wait:")
poll()
stamp(key=True)
store4(vLo)
e("s_cmp_eq_u32 s%d, 5" % sWave)
e("s_cbranch_scc0 L_st_end")
store4(vLo + 96)
e("L_st_end:")
stamp(key=True)
e("s_branch L_fin")

e("L_compute:")
if not opts["near"]:
    flag_init()
    e("s_waitcnt lgkmcnt(0)")
    e("s_barrier")
e("s_sub_u32 s%d, s%d, 1" % (sI, sWave))
e("s_mul_i32 s%d, s%d, %d" % (sT3, sI, BLK))
e("s_add_u32 s%d, s%d, %d" % (sT4, sT3, QRING + 4 * BLK))
e("s_mov_b32 s%d, 0" % sF)
e("v_mov_b32 v%d, %d" % (vFlagA, FLAG))
e("s_cmp_ge_u32 s%d, 5" % sWave)
e("s_cbranch_scc1 L_storer")
e("v_and_b32 v66, 15, v%d" % vLane)
e("v_lshrrev_b32 v67, 4, v%d" % vLane)
g_of(70, 66, 71)
e("v_mul_u32_u24 v68, 384, v66")
e("v_lshlrev_b32 v69, 4, v67")
e("v_xor_b32 v69, v69, v70")
e("v_add3_u32 v%d, v68, v69, s%d" % (vAK, sT3))
e("v_xor_b32 v%d, 64, v%d" % (vAK + 1, vAK))
e("v_add_u32 v%d, %d, v%d" % (vAQ, QRING, vAK))
e("v_add_u32 v%d, %d, v%d" % (vAQ + 1, QRING, vAK + 1))
e("v_lshrrev_b32 v69, 1, v67")
e("v_lshlrev_b32 v69, 4, v69")
e("v_xor_b32 v69, v69, v70")
e("v_and_b32 v71, 1, v67")
e("v_lshl_add_u32 v69, v71, 3, v69")
e("v_add3_u32 v%d, v68, v69, s%d" % (vW, sT4))
e("v_subrev_u32 v%d, %d, v%d" % (vW, 4 * BLK, vW))
for m in range(1, 4):
    e("v_xor_b32 v%d, %d, v%d" % (vW + m, 32 * m, vW))
e("v_lshlrev_b32 v69, 2, v67")
for i in range(4):
    e("v_add_u32 v71, %d, v69" % i)
    e("v_cmp_le_u32 s[%d:%d], v71, v66" % (sM + 2 * i, sM + 2 * i + 1))
e("s_ashr_i32 s%d, s%d, 31" % (sT0, sStepB))
e("s_mov_b32 s%d, s%d" % (sT1, sT0))
e("s_nop 1")
for i in range(4):
    e("s_xor_b64 s[%d:%d], s[%d:%d], s[%d:%d]" % (sM + 2 * i, sM + 2 * i + 1, sM + 2 * i, sM + 2 * i + 1, sT0, sT1))
e("s_mov_b32 s%d, 0xffff0000" % sHi)
e("v_mov_b32 v72, 0xffff")
e("v_mov_b32 v73, s%d" % sHi)
for k in range(2):
    e("v_cndmask_b32 v74, 0, v72, s[%d:%d]" % (sM + 4 * k, sM + 4 * k + 1))
    e("v_cndmask_b32 v75, 0, v73, s[%d:%d]" % (sM + 4 * k + 2, sM + 4 * k + 3))
    e("v_or_b32 v%d, v74, v75" % (vPM + k))
    e("v_not_b32 v%d, v%d" % (vPM + 2 + k, vPM + k))
e("v_lshrrev_b32 v69, 2, v%d" % vLane)
g_of(70, 69, 71)
e("v_mul_u32_u24 v68, 384, v69")
e("v_bfe_u32 v71, v%d, 1, 1" % vLane)
e("v_lshlrev_b32 v71, 4, v71")
e("v_xor_b32 v70, v70, v71")
e("v_and_b32 v71, 1, v%d" % vLane)
e("v_lshl_add_u32 v70, v71, 3, v70")
e("v_add3_u32 v%d, v68, v70, s%d" % (vAV, sT3))
for m in range(1, 4):
    e("v_xor_b32 v%d, %d, v%d" % (vAV + m, 32 * m, vAV))
e("v_lshlrev_b32 v%d, 4, v%d" % (vR, vLane))
e("v_add_u32 v%d, s%d, v%d" % (vR, sT4, vR))
if opts["dry"]:
    e("s_mov_b32 s%d, 12" % sI)
    e("s_mov_b32 s%d, -1" % sF)
    e("s_mov_b64 vcc, 0")
    e("s_mov_b64 exec, 0")
    e("s_branch L_qk")
    e("L_real:")
    e("s_mov_b64 exec, -1")
    e("s_mov_b32 s%d, 0" % sF)
    e("s_sub_u32 s%d, s%d, 1" % (sI, sWave))
e("s_cmp_eq_u32 s%d, 0" % sChunk)
e("s_cselect_b32 s%d, 0xff800000, 0" % sT2)
e("s_cmp_lt_u32 s%d, 2" % sI)
e("s_cselect_b32 s%d, s%d, 0" % (sInit0, sT2))
e("s_cmp_eq_u32 s%d, 0" % sI)
e("s_cselect_b32 s%d, s%d, 0" % (sInit1, sT2))
e("s_mov_b32 s%d, %s" % (sScale, f32hex(192 ** -0.5)))
if opts["mimic"]:
    e("s_mov_b32 s%d, %s" % (sLog2e, f32hex(1.4426950408889634)))
else:
    e("s_mov_b32 s%d, %s" % (sLog2e, f32hex(1.4426950408889634 * 192 ** -0.5)))
e("s_movk_i32 s%d, %d" % (sT3, 4 * BLK))

e("L_qk:")
for i in range(4):
    e("v_mov_b32 v%d, s%d" % (vS + i, sInit0))
    e("v_mov_b32 v%d, s%d" % (vS + 4 + i, sInit1))
e("s_mov_b32 s%d, 0" % sInit0)
e("s_mov_b32 s%d, 0" % sInit1)
for r in range(18):
    e("v_mov_b32 v%d, v%d" % (vP + r, vP + 6 + r))
e("s_add_u32 s%d, s%d, 1" % (sT1, sI))
e("v_mov_b32 v%d, s%d" % (vCnt, sT1))
e("s_add_u32 s%d, s%d, 19" % (sNeed, sI))
e("s_mul_i32 s%d, s%d, 6" % (sNeed, sNeed))
poll()
stamp()


def qk_reads(i):
    o = (i >> 1) * 128
    e("ds_read_b128 %s, v%d offset:%d" % (vr(vQ + 4 * i, 4), vAQ + (i & 1), o))
    for j in range(3):
        e("ds_read_b128 %s, v%d offset:%d" % (vr(vK + 12 * (i & 3) + 4 * j, 4), vAK + (i & 1), o + j * BLK))


for i in range(3):
    qk_reads(i)
for k in range(6):
    e("s_waitcnt lgkmcnt(%d)" % (4 * min(2, 5 - k)))
    if k == 5:
        e("ds_write_b32 v%d, v%d" % (vDoneA, vCnt))
    for j in range(3):
        c = "0" if (k == 0 and j == 2) else vr(vS + 4 * j, 4)
        e("v_mfma_f32_16x16x32_bf16 %s, %s, %s, %s" % (vr(vS + 4 * j, 4), vr(vK + 12 * (k & 3) + 4 * j, 4), vr(vQ + 4 * k, 4), c))
    if k + 3 < 6:
        qk_reads(k + 3)
e("v_add_u32 v%d, %d, v%d" % (vAK, 4 * BLK, vAK))
e("v_add_u32 v%d, %d, v%d" % (vAK + 1, 4 * BLK, vAK + 1))
e("v_add_u32 v%d, s%d, v%d" % (vAQ, sT3, vAQ))
e("v_add_u32 v%d, s%d, v%d" % (vAQ + 1, sT3, vAQ + 1))
e("s_sub_i32 s%d, 0, s%d" % (sT3, sT3))
e("s_add_u32 s%d, s%d, %d" % (sI, sI, NC))
e("s_nop 2")
for i in range(4):
    e("v_cndmask_b32 v%d, v%d, v%d, s[%d:%d]" % (vX + i, vS + i, vS + 8 + i, sM + 2 * i, sM + 2 * i + 1))
xs = [vX + i for i in range(4)] + [vS + 4 + i for i in range(4)]
ys = [vX + i for i in range(8)]
if opts["mimic"]:
    for p in range(4):
        e("v_cvt_pk_bf16_f32 v%d, v%d, v%d" % (vT + p, xs[2 * p], xs[2 * p + 1]))
    for p in range(4):
        e("v_lshlrev_b32 v%d, 16, v%d" % (ys[2 * p], vT + p))
        e("v_and_b32 v%d, s%d, v%d" % (ys[2 * p + 1], sHi, vT + p))
    for p in range(8):
        e("v_mul_f32 v%d, s%d, v%d" % (ys[p], sScale, ys[p]))
    for p in range(4):
        e("v_cvt_pk_bf16_f32 v%d, v%d, v%d" % (vT + p, ys[2 * p], ys[2 * p + 1]))
    for p in range(4):
        e("v_lshlrev_b32 v%d, 16, v%d" % (ys[2 * p], vT + p))
        e("v_and_b32 v%d, s%d, v%d" % (ys[2 * p + 1], sHi, vT + p))
else:
    ys = xs
m, m2 = vT + 4, vT + 5
e("v_max3_f32 v%d, v%d, v%d, v%d" % (m, ys[0], ys[1], ys[2]))
e("v_max3_f32 v%d, v%d, v%d, v%d" % (m2, ys[3], ys[4], ys[5]))
e("v_max3_f32 v%d, v%d, v%d, v%d" % (m, m, ys[6], ys[7]))
e("v_max_f32 v%d, v%d, v%d" % (m, m, m2))
e("v_mov_b32 v%d, v%d" % (m2, m))
e("s_nop 1")
e("v_permlane16_swap_b32 v%d, v%d" % (m, m2))
e("s_nop 0")
e("v_max_f32 v%d, v%d, v%d" % (m, m, m2))
e("v_mov_b32 v%d, v%d" % (m2, m))
e("s_nop 1")
e("v_permlane32_swap_b32 v%d, v%d" % (m, m2))
e("s_nop 0")
e("v_max_f32 v%d, v%d, v%d" % (m, m, m2))
e("v_mul_f32 v%d, s%d, v%d" % (m, sLog2e, m))
es = [vX + i for i in range(8)]
for p in range(8):
    e("v_fma_f32 v%d, v%d, s%d, -v%d" % (es[p], ys[p], sLog2e, m))
for p in range(8):
    e("v_exp_f32 v%d, v%d" % (es[p], es[p]))
sm, sm2 = vT + 6, vT + 7
e("v_add_f32 v%d, v%d, v%d" % (sm, es[0], es[1]))
e("v_add_f32 v%d, v%d, v%d" % (sm2, es[2], es[3]))
e("v_add_f32 v%d, v%d, v%d" % (sm, sm, es[4]))
e("v_add_f32 v%d, v%d, v%d" % (sm2, sm2, es[5]))
e("v_add_f32 v%d, v%d, v%d" % (sm, sm, es[6]))
e("v_add_f32 v%d, v%d, v%d" % (sm2, sm2, es[7]))
e("v_add_f32 v%d, v%d, v%d" % (sm, sm, sm2))
e("v_mov_b32 v%d, v%d" % (sm2, sm))
e("s_nop 1")
e("v_permlane16_swap_b32 v%d, v%d" % (sm, sm2))
e("s_nop 0")
e("v_add_f32 v%d, v%d, v%d" % (sm, sm, sm2))
e("v_mov_b32 v%d, v%d" % (sm2, sm))
e("s_nop 1")
e("v_permlane32_swap_b32 v%d, v%d" % (sm, sm2))
e("s_nop 0")
e("v_add_f32 v%d, v%d, v%d" % (sm, sm, sm2))
e("v_rcp_f32 v%d, v%d" % (sm, sm))
e("s_nop 0")
for p in range(8):
    e("v_mul_f32 v%d, v%d, v%d" % (es[p], es[p], sm))
PN = vP + 18
e("v_cvt_pk_bf16_f32 v%d, v%d, v%d" % (vT, es[0], es[1]))
e("v_cvt_pk_bf16_f32 v%d, v%d, v%d" % (vT + 1, es[2], es[3]))
e("v_cvt_pk_bf16_f32 v%d, v%d, v%d" % (PN + 2, es[4], es[5]))
e("v_cvt_pk_bf16_f32 v%d, v%d, v%d" % (PN + 3, es[6], es[7]))
e("v_and_b32 v%d, v%d, v%d" % (PN, vT, vPM + 2))
e("v_and_b32 v%d, v%d, v%d" % (PN + 1, vT + 1, vPM + 3))
e("v_and_b32 v%d, v%d, v%d" % (PN + 4, vT, vPM))
e("v_and_b32 v%d, v%d, v%d" % (PN + 5, vT + 1, vPM + 1))
stamp()
e("s_cmp_lt_u32 s%d, 16" % sI)
e("s_cbranch_scc1 L_qk")

sSt, sWs = 66, 67
e("s_sub_u32 s%d, s%d, 4" % (sSt, sI))
e("s_sub_u32 s%d, s%d, 16" % (sI, sI))
e("s_mul_i32 s%d, s%d, s%d" % (sSt, sSt, sStepB))
e("s_add_i32 s%d, s%d, s%d" % (sSt, sSt, sQ0))
e("s_movk_i32 s%d, %d" % (sWs, 4 * BLK))
e("v_mov_b32 v%d, 32" % vCnt)
e("L_pv:")
e("s_add_u32 s%d, s%d, 36" % (sNeed, sI))
e("s_mul_i32 s%d, s%d, 6" % (sNeed, sNeed))
poll()
stamp()


def va_reads(t):
    for j in range(2):
        e("ds_read_b64_tr_b16 %s, v%d offset:%d" % (vr(vVa + 4 * (t & 7) + 2 * j, 2), vAV + (t & 3), (t >> 2) * 128 + j * BLK))


for t in range(6):
    va_reads(t)
for t in range(12):
    e("s_waitcnt lgkmcnt(%d)" % (2 * min(5, 11 - t)))
    e("v_mfma_f32_16x16x32_bf16 %s, %s, %s, 0" % (vr(vAcc + 4 * t, 4), vr(vVa + 4 * (t & 7), 4), vr(vP, 4)))
    if t + 6 < 12:
        va_reads(t + 6)
e("s_add_u32 s%d, s%d, 6" % (sNeed, sNeed))
e("s_lshr_b32 s%d, s%d, 2" % (sT0, sI))
e("s_sub_i32 s%d, s%d, 1" % (sT0, sT0))
e("L_copied:")
e("ds_read_b32 v%d, v%d offset:%d" % (vF, vFlagA, 6 * 256))
e("s_waitcnt lgkmcnt(0)")
e("v_cmp_gt_i32 vcc, s%d, v%d" % (sT0, vF))
e("s_cbranch_vccnz L_copied")
poll()
stamp()
for t in range(12):
    e("ds_read_b64_tr_b16 %s, v%d offset:%d" % (vr(vVb + 2 * t, 2), vAV + (t & 3), (t >> 2) * 128 + 2 * BLK))


def o_out(t):
    e("v_cvt_pk_bf16_f32 v%d, v%d, v%d" % (vOp + 2 * t, vAcc + 4 * t, vAcc + 4 * t + 1))
    e("v_cvt_pk_bf16_f32 v%d, v%d, v%d" % (vOp + 2 * t + 1, vAcc + 4 * t + 2, vAcc + 4 * t + 3))
    e("ds_write_b64 v%d, %s offset:%d" % (vW + (t & 3), vr(vOp + 2 * t, 2), (t >> 2) * 128))


LAG = 4
for t in range(12):
    nwr = max(0, t - LAG)
    e("s_waitcnt lgkmcnt(%d)" % min(15, 11 - t + nwr))
    e("v_mfma_f32_16x16x16_bf16 %s, %s, %s, %s" % (vr(vAcc + 4 * t, 4), vr(vVb + 2 * t, 2), vr(vP + 4, 2), vr(vAcc + 4 * t, 4)))
    if t >= LAG:
        o_out(t - LAG)
for t in range(12 - LAG, 12):
    o_out(t)
e("s_cmp_ge_u32 s%d, 12" % sI)
e("s_cbranch_scc1 L_last")


def readback(vbase):
    e("s_waitcnt lgkmcnt(0)")
    for j in range(6):
        e("ds_read_b128 %s, v%d offset:%d" % (vr(vbase + 4 * j, 4), vR, j * 1024))


e("s_add_u32 s%d, s%d, %d" % (sI, sI, NC))
for r in range(18):
    e("v_mov_b32 v%d, v%d" % (vP + r, vP + 6 + r))
for m in range(4):
    e("v_add_u32 v%d, %d, v%d" % (vAV + m, 4 * BLK, vAV + m))
for m in range(4):
    e("v_add_u32 v%d, s%d, v%d" % (vW + m, sWs, vW + m))
e("s_sub_i32 s%d, 0, s%d" % (sWs, sWs))
e("s_waitcnt lgkmcnt(0)")
e("ds_write_b32 v%d, v%d" % (vDoneA, vCnt))
if opts["dry"]:
    e("s_cbranch_execz L_real")
stamp()
e("v_add_u32 v%d, 1, v%d" % (vCnt, vCnt))
e("s_branch L_pv")
e("L_last:")
if opts["stamp"] >= 3:
    stamp(key=True)
readback(vAcc)
for j in range(6):
    o = " offset:%d" % ((j % 3) * 1024) if j % 3 else ""
    e("s_waitcnt lgkmcnt(%d)" % (5 - j))
    e("buffer_store_dwordx4 %s, v%d, %s, s%d offen%s%s" % (vr(vAcc + 4 * j, 4), vOff + j, srd(sO), sSt, o, ST))
stamp(key=True)
e("L_fin:")
if opts["stamp"]:
    e("s_waitcnt vmcnt(0)")
    e("s_mov_b32 s%d, 61" % sStampIdx)
    stamp(True)
    e("s_getreg_b32 s62, hwreg(HW_REG_XCC_ID)")
    e("v_writelane_b32 v%d, s62, 62" % vStamp)
    e("s_load_dwordx2 s[%d:%d], s[0:1], 40" % (sQ, sQ + 1))
    e("s_mov_b32 s%d, %d" % (sQ + 2, NBYTES))
    e("s_mul_i32 s62, s2, %d" % (NW * 256))
    e("v_lshlrev_b32 v0, 2, v0")
    e("s_waitcnt lgkmcnt(0)")
    e("buffer_store_dword v%d, v0, %s, s62 offen" % (vStamp, srd(sQ)))
if opts["spin"]:
    if opts["leak"]:
        if opts["leak"] == "fin":
            e("s_waitcnt vmcnt(0)")
            leak("fin")
        e("s_sub_u32 s62, s64, s60")
        e("s_lshl_b32 s62, s62, 2")
        e("s_add_u32 s%d, s62, %d" % (sLeak, opts["spin"]))
    else:
        e("s_mov_b32 s%d, %d" % (sLeak, opts["spin"]))
    e("L_spin:")
    e("s_sleep 4")
    e("s_memrealtime s[62:63]")
    e("s_waitcnt lgkmcnt(0)")
    e("s_sub_u32 s62, s62, s60")
    e("s_cmp_lt_u32 s62, s%d" % sLeak)
    e("s_cbranch_scc1 L_spin")
e("L_end:")
e("s_endpgm")

hdr = """; Sliding-window (w=32) attention, B=1 H=32 S=2048 D=192, bf16.  Generated by gen11.py (hand-written generator).
; kernarg: q, k, v, out, debug, ws
; One workgroup per 256 query rows.  Wave 0 streams 16-row blocks into LDS by LDS-DMA (all K, all Q, all V);
; waves 1..4 each take every 4th 16-query task (S^T = K Q^T, softmax, O^T = V^T P^T with 16x16 MFMAs).
; Hand-off inside the workgroup through LDS counters; outputs stay in registers until the loads are done.
; @launch grid=(256,1,1) block=(%d,1,1) lds=%d
.amdgcn_target "amdgcn-amd-amdhsa--gfx950"
.text
.globl %s_kernel
.p2align %d
.p2align 8
.type %s_kernel,@function
%s_kernel:
""" % (64 * NW, LDS, NAME, opts["align"], NAME, NAME)

ftr = """
.section .rodata,"a"
.p2align 6
.amdhsa_kernel %s_kernel
  .amdhsa_next_free_vgpr %d
  .amdhsa_next_free_sgpr 80
  .amdhsa_accum_offset %d
  .amdhsa_group_segment_fixed_size 0
  .amdhsa_kernarg_size 48
  .amdhsa_user_sgpr_count 2
  .amdhsa_user_sgpr_kernarg_segment_ptr 1
  .amdhsa_system_sgpr_workgroup_id_x 1
.end_amdhsa_kernel
""" % (NAME, NVGPR, NVGPR)

open(sys.argv[1], "w").write(hdr + "\n".join(L) + ftr)
```

```python
import sys
import struct

NAME = "standalone__sliding_local_fixed_window__prompt"

opts = dict(
    ld="nt",
    st="sc1",
    xcdmap=1,
    mimic=1,
    w=21,
    gran=3,
    pre=4,
    open=2,
    srel=24,
    dyn=6,
    w2=36,
    srel2=-1,
    emask=0x0f,
    ploop=1,
    align=12,
    near=1,
    dyn2=0,
    dry=1,
    boost=0,
    blen=5,
    bst=16,
    sleep=1,
    prio=3,
    stamp=0,
    spin=0,
    leak="",
)
for a in sys.argv[2:]:
    k, v = a.split("=")
    assert k in opts, k
    opts[k] = v if isinstance(opts[k], str) else int(v, 0)

LD = (" " + opts["ld"].replace("+", " ")) if opts["ld"] else ""
ST = (" " + opts["st"].replace("+", " ")) if opts["st"] else ""
NC = 4

BLK = 6144
KV = 0
QRING = 18 * BLK
FLAG = 26 * BLK
DONE = FLAG + 256
NW = NC + 3
LDS = FLAG + 256 * NW
NBYTES = 32 * 2048 * 384

L = []


def e(s=""):
    L.append("    " + s if s and not s.endswith(":") else s)


def f32hex(x):
    return "0x%08x" % struct.unpack("<I", struct.pack("<f", x))[0]


sQ, sK, sV, sO = 12, 16, 20, 24
sWave = 28
sStepB = 29
sKV0 = 30
sQ0 = 31
sMinOff = 32
sChunk = 33
sI = 34
sF = 35
sM = 36
sScale = 44
sLog2e = 45
sT0, sT1, sT2, sT3, sT4 = 46, 47, 48, 49, 50
sHi = 52
sNeed = 53
sOff = 54
sLds = 55
sInit0, sInit1 = 56, 57
sStampIdx = 58
sLeak = 59

vOff = 1
vLane = 7
vAK = 8
vAQ = 10
vAV = 12
vW = 16
vR = 20
vPM = 21
vFlagA = 25
vDoneA = 26
vF = 27
vCnt = 28
vP = 30
vVb = 56
vVa = 80
vOp = vVa
vAcc = 112
vHold = 160
vQ = 56
vK = 80
vS = 128
vX = 140
vT = 148
vStamp = 224
NVGPR = 232


def srd(s):
    return "s[%d:%d]" % (s, s + 3)


def vr(a, n):
    return "v[%d:%d]" % (a, a + n - 1) if n > 1 else "v%d" % a


def stamp(always=False, key=False):
    if opts["stamp"] == 1 or (opts["stamp"] and always) or (opts["stamp"] >= 3 and key):
        e("s_memrealtime s[62:63]")
        e("s_mov_b32 m0, s%d" % sStampIdx)
        e("s_waitcnt lgkmcnt(0)")
        e("v_writelane_b32 v%d, s62, m0" % vStamp)
        e("s_add_u32 s%d, s%d, 1" % (sStampIdx, sStampIdx))


def leak(name):
    if opts["leak"] != name:
        return
    e("s_waitcnt lgkmcnt(0)")
    e("s_memrealtime s[64:65]")
    e("s_waitcnt lgkmcnt(0)")


def gfun(r):
    return ((((r >> 2) ^ (r >> 3)) & 1) << 2) | (r & 2) | ((r >> 3) & 1)


def g_of(vdst, vrow, vtmp):
    e("v_lshrrev_b32 v%d, 1, v%d" % (vtmp, vrow))
    e("v_xor_b32 v%d, v%d, v%d" % (vtmp, vtmp, vrow))
    e("v_and_b32 v%d, 4, v%d" % (vtmp, vtmp))
    e("v_and_or_b32 v%d, v%d, 2, v%d" % (vtmp, vrow, vtmp))
    e("v_bfe_u32 v%d, v%d, 3, 1" % (vdst, vrow))
    e("v_or_b32 v%d, v%d, v%d" % (vdst, vdst, vtmp))
    e("v_lshlrev_b32 v%d, 4, v%d" % (vdst, vdst))


def dma_block(s_srd, s_off, s_lds, lds, before=None, after=None):
    setm0 = (lambda x: e("s_mov_b32 m0, %d" % x)) if s_lds is None else (lambda x: e("s_add_u32 m0, s%d, %d" % (s_lds, x)))
    for j in range(6):
        if j % 3 == 0:
            setm0(lds + 1024 * j)
        did = before(j) if before else False
        if j % 3 == 0 and not did:
            e("s_nop 0")
        o = " offset:%d" % ((j % 3) * 1024) if j % 3 else ""
        e("buffer_load_dwordx4 v%d, %s, s%d offen%s%s lds" % (vOff + j, srd(s_srd), s_off, o, LD))
        if after:
            after(j)


def pub(cnt):
    if cnt:
        e("v_add_u32 v%d, %d, v%d" % (vCnt, cnt, vCnt))
        e("ds_write_b32 v%d, v%d" % (vFlagA, vCnt))


npoll = [0]


def poll():
    n = npoll[0]
    npoll[0] += 1
    e("s_cmp_ge_u32 s%d, s%d" % (sF, sNeed))
    e("s_cbranch_scc1 L_go%d" % n)
    e("L_poll%d:" % n)
    e("ds_read_b32 v%d, v%d" % (vF, vFlagA))
    e("s_waitcnt lgkmcnt(0)")
    e("v_readfirstlane_b32 s%d, v%d" % (sF, vF))
    e("s_nop 0")
    e("s_cmp_ge_u32 s%d, s%d" % (sF, sNeed))
    e("s_cbranch_scc1 L_go%d" % n)
    if opts["sleep"]:
        e("s_sleep %d" % opts["sleep"])
    e("s_branch L_poll%d" % n)
    e("L_go%d:" % n)


def flag_init(loader=False):
    va = vFlagA if loader else vDoneA
    e("v_lshlrev_b32 v%d, 2, v0" % va)
    e("v_add_u32 v%d, %d, v%d" % (va, FLAG, va))
    if loader:
        e("v_mov_b32 v%d, 0" % vF)
    else:
        e("s_sub_u32 s%d, s%d, 4" % (sT0, sWave))
        e("s_min_i32 s%d, s%d, 0" % (sT0, sT0))
        e("v_mov_b32 v%d, s%d" % (vF, sT0))
    e("ds_write_b32 v%d, v%d" % (va, vF))


e("s_cmp_ge_u32 s2, 256")
e("s_cbranch_scc1 L_end")
if opts["spin"] or opts["stamp"]:
    e("s_memrealtime s[60:61]")
e("s_load_dwordx2 s[%d:%d], s[0:1], 8" % (sK, sK + 1))
e("s_load_dwordx2 s[%d:%d], s[0:1], 0" % (sQ, sQ + 1))
e("s_load_dwordx2 s[%d:%d], s[0:1], 16" % (sV, sV + 1))
e("s_load_dwordx2 s[%d:%d], s[0:1], 24" % (sO, sO + 1))
e("v_and_b32 v%d, 63, v0" % vLane)
e("v_readfirstlane_b32 s%d, v0" % sWave)
e("v_lshrrev_b32 v65, 1, v%d" % vLane)
e("v_and_b32 v65, 28, v65")
e("s_movk_i32 s%d, 0x50" % sT4)
e("v_mov_b32 v67, 3072")
for j in range(3):
    tab = sum(gfun((8 * j + l) // 3) << (4 * l) for l in range(8))
    assert all(gfun((8 * (j + 3) + l) // 3) == gfun((8 * j + l) // 3) ^ 5 for l in range(8))
    e("s_mov_b32 s%d, 0x%x" % (sT3, tab))
    e("v_bfe_u32 v66, s%d, v65, 3" % sT3)
    e("v_xor_b32 v66, v66, v%d" % vLane)
    e("v_lshlrev_b32 v%d, 4, v66" % (vOff + j))
    e("v_xad_u32 v%d, v%d, s%d, v67" % (vOff + 3 + j, vOff + j, sT4))
e("s_mov_b32 s%d, %d" % (sK + 2, NBYTES))
e("s_mov_b32 s%d, 0x20000" % (sK + 3))
for s in (sQ, sV, sO):
    e("s_mov_b32 s%d, s%d" % (s + 2, sK + 2))
    e("s_mov_b32 s%d, s%d" % (s + 3, sK + 3))
e("s_and_b32 s%d, s2, 7" % sT1)
e("s_lshr_b32 s%d, s2, 6" % sT2)
if opts["xcdmap"] == 1:
    e("s_lshl3_add_u32 s%d, s%d, s%d" % (sT1, sT2, sT1))
else:
    e("s_lshl2_add_u32 s%d, s%d, s%d" % (sT1, sT1, sT2))
e("s_bfe_u32 s%d, s2, 0x30003" % sChunk)
e("s_mul_i32 s%d, s%d, %d" % (sMinOff, sT1, 2048 * 384))
e("s_lshl_b32 s%d, s%d, 4" % (sT2, sChunk))
e("s_bitcmp1_b32 s%d, 0" % sChunk)
e("s_cselect_b32 s%d, -1, 1" % sStepB)
e("s_cselect_b32 s%d, 15, -2" % sKV0)
e("s_cselect_b32 s%d, 15, 0" % sQ0)
e("s_add_i32 s%d, s%d, s%d" % (sKV0, sKV0, sT2))
e("s_add_i32 s%d, s%d, s%d" % (sQ0, sQ0, sT2))
e("s_mulk_i32 s%d, %d" % (sStepB, BLK))
e("s_mulk_i32 s%d, %d" % (sKV0, BLK))
e("s_mulk_i32 s%d, %d" % (sQ0, BLK))
e("s_add_i32 s%d, s%d, s%d" % (sKV0, sKV0, sMinOff))
e("s_add_i32 s%d, s%d, s%d" % (sQ0, sQ0, sMinOff))
e("s_lshr_b32 s%d, s%d, 6" % (sWave, sWave))
if opts["stamp"]:
    e("s_waitcnt lgkmcnt(0)")
    e("v_mov_b32 v%d, 0" % vStamp)
    e("v_writelane_b32 v%d, s60, 0" % vStamp)
    e("s_mov_b32 s%d, 1" % sStampIdx)
    stamp()
if opts["leak"]:
    e("s_waitcnt lgkmcnt(0)")
    e("s_mov_b32 s64, s60")
e("s_cmp_lg_u32 s%d, 0" % sWave)
if opts["near"]:
    e("s_cbranch_scc0 L_loader")
    flag_init()
    e("s_waitcnt lgkmcnt(0)")
    e("s_barrier")
    e("s_branch L_compute")
    e("L_loader:")
else:
    e("s_cbranch_scc1 L_compute")

W, G, PRE, DYN, W2 = opts["w"], opts["gran"], opts["pre"], opts["dyn"], opts["w2"]
assert 6 % G == 0 and 2 <= PRE <= 6 and W2 <= 36 and W2 + 6 * opts["open"] <= 60
sW = 72
sMaskP, sEncP, sIss, sTk = 70, 71, 69, 68


def enc(w):
    return (w & 15) | ((w >> 4) << 22)


if opts["prio"]:
    e("s_setprio %d" % opts["prio"])
sV0, sV2 = 66, 67
e("s_max_i32 s%d, s%d, s%d" % (sV0, sKV0, sMinOff))
e("s_add_i32 s%d, s%d, s%d" % (sT1, sV0, sStepB))
e("s_add_i32 s%d, s%d, s%d" % (sOff, sKV0, sStepB))
e("s_add_i32 s%d, s%d, s%d" % (sV2, sOff, sStepB))
if opts["ploop"]:
    e("s_mov_b32 s%d, s%d" % (sOff, sV0))
    e("s_mov_b32 s%d, 0" % sLds)
    e("s_waitcnt lgkmcnt(0)")
    e("L_pre:")
    dma_block(sK, sOff, sLds, KV)
    e("s_add_i32 s%d, s%d, s%d" % (sOff, sOff, sStepB))
    e("s_addk_i32 s%d, %d" % (sLds, BLK))
    e("s_cmpk_eq_u32 s%d, %d" % (sLds, 2 * BLK))
    e("s_cselect_b32 s%d, s%d, s%d" % (sOff, sV2, sOff))
    e("s_cmpk_lt_u32 s%d, %d" % (sLds, PRE * BLK))
    e("s_cbranch_scc1 L_pre")
else:
    e("s_waitcnt lgkmcnt(0)")
    dma_block(sK, sV0, None, KV)
    dma_block(sK, sT1, None, KV + BLK)
    for n in range(2, PRE):
        e("s_add_i32 s%d, s%d, s%d" % (sOff, sOff, sStepB))
        dma_block(sK, sOff, None, KV + n * BLK)
    e("s_add_i32 s%d, s%d, s%d" % (sOff, sOff, sStepB))
flag_init(True)
e("v_and_b32 v%d, 3, v%d" % (vDoneA, vLane))
e("v_lshlrev_b32 v%d, 8, v%d" % (vDoneA, vDoneA))
e("v_add_u32 v%d, %d, v%d" % (vDoneA, DONE, vDoneA))
e("s_mov_b32 s%d, 0xc0000f" % sMaskP)
e("s_mov_b32 s%d, 0x%x" % (sEncP, enc(W - G)))
e("s_mov_b32 s%d, %d" % (sIss, 6 * PRE + 3))
e("s_mov_b32 s%d, %d" % (sTk, PRE - 25 - 3))
e("s_mov_b32 s%d, s%d" % (sT0, sOff))
e("s_mov_b32 s%d, %d" % (sLds, PRE * BLK))
e("s_mov_b32 s%d, %d" % (sI, PRE))
e("s_mov_b64 s[%d:%d], s[%d:%d]" % (sW, sW + 1, sK, sK + 1))
e("s_mov_b32 s%d, s%d" % (sW + 2, sK + 2))
e("s_mov_b32 s%d, s%d" % (sW + 3, sK + 3))
events = {PRE + 1, 18, 26, 34, 36, 52} | ({52 - opts["open"]} if opts["open"] else set())
BON, BOFF = (opts["bst"], 34), (opts["bst"] + opts["blen"], 34 + opts["blen"])
if opts["boost"]:
    events |= set(BON) | set(BOFF)
evm = sum(1 << x for x in events)
sEv = 76
e("s_mov_b32 s%d, 0x%x" % (sEv, evm & 0xffffffff))
e("s_mov_b32 s%d, 0x%x" % (sEv + 1, evm >> 32))
e("s_waitcnt lgkmcnt(0)")
if opts["stamp"] == 4:
    e("s_mov_b32 s78, 0")
e("s_barrier")
e("L_ld:")
assert G == 3


def look():
    e("s_getreg_b32 s%d, hwreg(HW_REG_IB_STS)" % sT3)
    e("s_and_b32 s%d, s%d, s%d" % (sT3, sT3, sMaskP))
    e("s_cmp_le_u32 s%d, s%d" % (sT3, sEncP))


def before(j):
    if j % G:
        return False
    look()
    e("s_cbranch_scc0 L_dw%d" % j)
    e("L_dk%d:" % j)
    return True


def after(j):
    if j == 2:
        e("ds_read_b32 v%d, v%d" % (vF, vDoneA))
    if j == 5:
        e("s_lshr_b32 s%d, s%d, 18" % (sT4, sT3))
        e("s_add_u32 s%d, s%d, s%d" % (sT3, sT3, sT4))
        e("s_and_b32 s%d, s%d, 63" % (sT3, sT3))
        e("s_sub_u32 s%d, s%d, s%d" % (sT3, sIss, sT3))
        e("v_mov_b32 v%d, s%d" % (vCnt, sT3))
        e("ds_write_b32 v%d, v%d" % (vFlagA, vCnt))


def slow_paths():
    for j in (0, 3):
        e("L_dw%d:" % j)
        for r in range((DYN if j == 0 or not opts["dyn2"] else opts["dyn2"]) - 1):
            look()
            e("s_cbranch_scc1 L_dk%d" % j)
        e("s_waitcnt vmcnt(%d)" % (W2 - G))
        e("s_branch L_dk%d" % j)
    e("L_free_again:")
    if opts["stamp"] == 4:
        e("s_add_u32 s78, s78, 1")
    e("ds_read_b32 v%d, v%d" % (vF, vDoneA))
    e("s_waitcnt lgkmcnt(0)")
    e("v_cmp_gt_i32 vcc, s%d, v%d" % (sTk, vF))
    e("s_cbranch_vccnz L_free_again")
    e("s_branch L_free_ok")


dma_block(sW, sT0, sLds, 0, before, after)
e("s_add_u32 s%d, s%d, 6" % (sIss, sIss))
e("s_add_u32 s%d, s%d, 1" % (sI, sI))
e("s_add_i32 s%d, s%d, s%d" % (sT0, sT0, sStepB))
e("s_add_u32 s%d, s%d, %d" % (sLds, sLds, BLK))
e("s_waitcnt lgkmcnt(1)")
e("v_cmp_ge_i32 vcc, s%d, v%d" % (sTk, vF))
e("s_add_i32 s%d, s%d, 1" % (sTk, sTk))
e("s_cbranch_vccnz L_free_again")
e("L_free_ok:")
e("s_bitcmp1_b64 s[%d:%d], s%d" % (sEv, sEv + 1, sI))
e("s_cbranch_scc0 L_ld")
if opts["ploop"]:
    e("s_branch L_event")
    slow_paths()
    e("L_event:")
if opts["stamp"] == 4:
    stamp(True)
e("s_cmp_eq_u32 s%d, 18" % sI)
e("s_cselect_b64 s[%d:%d], s[%d:%d], s[%d:%d]" % (sW, sW + 1, sQ, sQ + 1, sW, sW + 1))
e("s_cselect_b32 s%d, s%d, s%d" % (sT0, sQ0, sT0))
e("s_cmp_eq_u32 s%d, 26" % sI)
e("s_cselect_b32 s%d, %d, s%d" % (sLds, QRING, sLds))
e("s_cmp_eq_u32 s%d, 34" % sI)
e("s_cselect_b64 s[%d:%d], s[%d:%d], s[%d:%d]" % (sW, sW + 1, sV, sV + 1, sW, sW + 1))
e("s_cselect_b32 s%d, s%d, s%d" % (sT0, sV0, sT0))
e("s_cselect_b32 s%d, 0, s%d" % (sLds, sLds))
e("s_cselect_b32 s%d, -2, s%d" % (sTk, sTk))
e("s_cmp_eq_u32 s%d, 36" % sI)
e("s_cselect_b32 s%d, s%d, s%d" % (sT0, sV2, sT0))
if opts["boost"]:
    for x in BON:
        e("s_cmp_eq_u32 s%d, %d" % (sI, x))
        e("s_cselect_b32 s%d, 0x%x, s%d" % (sEncP, enc(W + opts["boost"] - G), sEncP))
    for x in BOFF:
        e("s_cmp_eq_u32 s%d, %d" % (sI, x))
        e("s_cselect_b32 s%d, 0x%x, s%d" % (sEncP, enc(W - G), sEncP))
if opts["open"]:
    e("s_cmp_eq_u32 s%d, %d" % (sI, 52 - opts["open"]))
    e("s_cselect_b32 s%d, s%d, s%d" % (sEncP, sMaskP, sEncP))
e("s_cmp_lt_u32 s%d, 52" % sI)
e("s_cbranch_scc1 L_ld")
stamp(key=True)
leak("ldiss")
for k, rem in enumerate(range(W2 + 6 * opts["open"], -1, -3)):
    vc = (vCnt, vF)[k & 1]
    e("v_mov_b32 v%d, %d" % (vc, 312 - rem))
    e("s_waitcnt vmcnt(%d)" % rem)
    if rem % 6 == 0:
        e("ds_write_b32 v%d, v%d" % (vFlagA, vc))
    if rem in (opts["srel"], opts["srel2"]):
        e("ds_write_b32 v%d, v%d offset:%d" % (vFlagA, vc, 5 * 256))
stamp(key=True)
if opts["stamp"] == 4:
    e("v_writelane_b32 v%d, s78, 63" % vStamp)
leak("lddone")
e("s_branch L_fin")
if not opts["ploop"]:
    slow_paths()

vLo = 32
e("L_storer:")
e("v_and_b32 v%d, 3, v%d" % (vDoneA, vLane))
e("v_lshlrev_b32 v%d, 8, v%d" % (vDoneA, vDoneA))
e("v_add_u32 v%d, %d, v%d" % (vDoneA, DONE, vDoneA))
e("v_lshlrev_b32 v%d, 4, v%d" % (vR, vLane))
e("v_add_u32 v%d, %d, v%d" % (vR, QRING, vR))
e("v_lshlrev_b32 v%d, 2, v%d" % (vAK, vLane))
e("v_add_u32 v%d, %d, v%d" % (vAK, FLAG + 6 * 256, vAK))
if opts["srel2"] >= 0:
    e("s_getreg_b32 s%d, hwreg(HW_REG_XCC_ID)" % sNeed)
    e("s_and_b32 s%d, s%d, 7" % (sNeed, sNeed))
    e("s_bitcmp1_b32 %d, s%d" % (opts["emask"], sNeed))
    e("s_cselect_b32 s%d, %d, %d" % (sNeed, opts["srel2"], opts["srel"]))
    e("s_sub_u32 s%d, 312, s%d" % (sNeed, sNeed))
else:
    e("s_movk_i32 s%d, %d" % (sNeed, 312 - opts["srel"]))
e("v_mov_b32 v%d, %d" % (vFlagA, FLAG + 5 * 256))
assert opts["srel"] % 3 == 0


def fetch(tag, s_lvl, vb, base):
    e("L_ofree%s:" % tag)
    e("s_sleep 1")
    e("ds_read_b32 v%d, v%d" % (vF, vDoneA))
    e("s_waitcnt lgkmcnt(0)")
    e("v_cmp_gt_i32 vcc, %s, v%d" % (s_lvl, vF))
    e("s_cbranch_vccnz L_ofree%s" % tag)
    for j in range(24):
        if j == 12:
            e("s_waitcnt lgkmcnt(0)")
        e("ds_read_b128 %s, v%d offset:%d" % (vr(vb + 4 * j, 4), vR, base + j * 1024))
    e("s_waitcnt lgkmcnt(0)")


def store4(vb):
    for t in range(4):
        for j in range(6):
            o = " offset:%d" % ((j % 3) * 1024) if j % 3 else ""
            e("buffer_store_dwordx4 %s, v%d, %s, s%d offen%s%s" % (vr(vb + 24 * t + 4 * j, 4), vOff + j, srd(sO), sQ0, o, ST))
        e("s_add_i32 s%d, s%d, s%d" % (sQ0, sQ0, sStepB))


e("s_cmp_eq_u32 s%d, 5" % sWave)
e("s_cselect_b32 s%d, 32, 34" % sT0)
e("s_cselect_b32 s%d, 0, 8" % sT1)
e("s_mul_i32 s%d, s%d, s%d" % (sT1, sT1, sStepB))
e("s_add_i32 s%d, s%d, s%d" % (sQ0, sQ0, sT1))
e("v_mov_b32 v%d, 1" % vCnt)
fetch("a", "s%d" % sT0, vLo, 0)
e("s_cmp_eq_u32 s%d, 5" % sWave)
e("s_cbranch_scc0 L_st_wait")
e("ds_write_b32 v%d, v%d" % (vAK, vCnt))
e("v_mov_b32 v%d, 2" % vAQ)
fetch("b", "33", vLo + 96, 4 * BLK)
e("ds_write_b32 v%d, v%d" % (vAK, vAQ))
e("L_st_wait:")
poll()
stamp(key=True)
store4(vLo)
e("s_cmp_eq_u32 s%d, 5" % sWave)
e("s_cbranch_scc0 L_st_end")
store4(vLo + 96)
e("L_st_end:")
stamp(key=True)
e("s_branch L_fin")

e("L_compute:")
if not opts["near"]:
    flag_init()
    e("s_waitcnt lgkmcnt(0)")
    e("s_barrier")
e("s_sub_u32 s%d, s%d, 1" % (sI, sWave))
e("s_mul_i32 s%d, s%d, %d" % (sT3, sI, BLK))
e("s_add_u32 s%d, s%d, %d" % (sT4, sT3, QRING + 4 * BLK))
e("s_mov_b32 s%d, 0" % sF)
e("v_mov_b32 v%d, %d" % (vFlagA, FLAG))
e("s_cmp_ge_u32 s%d, 5" % sWave)
e("s_cbranch_scc1 L_storer")
e("v_and_b32 v66, 15, v%d" % vLane)
e("v_lshrrev_b32 v67, 4, v%d" % vLane)
g_of(70, 66, 71)
e("v_mul_u32_u24 v68, 384, v66")
e("v_lshlrev_b32 v69, 4, v67")
e("v_xor_b32 v69, v69, v70")
e("v_add3_u32 v%d, v68, v69, s%d" % (vAK, sT3))
e("v_xor_b32 v%d, 64, v%d" % (vAK + 1, vAK))
e("v_add_u32 v%d, %d, v%d" % (vAQ, QRING, vAK))
e("v_add_u32 v%d, %d, v%d" % (vAQ + 1, QRING, vAK + 1))
e("v_lshrrev_b32 v69, 1, v67")
e("v_lshlrev_b32 v69, 4, v69")
e("v_xor_b32 v69, v69, v70")
e("v_and_b32 v71, 1, v67")
e("v_lshl_add_u32 v69, v71, 3, v69")
e("v_add3_u32 v%d, v68, v69, s%d" % (vW, sT4))
e("v_subrev_u32 v%d, %d, v%d" % (vW, 4 * BLK, vW))
for m in range(1, 4):
    e("v_xor_b32 v%d, %d, v%d" % (vW + m, 32 * m, vW))
e("v_lshlrev_b32 v69, 2, v67")
for i in range(4):
    e("v_add_u32 v71, %d, v69" % i)
    e("v_cmp_le_u32 s[%d:%d], v71, v66" % (sM + 2 * i, sM + 2 * i + 1))
e("s_ashr_i32 s%d, s%d, 31" % (sT0, sStepB))
e("s_mov_b32 s%d, s%d" % (sT1, sT0))
e("s_nop 1")
for i in range(4):
    e("s_xor_b64 s[%d:%d], s[%d:%d], s[%d:%d]" % (sM + 2 * i, sM + 2 * i + 1, sM + 2 * i, sM + 2 * i + 1, sT0, sT1))
e("s_mov_b32 s%d, 0xffff0000" % sHi)
e("v_mov_b32 v72, 0xffff")
e("v_mov_b32 v73, s%d" % sHi)
for k in range(2):
    e("v_cndmask_b32 v74, 0, v72, s[%d:%d]" % (sM + 4 * k, sM + 4 * k + 1))
    e("v_cndmask_b32 v75, 0, v73, s[%d:%d]" % (sM + 4 * k + 2, sM + 4 * k + 3))
    e("v_or_b32 v%d, v74, v75" % (vPM + k))
    e("v_not_b32 v%d, v%d" % (vPM + 2 + k, vPM + k))
e("v_lshrrev_b32 v69, 2, v%d" % vLane)
g_of(70, 69, 71)
e("v_mul_u32_u24 v68, 384, v69")
e("v_bfe_u32 v71, v%d, 1, 1" % vLane)
e("v_lshlrev_b32 v71, 4, v71")
e("v_xor_b32 v70, v70, v71")
e("v_and_b32 v71, 1, v%d" % vLane)
e("v_lshl_add_u32 v70, v71, 3, v70")
e("v_add3_u32 v%d, v68, v70, s%d" % (vAV, sT3))
for m in range(1, 4):
    e("v_xor_b32 v%d, %d, v%d" % (vAV + m, 32 * m, vAV))
e("v_lshlrev_b32 v%d, 4, v%d" % (vR, vLane))
e("v_add_u32 v%d, s%d, v%d" % (vR, sT4, vR))
if opts["dry"]:
    e("s_mov_b32 s%d, 12" % sI)
    e("s_mov_b32 s%d, -1" % sF)
    e("s_mov_b64 vcc, 0")
    e("s_mov_b64 exec, 0")
    e("s_branch L_qk")
    e("L_real:")
    e("s_mov_b64 exec, -1")
    e("s_mov_b32 s%d, 0" % sF)
    e("s_sub_u32 s%d, s%d, 1" % (sI, sWave))
e("s_cmp_eq_u32 s%d, 0" % sChunk)
e("s_cselect_b32 s%d, 0xff800000, 0" % sT2)
e("s_cmp_lt_u32 s%d, 2" % sI)
e("s_cselect_b32 s%d, s%d, 0" % (sInit0, sT2))
e("s_cmp_eq_u32 s%d, 0" % sI)
e("s_cselect_b32 s%d, s%d, 0" % (sInit1, sT2))
e("s_mov_b32 s%d, %s" % (sScale, f32hex(192 ** -0.5)))
if opts["mimic"]:
    e("s_mov_b32 s%d, %s" % (sLog2e, f32hex(1.4426950408889634)))
else:
    e("s_mov_b32 s%d, %s" % (sLog2e, f32hex(1.4426950408889634 * 192 ** -0.5)))
e("s_movk_i32 s%d, %d" % (sT3, 4 * BLK))

e("L_qk:")
for i in range(4):
    e("v_mov_b32 v%d, s%d" % (vS + i, sInit0))
    e("v_mov_b32 v%d, s%d" % (vS + 4 + i, sInit1))
e("s_mov_b32 s%d, 0" % sInit0)
e("s_mov_b32 s%d, 0" % sInit1)
for r in range(18):
    e("v_mov_b32 v%d, v%d" % (vP + r, vP + 6 + r))
e("s_add_u32 s%d, s%d, 1" % (sT1, sI))
e("v_mov_b32 v%d, s%d" % (vCnt, sT1))
e("s_add_u32 s%d, s%d, 19" % (sNeed, sI))
e("s_mul_i32 s%d, s%d, 6" % (sNeed, sNeed))
poll()
stamp()


def qk_reads(i):
    o = (i >> 1) * 128
    e("ds_read_b128 %s, v%d offset:%d" % (vr(vQ + 4 * i, 4), vAQ + (i & 1), o))
    for j in range(3):
        e("ds_read_b128 %s, v%d offset:%d" % (vr(vK + 12 * (i & 3) + 4 * j, 4), vAK + (i & 1), o + j * BLK))


for i in range(3):
    qk_reads(i)
for k in range(6):
    e("s_waitcnt lgkmcnt(%d)" % (4 * min(2, 5 - k)))
    if k == 5:
        e("ds_write_b32 v%d, v%d" % (vDoneA, vCnt))
    for j in range(3):
        c = "0" if (k == 0 and j == 2) else vr(vS + 4 * j, 4)
        e("v_mfma_f32_16x16x32_bf16 %s, %s, %s, %s" % (vr(vS + 4 * j, 4), vr(vK + 12 * (k & 3) + 4 * j, 4), vr(vQ + 4 * k, 4), c))
    if k + 3 < 6:
        qk_reads(k + 3)
e("v_add_u32 v%d, %d, v%d" % (vAK, 4 * BLK, vAK))
e("v_add_u32 v%d, %d, v%d" % (vAK + 1, 4 * BLK, vAK + 1))
e("v_add_u32 v%d, s%d, v%d" % (vAQ, sT3, vAQ))
e("v_add_u32 v%d, s%d, v%d" % (vAQ + 1, sT3, vAQ + 1))
e("s_sub_i32 s%d, 0, s%d" % (sT3, sT3))
e("s_add_u32 s%d, s%d, %d" % (sI, sI, NC))
e("s_nop 2")
for i in range(4):
    e("v_cndmask_b32 v%d, v%d, v%d, s[%d:%d]" % (vX + i, vS + i, vS + 8 + i, sM + 2 * i, sM + 2 * i + 1))
xs = [vX + i for i in range(4)] + [vS + 4 + i for i in range(4)]
ys = [vX + i for i in range(8)]
if opts["mimic"]:
    for p in range(4):
        e("v_cvt_pk_bf16_f32 v%d, v%d, v%d" % (vT + p, xs[2 * p], xs[2 * p + 1]))
    for p in range(4):
        e("v_lshlrev_b32 v%d, 16, v%d" % (ys[2 * p], vT + p))
        e("v_and_b32 v%d, s%d, v%d" % (ys[2 * p + 1], sHi, vT + p))
    for p in range(8):
        e("v_mul_f32 v%d, s%d, v%d" % (ys[p], sScale, ys[p]))
    for p in range(4):
        e("v_cvt_pk_bf16_f32 v%d, v%d, v%d" % (vT + p, ys[2 * p], ys[2 * p + 1]))
    for p in range(4):
        e("v_lshlrev_b32 v%d, 16, v%d" % (ys[2 * p], vT + p))
        e("v_and_b32 v%d, s%d, v%d" % (ys[2 * p + 1], sHi, vT + p))
else:
    ys = xs
m, m2 = vT + 4, vT + 5
e("v_max3_f32 v%d, v%d, v%d, v%d" % (m, ys[0], ys[1], ys[2]))
e("v_max3_f32 v%d, v%d, v%d, v%d" % (m2, ys[3], ys[4], ys[5]))
e("v_max3_f32 v%d, v%d, v%d, v%d" % (m, m, ys[6], ys[7]))
e("v_max_f32 v%d, v%d, v%d" % (m, m, m2))
e("v_mov_b32 v%d, v%d" % (m2, m))
e("s_nop 1")
e("v_permlane16_swap_b32 v%d, v%d" % (m, m2))
e("s_nop 0")
e("v_max_f32 v%d, v%d, v%d" % (m, m, m2))
e("v_mov_b32 v%d, v%d" % (m2, m))
e("s_nop 1")
e("v_permlane32_swap_b32 v%d, v%d" % (m, m2))
e("s_nop 0")
e("v_max_f32 v%d, v%d, v%d" % (m, m, m2))
e("v_mul_f32 v%d, s%d, v%d" % (m, sLog2e, m))
es = [vX + i for i in range(8)]
for p in range(8):
    e("v_fma_f32 v%d, v%d, s%d, -v%d" % (es[p], ys[p], sLog2e, m))
for p in range(8):
    e("v_exp_f32 v%d, v%d" % (es[p], es[p]))
sm, sm2 = vT + 6, vT + 7
e("v_add_f32 v%d, v%d, v%d" % (sm, es[0], es[1]))
e("v_add_f32 v%d, v%d, v%d" % (sm2, es[2], es[3]))
e("v_add_f32 v%d, v%d, v%d" % (sm, sm, es[4]))
e("v_add_f32 v%d, v%d, v%d" % (sm2, sm2, es[5]))
e("v_add_f32 v%d, v%d, v%d" % (sm, sm, es[6]))
e("v_add_f32 v%d, v%d, v%d" % (sm2, sm2, es[7]))
e("v_add_f32 v%d, v%d, v%d" % (sm, sm, sm2))
e("v_mov_b32 v%d, v%d" % (sm2, sm))
e("s_nop 1")
e("v_permlane16_swap_b32 v%d, v%d" % (sm, sm2))
e("s_nop 0")
e("v_add_f32 v%d, v%d, v%d" % (sm, sm, sm2))
e("v_mov_b32 v%d, v%d" % (sm2, sm))
e("s_nop 1")
e("v_permlane32_swap_b32 v%d, v%d" % (sm, sm2))
e("s_nop 0")
e("v_add_f32 v%d, v%d, v%d" % (sm, sm, sm2))
e("v_rcp_f32 v%d, v%d" % (sm, sm))
e("s_nop 0")
for p in range(8):
    e("v_mul_f32 v%d, v%d, v%d" % (es[p], es[p], sm))
PN = vP + 18
e("v_cvt_pk_bf16_f32 v%d, v%d, v%d" % (vT, es[0], es[1]))
e("v_cvt_pk_bf16_f32 v%d, v%d, v%d" % (vT + 1, es[2], es[3]))
e("v_cvt_pk_bf16_f32 v%d, v%d, v%d" % (PN + 2, es[4], es[5]))
e("v_cvt_pk_bf16_f32 v%d, v%d, v%d" % (PN + 3, es[6], es[7]))
e("v_and_b32 v%d, v%d, v%d" % (PN, vT, vPM + 2))
e("v_and_b32 v%d, v%d, v%d" % (PN + 1, vT + 1, vPM + 3))
e("v_and_b32 v%d, v%d, v%d" % (PN + 4, vT, vPM))
e("v_and_b32 v%d, v%d, v%d" % (PN + 5, vT + 1, vPM + 1))
stamp()
e("s_cmp_lt_u32 s%d, 16" % sI)
e("s_cbranch_scc1 L_qk")

sSt, sWs = 66, 67
e("s_sub_u32 s%d, s%d, 4" % (sSt, sI))
e("s_sub_u32 s%d, s%d, 16" % (sI, sI))
e("s_mul_i32 s%d, s%d, s%d" % (sSt, sSt, sStepB))
e("s_add_i32 s%d, s%d, s%d" % (sSt, sSt, sQ0))
e("s_movk_i32 s%d, %d" % (sWs, 4 * BLK))
e("v_mov_b32 v%d, 32" % vCnt)
e("L_pv:")
e("s_add_u32 s%d, s%d, 36" % (sNeed, sI))
e("s_mul_i32 s%d, s%d, 6" % (sNeed, sNeed))
poll()
stamp()


def va_reads(t):
    for j in range(2):
        e("ds_read_b64_tr_b16 %s, v%d offset:%d" % (vr(vVa + 4 * (t & 7) + 2 * j, 2), vAV + (t & 3), (t >> 2) * 128 + j * BLK))


for t in range(6):
    va_reads(t)
for t in range(12):
    e("s_waitcnt lgkmcnt(%d)" % (2 * min(5, 11 - t)))
    e("v_mfma_f32_16x16x32_bf16 %s, %s, %s, 0" % (vr(vAcc + 4 * t, 4), vr(vVa + 4 * (t & 7), 4), vr(vP, 4)))
    if t + 6 < 12:
        va_reads(t + 6)
e("s_add_u32 s%d, s%d, 6" % (sNeed, sNeed))
e("s_lshr_b32 s%d, s%d, 2" % (sT0, sI))
e("s_sub_i32 s%d, s%d, 1" % (sT0, sT0))
e("L_copied:")
e("ds_read_b32 v%d, v%d offset:%d" % (vF, vFlagA, 6 * 256))
e("s_waitcnt lgkmcnt(0)")
e("v_cmp_gt_i32 vcc, s%d, v%d" % (sT0, vF))
e("s_cbranch_vccnz L_copied")
poll()
stamp()
for t in range(12):
    e("ds_read_b64_tr_b16 %s, v%d offset:%d" % (vr(vVb + 2 * t, 2), vAV + (t & 3), (t >> 2) * 128 + 2 * BLK))


def o_out(t):
    e("v_cvt_pk_bf16_f32 v%d, v%d, v%d" % (vOp + 2 * t, vAcc + 4 * t, vAcc + 4 * t + 1))
    e("v_cvt_pk_bf16_f32 v%d, v%d, v%d" % (vOp + 2 * t + 1, vAcc + 4 * t + 2, vAcc + 4 * t + 3))
    e("ds_write_b64 v%d, %s offset:%d" % (vW + (t & 3), vr(vOp + 2 * t, 2), (t >> 2) * 128))


LAG = 4
for t in range(12):
    nwr = max(0, t - LAG)
    e("s_waitcnt lgkmcnt(%d)" % min(15, 11 - t + nwr))
    e("v_mfma_f32_16x16x16_bf16 %s, %s, %s, %s" % (vr(vAcc + 4 * t, 4), vr(vVb + 2 * t, 2), vr(vP + 4, 2), vr(vAcc + 4 * t, 4)))
    if t >= LAG:
        o_out(t - LAG)
for t in range(12 - LAG, 12):
    o_out(t)
e("s_cmp_ge_u32 s%d, 12" % sI)
e("s_cbranch_scc1 L_last")


def readback(vbase):
    e("s_waitcnt lgkmcnt(0)")
    for j in range(6):
        e("ds_read_b128 %s, v%d offset:%d" % (vr(vbase + 4 * j, 4), vR, j * 1024))


e("s_add_u32 s%d, s%d, %d" % (sI, sI, NC))
for r in range(18):
    e("v_mov_b32 v%d, v%d" % (vP + r, vP + 6 + r))
for m in range(4):
    e("v_add_u32 v%d, %d, v%d" % (vAV + m, 4 * BLK, vAV + m))
for m in range(4):
    e("v_add_u32 v%d, s%d, v%d" % (vW + m, sWs, vW + m))
e("s_sub_i32 s%d, 0, s%d" % (sWs, sWs))
e("s_waitcnt lgkmcnt(0)")
e("ds_write_b32 v%d, v%d" % (vDoneA, vCnt))
if opts["dry"]:
    e("s_cbranch_execz L_real")
stamp()
e("v_add_u32 v%d, 1, v%d" % (vCnt, vCnt))
e("s_branch L_pv")
e("L_last:")
if opts["stamp"] >= 3:
    stamp(key=True)
readback(vAcc)
for j in range(6):
    o = " offset:%d" % ((j % 3) * 1024) if j % 3 else ""
    e("s_waitcnt lgkmcnt(%d)" % (5 - j))
    e("buffer_store_dwordx4 %s, v%d, %s, s%d offen%s%s" % (vr(vAcc + 4 * j, 4), vOff + j, srd(sO), sSt, o, ST))
stamp(key=True)
e("L_fin:")
if opts["stamp"]:
    e("s_waitcnt vmcnt(0)")
    e("s_mov_b32 s%d, 61" % sStampIdx)
    stamp(True)
    e("s_getreg_b32 s62, hwreg(HW_REG_XCC_ID)")
    e("v_writelane_b32 v%d, s62, 62" % vStamp)
    e("s_load_dwordx2 s[%d:%d], s[0:1], 40" % (sQ, sQ + 1))
    e("s_mov_b32 s%d, %d" % (sQ + 2, NBYTES))
    e("s_mul_i32 s62, s2, %d" % (NW * 256))
    e("v_lshlrev_b32 v0, 2, v0")
    e("s_waitcnt lgkmcnt(0)")
    e("buffer_store_dword v%d, v0, %s, s62 offen" % (vStamp, srd(sQ)))
if opts["spin"]:
    if opts["leak"] in ("skew", "gfin"):
        e("s_mov_b64 exec, -1")
        e("s_waitcnt vmcnt(0)")
        e("s_memrealtime s[64:65]")
        e("s_load_dwordx2 s[%d:%d], s[0:1], 32" % (sQ, sQ + 1))
        e("s_mov_b32 s%d, 256" % (sQ + 2))
        e("s_not_b32 s62, s60")
        e("v_mov_b32 v1, s62")
        e("v_mov_b32 v2, 0")
        e("s_mov_b64 exec, 1")
        e("s_waitcnt lgkmcnt(0) vmcnt(0)")
        e("L_spinA:")
        e("s_sleep 4")
        e("s_memrealtime s[62:63]")
        e("s_waitcnt lgkmcnt(0)")
        e("s_sub_u32 s62, s62, s60")
        e("s_cmp_lt_u32 s62, 2000")
        e("s_cbranch_scc1 L_spinA")
        e("buffer_atomic_umax v1, v2, %s, 0 offen sc1" % srd(sQ))
        e("L_spin0:")
        e("s_sleep 4")
        e("s_memrealtime s[62:63]")
        e("s_waitcnt lgkmcnt(0)")
        e("s_sub_u32 s62, s62, s60")
        e("s_cmp_lt_u32 s62, 4500")
        e("s_cbranch_scc1 L_spin0")
        e("buffer_load_dword v1, v2, %s, 0 offen sc0 sc1" % srd(sQ))
        e("s_waitcnt vmcnt(0)")
        e("v_readfirstlane_b32 s62, v1")
        e("s_nop 3")
        e("s_not_b32 s62, s62")
        if opts["leak"] == "skew":
            e("s_sub_u32 s62, s60, s62")
            e("s_lshl_b32 s62, s62, 3")
        else:
            e("s_mov_b32 s60, s62")
            e("s_sub_u32 s62, s64, s62")
            e("s_lshl_b32 s62, s62, 2")
        e("s_min_u32 s62, s62, 20000")
        e("s_add_u32 s%d, s62, %d" % (sLeak, opts["spin"]))
    elif opts["leak"]:
        if opts["leak"] == "fin":
            e("s_waitcnt vmcnt(0)")
            leak("fin")
        e("s_sub_u32 s62, s64, s60")
        e("s_lshl_b32 s62, s62, 2")
        e("s_add_u32 s%d, s62, %d" % (sLeak, opts["spin"]))
    else:
        e("s_mov_b32 s%d, %d" % (sLeak, opts["spin"]))
    e("L_spin:")
    e("s_sleep 4")
    e("s_memrealtime s[62:63]")
    e("s_waitcnt lgkmcnt(0)")
    e("s_sub_u32 s62, s62, s60")
    e("s_cmp_lt_u32 s62, s%d" % sLeak)
    e("s_cbranch_scc1 L_spin")
e("L_end:")
e("s_endpgm")

hdr = """; Sliding-window (w=32) attention, B=1 H=32 S=2048 D=192, bf16.  Generated by gen11.py (hand-written generator).
; kernarg: q, k, v, out, debug, ws
; One workgroup per 256 query rows.  Wave 0 streams 16-row blocks into LDS by LDS-DMA (all K, all Q, all V);
; waves 1..4 each take every 4th 16-query task (S^T = K Q^T, softmax, O^T = V^T P^T with 16x16 MFMAs).
; Hand-off inside the workgroup through LDS counters; outputs stay in registers until the loads are done.
; @launch grid=(256,1,1) block=(%d,1,1) lds=%d
.amdgcn_target "amdgcn-amd-amdhsa--gfx950"
.text
.globl %s_kernel
.p2align %d
.p2align 8
.type %s_kernel,@function
%s_kernel:
""" % (64 * NW, LDS, NAME, opts["align"], NAME, NAME)

ftr = """
.section .rodata,"a"
.p2align 6
.amdhsa_kernel %s_kernel
  .amdhsa_next_free_vgpr %d
  .amdhsa_next_free_sgpr 80
  .amdhsa_accum_offset %d
  .amdhsa_group_segment_fixed_size 0
  .amdhsa_kernarg_size 48
  .amdhsa_user_sgpr_count 2
  .amdhsa_user_sgpr_kernarg_segment_ptr 1
  .amdhsa_system_sgpr_workgroup_id_x 1
.end_amdhsa_kernel
""" % (NAME, NVGPR, NVGPR)

open(sys.argv[1], "w").write(hdr + "\n".join(L) + ftr)
```

```python
import sys
import struct

NAME = "standalone__sliding_local_fixed_window__prompt"

opts = dict(
    ld="nt",
    st="sc1",
    xcdmap=1,
    mimic=1,
    w=21,
    gran=3,
    pre=4,
    open=2,
    srel=24,
    dyn=6,
    w2=36,
    srel2=-1,
    emask=0x0f,
    ploop=1,
    align=12,
    near=1,
    dyn2=0,
    dry=1,
    boost=0,
    blen=5,
    bst=16,
    sleep=1,
    prio=3,
    stamp=0,
    spin=0,
    lmask=0xff,
    skew=0,
    leak="",
)
for a in sys.argv[2:]:
    k, v = a.split("=")
    assert k in opts, k
    opts[k] = v if isinstance(opts[k], str) else int(v, 0)

LD = (" " + opts["ld"].replace("+", " ")) if opts["ld"] else ""
ST = (" " + opts["st"].replace("+", " ")) if opts["st"] else ""
NC = 4

BLK = 6144
KV = 0
QRING = 18 * BLK
FLAG = 26 * BLK
DONE = FLAG + 256
NW = NC + 3
LDS = FLAG + 256 * NW
NBYTES = 32 * 2048 * 384

L = []


def e(s=""):
    L.append("    " + s if s and not s.endswith(":") else s)


def f32hex(x):
    return "0x%08x" % struct.unpack("<I", struct.pack("<f", x))[0]


sQ, sK, sV, sO = 12, 16, 20, 24
sWave = 28
sStepB = 29
sKV0 = 30
sQ0 = 31
sMinOff = 32
sChunk = 33
sI = 34
sF = 35
sM = 36
sScale = 44
sLog2e = 45
sT0, sT1, sT2, sT3, sT4 = 46, 47, 48, 49, 50
sHi = 52
sNeed = 53
sOff = 54
sLds = 55
sInit0, sInit1 = 56, 57
sStampIdx = 58
sLeak = 59

vOff = 1
vLane = 7
vAK = 8
vAQ = 10
vAV = 12
vW = 16
vR = 20
vPM = 21
vFlagA = 25
vDoneA = 26
vF = 27
vCnt = 28
vP = 30
vVb = 56
vVa = 80
vOp = vVa
vAcc = 112
vHold = 160
vQ = 56
vK = 80
vS = 128
vX = 140
vT = 148
vStamp = 224
NVGPR = 232


def srd(s):
    return "s[%d:%d]" % (s, s + 3)


def vr(a, n):
    return "v[%d:%d]" % (a, a + n - 1) if n > 1 else "v%d" % a


def stamp(always=False, key=False):
    if opts["stamp"] == 1 or (opts["stamp"] and always) or (opts["stamp"] >= 3 and key):
        e("s_memrealtime s[62:63]")
        e("s_mov_b32 m0, s%d" % sStampIdx)
        e("s_waitcnt lgkmcnt(0)")
        e("v_writelane_b32 v%d, s62, m0" % vStamp)
        e("s_add_u32 s%d, s%d, 1" % (sStampIdx, sStampIdx))


def leak(name):
    if opts["leak"] != name:
        return
    e("s_waitcnt lgkmcnt(0)")
    e("s_memrealtime s[64:65]")
    e("s_waitcnt lgkmcnt(0)")


def gfun(r):
    return ((((r >> 2) ^ (r >> 3)) & 1) << 2) | (r & 2) | ((r >> 3) & 1)


def g_of(vdst, vrow, vtmp):
    e("v_lshrrev_b32 v%d, 1, v%d" % (vtmp, vrow))
    e("v_xor_b32 v%d, v%d, v%d" % (vtmp, vtmp, vrow))
    e("v_and_b32 v%d, 4, v%d" % (vtmp, vtmp))
    e("v_and_or_b32 v%d, v%d, 2, v%d" % (vtmp, vrow, vtmp))
    e("v_bfe_u32 v%d, v%d, 3, 1" % (vdst, vrow))
    e("v_or_b32 v%d, v%d, v%d" % (vdst, vdst, vtmp))
    e("v_lshlrev_b32 v%d, 4, v%d" % (vdst, vdst))


def dma_block(s_srd, s_off, s_lds, lds, before=None, after=None):
    setm0 = (lambda x: e("s_mov_b32 m0, %d" % x)) if s_lds is None else (lambda x: e("s_add_u32 m0, s%d, %d" % (s_lds, x)))
    for j in range(6):
        if j % 3 == 0:
            setm0(lds + 1024 * j)
        did = before(j) if before else False
        if j % 3 == 0 and not did:
            e("s_nop 0")
        o = " offset:%d" % ((j % 3) * 1024) if j % 3 else ""
        e("buffer_load_dwordx4 v%d, %s, s%d offen%s%s lds" % (vOff + j, srd(s_srd), s_off, o, LD))
        if after:
            after(j)


def pub(cnt):
    if cnt:
        e("v_add_u32 v%d, %d, v%d" % (vCnt, cnt, vCnt))
        e("ds_write_b32 v%d, v%d" % (vFlagA, vCnt))


npoll = [0]


def poll():
    n = npoll[0]
    npoll[0] += 1
    e("s_cmp_ge_u32 s%d, s%d" % (sF, sNeed))
    e("s_cbranch_scc1 L_go%d" % n)
    e("L_poll%d:" % n)
    e("ds_read_b32 v%d, v%d" % (vF, vFlagA))
    e("s_waitcnt lgkmcnt(0)")
    e("v_readfirstlane_b32 s%d, v%d" % (sF, vF))
    e("s_nop 0")
    e("s_cmp_ge_u32 s%d, s%d" % (sF, sNeed))
    e("s_cbranch_scc1 L_go%d" % n)
    if opts["sleep"]:
        e("s_sleep %d" % opts["sleep"])
    e("s_branch L_poll%d" % n)
    e("L_go%d:" % n)


def flag_init(loader=False):
    va = vFlagA if loader else vDoneA
    e("v_lshlrev_b32 v%d, 2, v0" % va)
    e("v_add_u32 v%d, %d, v%d" % (va, FLAG, va))
    if loader:
        e("v_mov_b32 v%d, 0" % vF)
    else:
        e("s_sub_u32 s%d, s%d, 4" % (sT0, sWave))
        e("s_min_i32 s%d, s%d, 0" % (sT0, sT0))
        e("v_mov_b32 v%d, s%d" % (vF, sT0))
    e("ds_write_b32 v%d, v%d" % (va, vF))


e("s_cmp_ge_u32 s2, 256")
e("s_cbranch_scc1 L_end")
if opts["spin"] or opts["stamp"]:
    e("s_memrealtime s[60:61]")
if opts["skew"]:
    e("s_memrealtime s[64:65]")
    e("s_getreg_b32 s62, hwreg(HW_REG_XCC_ID)")
    e("s_and_b32 s62, s62, 7")
    e("s_lshl_b32 s62, s62, 2")
    e("s_lshr_b32 s62, 0x33441100, s62")
    e("s_and_b32 s62, s62, 15")
    e("s_mul_i32 s59, s62, %d" % opts["skew"])
    e("L_skew:")
    e("s_memrealtime s[62:63]")
    e("s_waitcnt lgkmcnt(0)")
    e("s_sub_u32 s62, s62, s64")
    e("s_cmp_lt_u32 s62, s59")
    e("s_cbranch_scc1 L_skew")
e("s_load_dwordx2 s[%d:%d], s[0:1], 8" % (sK, sK + 1))
e("s_load_dwordx2 s[%d:%d], s[0:1], 0" % (sQ, sQ + 1))
e("s_load_dwordx2 s[%d:%d], s[0:1], 16" % (sV, sV + 1))
e("s_load_dwordx2 s[%d:%d], s[0:1], 24" % (sO, sO + 1))
e("v_and_b32 v%d, 63, v0" % vLane)
e("v_readfirstlane_b32 s%d, v0" % sWave)
e("v_lshrrev_b32 v65, 1, v%d" % vLane)
e("v_and_b32 v65, 28, v65")
e("s_movk_i32 s%d, 0x50" % sT4)
e("v_mov_b32 v67, 3072")
for j in range(3):
    tab = sum(gfun((8 * j + l) // 3) << (4 * l) for l in range(8))
    assert all(gfun((8 * (j + 3) + l) // 3) == gfun((8 * j + l) // 3) ^ 5 for l in range(8))
    e("s_mov_b32 s%d, 0x%x" % (sT3, tab))
    e("v_bfe_u32 v66, s%d, v65, 3" % sT3)
    e("v_xor_b32 v66, v66, v%d" % vLane)
    e("v_lshlrev_b32 v%d, 4, v66" % (vOff + j))
    e("v_xad_u32 v%d, v%d, s%d, v67" % (vOff + 3 + j, vOff + j, sT4))
e("s_mov_b32 s%d, %d" % (sK + 2, NBYTES))
e("s_mov_b32 s%d, 0x20000" % (sK + 3))
for s in (sQ, sV, sO):
    e("s_mov_b32 s%d, s%d" % (s + 2, sK + 2))
    e("s_mov_b32 s%d, s%d" % (s + 3, sK + 3))
e("s_and_b32 s%d, s2, 7" % sT1)
e("s_lshr_b32 s%d, s2, 6" % sT2)
if opts["xcdmap"] == 1:
    e("s_lshl3_add_u32 s%d, s%d, s%d" % (sT1, sT2, sT1))
else:
    e("s_lshl2_add_u32 s%d, s%d, s%d" % (sT1, sT1, sT2))
e("s_bfe_u32 s%d, s2, 0x30003" % sChunk)
e("s_mul_i32 s%d, s%d, %d" % (sMinOff, sT1, 2048 * 384))
e("s_lshl_b32 s%d, s%d, 4" % (sT2, sChunk))
e("s_bitcmp1_b32 s%d, 0" % sChunk)
e("s_cselect_b32 s%d, -1, 1" % sStepB)
e("s_cselect_b32 s%d, 15, -2" % sKV0)
e("s_cselect_b32 s%d, 15, 0" % sQ0)
e("s_add_i32 s%d, s%d, s%d" % (sKV0, sKV0, sT2))
e("s_add_i32 s%d, s%d, s%d" % (sQ0, sQ0, sT2))
e("s_mulk_i32 s%d, %d" % (sStepB, BLK))
e("s_mulk_i32 s%d, %d" % (sKV0, BLK))
e("s_mulk_i32 s%d, %d" % (sQ0, BLK))
e("s_add_i32 s%d, s%d, s%d" % (sKV0, sKV0, sMinOff))
e("s_add_i32 s%d, s%d, s%d" % (sQ0, sQ0, sMinOff))
e("s_lshr_b32 s%d, s%d, 6" % (sWave, sWave))
if opts["stamp"]:
    e("s_waitcnt lgkmcnt(0)")
    e("v_mov_b32 v%d, 0" % vStamp)
    e("v_writelane_b32 v%d, s60, 0" % vStamp)
    e("s_mov_b32 s%d, 1" % sStampIdx)
    stamp()
if opts["leak"]:
    e("s_waitcnt lgkmcnt(0)")
    e("s_mov_b32 s64, s60")
e("s_cmp_lg_u32 s%d, 0" % sWave)
if opts["near"]:
    e("s_cbranch_scc0 L_loader")
    flag_init()
    e("s_waitcnt lgkmcnt(0)")
    e("s_barrier")
    e("s_branch L_compute")
    e("L_loader:")
else:
    e("s_cbranch_scc1 L_compute")

W, G, PRE, DYN, W2 = opts["w"], opts["gran"], opts["pre"], opts["dyn"], opts["w2"]
assert 6 % G == 0 and 2 <= PRE <= 6 and W2 <= 36 and W2 + 6 * opts["open"] <= 60
sW = 72
sMaskP, sEncP, sIss, sTk = 70, 71, 69, 68


def enc(w):
    return (w & 15) | ((w >> 4) << 22)


if opts["prio"]:
    e("s_setprio %d" % opts["prio"])
sV0, sV2 = 66, 67
e("s_max_i32 s%d, s%d, s%d" % (sV0, sKV0, sMinOff))
e("s_add_i32 s%d, s%d, s%d" % (sT1, sV0, sStepB))
e("s_add_i32 s%d, s%d, s%d" % (sOff, sKV0, sStepB))
e("s_add_i32 s%d, s%d, s%d" % (sV2, sOff, sStepB))
if opts["ploop"]:
    e("s_mov_b32 s%d, s%d" % (sOff, sV0))
    e("s_mov_b32 s%d, 0" % sLds)
    e("s_waitcnt lgkmcnt(0)")
    e("L_pre:")
    dma_block(sK, sOff, sLds, KV)
    e("s_add_i32 s%d, s%d, s%d" % (sOff, sOff, sStepB))
    e("s_addk_i32 s%d, %d" % (sLds, BLK))
    e("s_cmpk_eq_u32 s%d, %d" % (sLds, 2 * BLK))
    e("s_cselect_b32 s%d, s%d, s%d" % (sOff, sV2, sOff))
    e("s_cmpk_lt_u32 s%d, %d" % (sLds, PRE * BLK))
    e("s_cbranch_scc1 L_pre")
else:
    e("s_waitcnt lgkmcnt(0)")
    dma_block(sK, sV0, None, KV)
    dma_block(sK, sT1, None, KV + BLK)
    for n in range(2, PRE):
        e("s_add_i32 s%d, s%d, s%d" % (sOff, sOff, sStepB))
        dma_block(sK, sOff, None, KV + n * BLK)
    e("s_add_i32 s%d, s%d, s%d" % (sOff, sOff, sStepB))
flag_init(True)
e("v_and_b32 v%d, 3, v%d" % (vDoneA, vLane))
e("v_lshlrev_b32 v%d, 8, v%d" % (vDoneA, vDoneA))
e("v_add_u32 v%d, %d, v%d" % (vDoneA, DONE, vDoneA))
e("s_mov_b32 s%d, 0xc0000f" % sMaskP)
e("s_mov_b32 s%d, 0x%x" % (sEncP, enc(W - G)))
e("s_mov_b32 s%d, %d" % (sIss, 6 * PRE + 3))
e("s_mov_b32 s%d, %d" % (sTk, PRE - 25 - 3))
e("s_mov_b32 s%d, s%d" % (sT0, sOff))
e("s_mov_b32 s%d, %d" % (sLds, PRE * BLK))
e("s_mov_b32 s%d, %d" % (sI, PRE))
e("s_mov_b64 s[%d:%d], s[%d:%d]" % (sW, sW + 1, sK, sK + 1))
e("s_mov_b32 s%d, s%d" % (sW + 2, sK + 2))
e("s_mov_b32 s%d, s%d" % (sW + 3, sK + 3))
events = {PRE + 1, 18, 26, 34, 36, 52} | ({52 - opts["open"]} if opts["open"] else set())
BON, BOFF = (opts["bst"], 34), (opts["bst"] + opts["blen"], 34 + opts["blen"])
if opts["boost"]:
    events |= set(BON) | set(BOFF)
evm = sum(1 << x for x in events)
sEv = 76
e("s_mov_b32 s%d, 0x%x" % (sEv, evm & 0xffffffff))
e("s_mov_b32 s%d, 0x%x" % (sEv + 1, evm >> 32))
e("s_waitcnt lgkmcnt(0)")
if opts["stamp"] == 4:
    e("s_mov_b32 s78, 0")
e("s_barrier")
e("L_ld:")
assert G == 3


def look():
    e("s_getreg_b32 s%d, hwreg(HW_REG_IB_STS)" % sT3)
    e("s_and_b32 s%d, s%d, s%d" % (sT3, sT3, sMaskP))
    e("s_cmp_le_u32 s%d, s%d" % (sT3, sEncP))


def before(j):
    if j % G:
        return False
    look()
    e("s_cbranch_scc0 L_dw%d" % j)
    e("L_dk%d:" % j)
    return True


def after(j):
    if j == 2:
        e("ds_read_b32 v%d, v%d" % (vF, vDoneA))
    if j == 5:
        e("s_lshr_b32 s%d, s%d, 18" % (sT4, sT3))
        e("s_add_u32 s%d, s%d, s%d" % (sT3, sT3, sT4))
        e("s_and_b32 s%d, s%d, 63" % (sT3, sT3))
        e("s_sub_u32 s%d, s%d, s%d" % (sT3, sIss, sT3))
        e("v_mov_b32 v%d, s%d" % (vCnt, sT3))
        e("ds_write_b32 v%d, v%d" % (vFlagA, vCnt))


def slow_paths():
    for j in (0, 3):
        e("L_dw%d:" % j)
        for r in range((DYN if j == 0 or not opts["dyn2"] else opts["dyn2"]) - 1):
            look()
            e("s_cbranch_scc1 L_dk%d" % j)
        e("s_waitcnt vmcnt(%d)" % (W2 - G))
        e("s_branch L_dk%d" % j)
    e("L_free_again:")
    if opts["stamp"] == 4:
        e("s_add_u32 s78, s78, 1")
    e("ds_read_b32 v%d, v%d" % (vF, vDoneA))
    e("s_waitcnt lgkmcnt(0)")
    e("v_cmp_gt_i32 vcc, s%d, v%d" % (sTk, vF))
    e("s_cbranch_vccnz L_free_again")
    e("s_branch L_free_ok")


dma_block(sW, sT0, sLds, 0, before, after)
e("s_add_u32 s%d, s%d, 6" % (sIss, sIss))
e("s_add_u32 s%d, s%d, 1" % (sI, sI))
e("s_add_i32 s%d, s%d, s%d" % (sT0, sT0, sStepB))
e("s_add_u32 s%d, s%d, %d" % (sLds, sLds, BLK))
e("s_waitcnt lgkmcnt(1)")
e("v_cmp_ge_i32 vcc, s%d, v%d" % (sTk, vF))
e("s_add_i32 s%d, s%d, 1" % (sTk, sTk))
e("s_cbranch_vccnz L_free_again")
e("L_free_ok:")
e("s_bitcmp1_b64 s[%d:%d], s%d" % (sEv, sEv + 1, sI))
e("s_cbranch_scc0 L_ld")
if opts["ploop"]:
    e("s_branch L_event")
    slow_paths()
    e("L_event:")
if opts["stamp"] == 4:
    stamp(True)
e("s_cmp_eq_u32 s%d, 18" % sI)
e("s_cselect_b64 s[%d:%d], s[%d:%d], s[%d:%d]" % (sW, sW + 1, sQ, sQ + 1, sW, sW + 1))
e("s_cselect_b32 s%d, s%d, s%d" % (sT0, sQ0, sT0))
e("s_cmp_eq_u32 s%d, 26" % sI)
e("s_cselect_b32 s%d, %d, s%d" % (sLds, QRING, sLds))
e("s_cmp_eq_u32 s%d, 34" % sI)
e("s_cselect_b64 s[%d:%d], s[%d:%d], s[%d:%d]" % (sW, sW + 1, sV, sV + 1, sW, sW + 1))
e("s_cselect_b32 s%d, s%d, s%d" % (sT0, sV0, sT0))
e("s_cselect_b32 s%d, 0, s%d" % (sLds, sLds))
e("s_cselect_b32 s%d, -2, s%d" % (sTk, sTk))
e("s_cmp_eq_u32 s%d, 36" % sI)
e("s_cselect_b32 s%d, s%d, s%d" % (sT0, sV2, sT0))
if opts["boost"]:
    for x in BON:
        e("s_cmp_eq_u32 s%d, %d" % (sI, x))
        e("s_cselect_b32 s%d, 0x%x, s%d" % (sEncP, enc(W + opts["boost"] - G), sEncP))
    for x in BOFF:
        e("s_cmp_eq_u32 s%d, %d" % (sI, x))
        e("s_cselect_b32 s%d, 0x%x, s%d" % (sEncP, enc(W - G), sEncP))
if opts["open"]:
    e("s_cmp_eq_u32 s%d, %d" % (sI, 52 - opts["open"]))
    e("s_cselect_b32 s%d, s%d, s%d" % (sEncP, sMaskP, sEncP))
e("s_cmp_lt_u32 s%d, 52" % sI)
e("s_cbranch_scc1 L_ld")
stamp(key=True)
leak("ldiss")
for k, rem in enumerate(range(W2 + 6 * opts["open"], -1, -3)):
    vc = (vCnt, vF)[k & 1]
    e("v_mov_b32 v%d, %d" % (vc, 312 - rem))
    e("s_waitcnt vmcnt(%d)" % rem)
    if rem % 6 == 0:
        e("ds_write_b32 v%d, v%d" % (vFlagA, vc))
    if rem in (opts["srel"], opts["srel2"]):
        e("ds_write_b32 v%d, v%d offset:%d" % (vFlagA, vc, 5 * 256))
stamp(key=True)
if opts["stamp"] == 4:
    e("v_writelane_b32 v%d, s78, 63" % vStamp)
leak("lddone")
e("s_branch L_fin")
if not opts["ploop"]:
    slow_paths()

vLo = 32
e("L_storer:")
e("v_and_b32 v%d, 3, v%d" % (vDoneA, vLane))
e("v_lshlrev_b32 v%d, 8, v%d" % (vDoneA, vDoneA))
e("v_add_u32 v%d, %d, v%d" % (vDoneA, DONE, vDoneA))
e("v_lshlrev_b32 v%d, 4, v%d" % (vR, vLane))
e("v_add_u32 v%d, %d, v%d" % (vR, QRING, vR))
e("v_lshlrev_b32 v%d, 2, v%d" % (vAK, vLane))
e("v_add_u32 v%d, %d, v%d" % (vAK, FLAG + 6 * 256, vAK))
if opts["srel2"] >= 0:
    e("s_getreg_b32 s%d, hwreg(HW_REG_XCC_ID)" % sNeed)
    e("s_and_b32 s%d, s%d, 7" % (sNeed, sNeed))
    e("s_bitcmp1_b32 %d, s%d" % (opts["emask"], sNeed))
    e("s_cselect_b32 s%d, %d, %d" % (sNeed, opts["srel2"], opts["srel"]))
    e("s_sub_u32 s%d, 312, s%d" % (sNeed, sNeed))
else:
    e("s_movk_i32 s%d, %d" % (sNeed, 312 - opts["srel"]))
e("v_mov_b32 v%d, %d" % (vFlagA, FLAG + 5 * 256))
assert opts["srel"] % 3 == 0


def fetch(tag, s_lvl, vb, base):
    e("L_ofree%s:" % tag)
    e("s_sleep 1")
    e("ds_read_b32 v%d, v%d" % (vF, vDoneA))
    e("s_waitcnt lgkmcnt(0)")
    e("v_cmp_gt_i32 vcc, %s, v%d" % (s_lvl, vF))
    e("s_cbranch_vccnz L_ofree%s" % tag)
    for j in range(24):
        if j == 12:
            e("s_waitcnt lgkmcnt(0)")
        e("ds_read_b128 %s, v%d offset:%d" % (vr(vb + 4 * j, 4), vR, base + j * 1024))
    e("s_waitcnt lgkmcnt(0)")


def store4(vb):
    for t in range(4):
        for j in range(6):
            o = " offset:%d" % ((j % 3) * 1024) if j % 3 else ""
            e("buffer_store_dwordx4 %s, v%d, %s, s%d offen%s%s" % (vr(vb + 24 * t + 4 * j, 4), vOff + j, srd(sO), sQ0, o, ST))
        e("s_add_i32 s%d, s%d, s%d" % (sQ0, sQ0, sStepB))


e("s_cmp_eq_u32 s%d, 5" % sWave)
e("s_cselect_b32 s%d, 32, 34" % sT0)
e("s_cselect_b32 s%d, 0, 8" % sT1)
e("s_mul_i32 s%d, s%d, s%d" % (sT1, sT1, sStepB))
e("s_add_i32 s%d, s%d, s%d" % (sQ0, sQ0, sT1))
e("v_mov_b32 v%d, 1" % vCnt)
fetch("a", "s%d" % sT0, vLo, 0)
e("s_cmp_eq_u32 s%d, 5" % sWave)
e("s_cbranch_scc0 L_st_wait")
e("ds_write_b32 v%d, v%d" % (vAK, vCnt))
e("v_mov_b32 v%d, 2" % vAQ)
fetch("b", "33", vLo + 96, 4 * BLK)
e("ds_write_b32 v%d, v%d" % (vAK, vAQ))
e("L_st_wait:")
poll()
stamp(key=True)
store4(vLo)
e("s_cmp_eq_u32 s%d, 5" % sWave)
e("s_cbranch_scc0 L_st_end")
store4(vLo + 96)
e("L_st_end:")
stamp(key=True)
e("s_branch L_fin")

e("L_compute:")
if not opts["near"]:
    flag_init()
    e("s_waitcnt lgkmcnt(0)")
    e("s_barrier")
e("s_sub_u32 s%d, s%d, 1" % (sI, sWave))
e("s_mul_i32 s%d, s%d, %d" % (sT3, sI, BLK))
e("s_add_u32 s%d, s%d, %d" % (sT4, sT3, QRING + 4 * BLK))
e("s_mov_b32 s%d, 0" % sF)
e("v_mov_b32 v%d, %d" % (vFlagA, FLAG))
e("s_cmp_ge_u32 s%d, 5" % sWave)
e("s_cbranch_scc1 L_storer")
e("v_and_b32 v66, 15, v%d" % vLane)
e("v_lshrrev_b32 v67, 4, v%d" % vLane)
g_of(70, 66, 71)
e("v_mul_u32_u24 v68, 384, v66")
e("v_lshlrev_b32 v69, 4, v67")
e("v_xor_b32 v69, v69, v70")
e("v_add3_u32 v%d, v68, v69, s%d" % (vAK, sT3))
e("v_xor_b32 v%d, 64, v%d" % (vAK + 1, vAK))
e("v_add_u32 v%d, %d, v%d" % (vAQ, QRING, vAK))
e("v_add_u32 v%d, %d, v%d" % (vAQ + 1, QRING, vAK + 1))
e("v_lshrrev_b32 v69, 1, v67")
e("v_lshlrev_b32 v69, 4, v69")
e("v_xor_b32 v69, v69, v70")
e("v_and_b32 v71, 1, v67")
e("v_lshl_add_u32 v69, v71, 3, v69")
e("v_add3_u32 v%d, v68, v69, s%d" % (vW, sT4))
e("v_subrev_u32 v%d, %d, v%d" % (vW, 4 * BLK, vW))
for m in range(1, 4):
    e("v_xor_b32 v%d, %d, v%d" % (vW + m, 32 * m, vW))
e("v_lshlrev_b32 v69, 2, v67")
for i in range(4):
    e("v_add_u32 v71, %d, v69" % i)
    e("v_cmp_le_u32 s[%d:%d], v71, v66" % (sM + 2 * i, sM + 2 * i + 1))
e("s_ashr_i32 s%d, s%d, 31" % (sT0, sStepB))
e("s_mov_b32 s%d, s%d" % (sT1, sT0))
e("s_nop 1")
for i in range(4):
    e("s_xor_b64 s[%d:%d], s[%d:%d], s[%d:%d]" % (sM + 2 * i, sM + 2 * i + 1, sM + 2 * i, sM + 2 * i + 1, sT0, sT1))
e("s_mov_b32 s%d, 0xffff0000" % sHi)
e("v_mov_b32 v72, 0xffff")
e("v_mov_b32 v73, s%d" % sHi)
for k in range(2):
    e("v_cndmask_b32 v74, 0, v72, s[%d:%d]" % (sM + 4 * k, sM + 4 * k + 1))
    e("v_cndmask_b32 v75, 0, v73, s[%d:%d]" % (sM + 4 * k + 2, sM + 4 * k + 3))
    e("v_or_b32 v%d, v74, v75" % (vPM + k))
    e("v_not_b32 v%d, v%d" % (vPM + 2 + k, vPM + k))
e("v_lshrrev_b32 v69, 2, v%d" % vLane)
g_of(70, 69, 71)
e("v_mul_u32_u24 v68, 384, v69")
e("v_bfe_u32 v71, v%d, 1, 1" % vLane)
e("v_lshlrev_b32 v71, 4, v71")
e("v_xor_b32 v70, v70, v71")
e("v_and_b32 v71, 1, v%d" % vLane)
e("v_lshl_add_u32 v70, v71, 3, v70")
e("v_add3_u32 v%d, v68, v70, s%d" % (vAV, sT3))
for m in range(1, 4):
    e("v_xor_b32 v%d, %d, v%d" % (vAV + m, 32 * m, vAV))
e("v_lshlrev_b32 v%d, 4, v%d" % (vR, vLane))
e("v_add_u32 v%d, s%d, v%d" % (vR, sT4, vR))
if opts["dry"]:
    e("s_mov_b32 s%d, 12" % sI)
    e("s_mov_b32 s%d, -1" % sF)
    e("s_mov_b64 vcc, 0")
    e("s_mov_b64 exec, 0")
    e("s_branch L_qk")
    e("L_real:")
    e("s_mov_b64 exec, -1")
    e("s_mov_b32 s%d, 0" % sF)
    e("s_sub_u32 s%d, s%d, 1" % (sI, sWave))
e("s_cmp_eq_u32 s%d, 0" % sChunk)
e("s_cselect_b32 s%d, 0xff800000, 0" % sT2)
e("s_cmp_lt_u32 s%d, 2" % sI)
e("s_cselect_b32 s%d, s%d, 0" % (sInit0, sT2))
e("s_cmp_eq_u32 s%d, 0" % sI)
e("s_cselect_b32 s%d, s%d, 0" % (sInit1, sT2))
e("s_mov_b32 s%d, %s" % (sScale, f32hex(192 ** -0.5)))
if opts["mimic"]:
    e("s_mov_b32 s%d, %s" % (sLog2e, f32hex(1.4426950408889634)))
else:
    e("s_mov_b32 s%d, %s" % (sLog2e, f32hex(1.4426950408889634 * 192 ** -0.5)))
e("s_movk_i32 s%d, %d" % (sT3, 4 * BLK))

e("L_qk:")
for i in range(4):
    e("v_mov_b32 v%d, s%d" % (vS + i, sInit0))
    e("v_mov_b32 v%d, s%d" % (vS + 4 + i, sInit1))
e("s_mov_b32 s%d, 0" % sInit0)
e("s_mov_b32 s%d, 0" % sInit1)
for r in range(18):
    e("v_mov_b32 v%d, v%d" % (vP + r, vP + 6 + r))
e("s_add_u32 s%d, s%d, 1" % (sT1, sI))
e("v_mov_b32 v%d, s%d" % (vCnt, sT1))
e("s_add_u32 s%d, s%d, 19" % (sNeed, sI))
e("s_mul_i32 s%d, s%d, 6" % (sNeed, sNeed))
poll()
stamp()


def qk_reads(i):
    o = (i >> 1) * 128
    e("ds_read_b128 %s, v%d offset:%d" % (vr(vQ + 4 * i, 4), vAQ + (i & 1), o))
    for j in range(3):
        e("ds_read_b128 %s, v%d offset:%d" % (vr(vK + 12 * (i & 3) + 4 * j, 4), vAK + (i & 1), o + j * BLK))


for i in range(3):
    qk_reads(i)
for k in range(6):
    e("s_waitcnt lgkmcnt(%d)" % (4 * min(2, 5 - k)))
    if k == 5:
        e("ds_write_b32 v%d, v%d" % (vDoneA, vCnt))
    for j in range(3):
        c = "0" if (k == 0 and j == 2) else vr(vS + 4 * j, 4)
        e("v_mfma_f32_16x16x32_bf16 %s, %s, %s, %s" % (vr(vS + 4 * j, 4), vr(vK + 12 * (k & 3) + 4 * j, 4), vr(vQ + 4 * k, 4), c))
    if k + 3 < 6:
        qk_reads(k + 3)
e("v_add_u32 v%d, %d, v%d" % (vAK, 4 * BLK, vAK))
e("v_add_u32 v%d, %d, v%d" % (vAK + 1, 4 * BLK, vAK + 1))
e("v_add_u32 v%d, s%d, v%d" % (vAQ, sT3, vAQ))
e("v_add_u32 v%d, s%d, v%d" % (vAQ + 1, sT3, vAQ + 1))
e("s_sub_i32 s%d, 0, s%d" % (sT3, sT3))
e("s_add_u32 s%d, s%d, %d" % (sI, sI, NC))
e("s_nop 2")
for i in range(4):
    e("v_cndmask_b32 v%d, v%d, v%d, s[%d:%d]" % (vX + i, vS + i, vS + 8 + i, sM + 2 * i, sM + 2 * i + 1))
xs = [vX + i for i in range(4)] + [vS + 4 + i for i in range(4)]
ys = [vX + i for i in range(8)]
if opts["mimic"]:
    for p in range(4):
        e("v_cvt_pk_bf16_f32 v%d, v%d, v%d" % (vT + p, xs[2 * p], xs[2 * p + 1]))
    for p in range(4):
        e("v_lshlrev_b32 v%d, 16, v%d" % (ys[2 * p], vT + p))
        e("v_and_b32 v%d, s%d, v%d" % (ys[2 * p + 1], sHi, vT + p))
    for p in range(8):
        e("v_mul_f32 v%d, s%d, v%d" % (ys[p], sScale, ys[p]))
    for p in range(4):
        e("v_cvt_pk_bf16_f32 v%d, v%d, v%d" % (vT + p, ys[2 * p], ys[2 * p + 1]))
    for p in range(4):
        e("v_lshlrev_b32 v%d, 16, v%d" % (ys[2 * p], vT + p))
        e("v_and_b32 v%d, s%d, v%d" % (ys[2 * p + 1], sHi, vT + p))
else:
    ys = xs
m, m2 = vT + 4, vT + 5
e("v_max3_f32 v%d, v%d, v%d, v%d" % (m, ys[0], ys[1], ys[2]))
e("v_max3_f32 v%d, v%d, v%d, v%d" % (m2, ys[3], ys[4], ys[5]))
e("v_max3_f32 v%d, v%d, v%d, v%d" % (m, m, ys[6], ys[7]))
e("v_max_f32 v%d, v%d, v%d" % (m, m, m2))
e("v_mov_b32 v%d, v%d" % (m2, m))
e("s_nop 1")
e("v_permlane16_swap_b32 v%d, v%d" % (m, m2))
e("s_nop 0")
e("v_max_f32 v%d, v%d, v%d" % (m, m, m2))
e("v_mov_b32 v%d, v%d" % (m2, m))
e("s_nop 1")
e("v_permlane32_swap_b32 v%d, v%d" % (m, m2))
e("s_nop 0")
e("v_max_f32 v%d, v%d, v%d" % (m, m, m2))
e("v_mul_f32 v%d, s%d, v%d" % (m, sLog2e, m))
es = [vX + i for i in range(8)]
for p in range(8):
    e("v_fma_f32 v%d, v%d, s%d, -v%d" % (es[p], ys[p], sLog2e, m))
for p in range(8):
    e("v_exp_f32 v%d, v%d" % (es[p], es[p]))
sm, sm2 = vT + 6, vT + 7
e("v_add_f32 v%d, v%d, v%d" % (sm, es[0], es[1]))
e("v_add_f32 v%d, v%d, v%d" % (sm2, es[2], es[3]))
e("v_add_f32 v%d, v%d, v%d" % (sm, sm, es[4]))
e("v_add_f32 v%d, v%d, v%d" % (sm2, sm2, es[5]))
e("v_add_f32 v%d, v%d, v%d" % (sm, sm, es[6]))
e("v_add_f32 v%d, v%d, v%d" % (sm2, sm2, es[7]))
e("v_add_f32 v%d, v%d, v%d" % (sm, sm, sm2))
e("v_mov_b32 v%d, v%d" % (sm2, sm))
e("s_nop 1")
e("v_permlane16_swap_b32 v%d, v%d" % (sm, sm2))
e("s_nop 0")
e("v_add_f32 v%d, v%d, v%d" % (sm, sm, sm2))
e("v_mov_b32 v%d, v%d" % (sm2, sm))
e("s_nop 1")
e("v_permlane32_swap_b32 v%d, v%d" % (sm, sm2))
e("s_nop 0")
e("v_add_f32 v%d, v%d, v%d" % (sm, sm, sm2))
e("v_rcp_f32 v%d, v%d" % (sm, sm))
e("s_nop 0")
for p in range(8):
    e("v_mul_f32 v%d, v%d, v%d" % (es[p], es[p], sm))
PN = vP + 18
e("v_cvt_pk_bf16_f32 v%d, v%d, v%d" % (vT, es[0], es[1]))
e("v_cvt_pk_bf16_f32 v%d, v%d, v%d" % (vT + 1, es[2], es[3]))
e("v_cvt_pk_bf16_f32 v%d, v%d, v%d" % (PN + 2, es[4], es[5]))
e("v_cvt_pk_bf16_f32 v%d, v%d, v%d" % (PN + 3, es[6], es[7]))
e("v_and_b32 v%d, v%d, v%d" % (PN, vT, vPM + 2))
e("v_and_b32 v%d, v%d, v%d" % (PN + 1, vT + 1, vPM + 3))
e("v_and_b32 v%d, v%d, v%d" % (PN + 4, vT, vPM))
e("v_and_b32 v%d, v%d, v%d" % (PN + 5, vT + 1, vPM + 1))
stamp()
e("s_cmp_lt_u32 s%d, 16" % sI)
e("s_cbranch_scc1 L_qk")

sSt, sWs = 66, 67
e("s_sub_u32 s%d, s%d, 4" % (sSt, sI))
e("s_sub_u32 s%d, s%d, 16" % (sI, sI))
e("s_mul_i32 s%d, s%d, s%d" % (sSt, sSt, sStepB))
e("s_add_i32 s%d, s%d, s%d" % (sSt, sSt, sQ0))
e("s_movk_i32 s%d, %d" % (sWs, 4 * BLK))
e("v_mov_b32 v%d, 32" % vCnt)
e("L_pv:")
e("s_add_u32 s%d, s%d, 36" % (sNeed, sI))
e("s_mul_i32 s%d, s%d, 6" % (sNeed, sNeed))
poll()
stamp()


def va_reads(t):
    for j in range(2):
        e("ds_read_b64_tr_b16 %s, v%d offset:%d" % (vr(vVa + 4 * (t & 7) + 2 * j, 2), vAV + (t & 3), (t >> 2) * 128 + j * BLK))


for t in range(6):
    va_reads(t)
for t in range(12):
    e("s_waitcnt lgkmcnt(%d)" % (2 * min(5, 11 - t)))
    e("v_mfma_f32_16x16x32_bf16 %s, %s, %s, 0" % (vr(vAcc + 4 * t, 4), vr(vVa + 4 * (t & 7), 4), vr(vP, 4)))
    if t + 6 < 12:
        va_reads(t + 6)
e("s_add_u32 s%d, s%d, 6" % (sNeed, sNeed))
e("s_lshr_b32 s%d, s%d, 2" % (sT0, sI))
e("s_sub_i32 s%d, s%d, 1" % (sT0, sT0))
e("L_copied:")
e("ds_read_b32 v%d, v%d offset:%d" % (vF, vFlagA, 6 * 256))
e("s_waitcnt lgkmcnt(0)")
e("v_cmp_gt_i32 vcc, s%d, v%d" % (sT0, vF))
e("s_cbranch_vccnz L_copied")
poll()
stamp()
for t in range(12):
    e("ds_read_b64_tr_b16 %s, v%d offset:%d" % (vr(vVb + 2 * t, 2), vAV + (t & 3), (t >> 2) * 128 + 2 * BLK))


def o_out(t):
    e("v_cvt_pk_bf16_f32 v%d, v%d, v%d" % (vOp + 2 * t, vAcc + 4 * t, vAcc + 4 * t + 1))
    e("v_cvt_pk_bf16_f32 v%d, v%d, v%d" % (vOp + 2 * t + 1, vAcc + 4 * t + 2, vAcc + 4 * t + 3))
    e("ds_write_b64 v%d, %s offset:%d" % (vW + (t & 3), vr(vOp + 2 * t, 2), (t >> 2) * 128))


LAG = 4
for t in range(12):
    nwr = max(0, t - LAG)
    e("s_waitcnt lgkmcnt(%d)" % min(15, 11 - t + nwr))
    e("v_mfma_f32_16x16x16_bf16 %s, %s, %s, %s" % (vr(vAcc + 4 * t, 4), vr(vVb + 2 * t, 2), vr(vP + 4, 2), vr(vAcc + 4 * t, 4)))
    if t >= LAG:
        o_out(t - LAG)
for t in range(12 - LAG, 12):
    o_out(t)
e("s_cmp_ge_u32 s%d, 12" % sI)
e("s_cbranch_scc1 L_last")


def readback(vbase):
    e("s_waitcnt lgkmcnt(0)")
    for j in range(6):
        e("ds_read_b128 %s, v%d offset:%d" % (vr(vbase + 4 * j, 4), vR, j * 1024))


e("s_add_u32 s%d, s%d, %d" % (sI, sI, NC))
for r in range(18):
    e("v_mov_b32 v%d, v%d" % (vP + r, vP + 6 + r))
for m in range(4):
    e("v_add_u32 v%d, %d, v%d" % (vAV + m, 4 * BLK, vAV + m))
for m in range(4):
    e("v_add_u32 v%d, s%d, v%d" % (vW + m, sWs, vW + m))
e("s_sub_i32 s%d, 0, s%d" % (sWs, sWs))
e("s_waitcnt lgkmcnt(0)")
e("ds_write_b32 v%d, v%d" % (vDoneA, vCnt))
if opts["dry"]:
    e("s_cbranch_execz L_real")
stamp()
e("v_add_u32 v%d, 1, v%d" % (vCnt, vCnt))
e("s_branch L_pv")
e("L_last:")
if opts["stamp"] >= 3:
    stamp(key=True)
readback(vAcc)
for j in range(6):
    o = " offset:%d" % ((j % 3) * 1024) if j % 3 else ""
    e("s_waitcnt lgkmcnt(%d)" % (5 - j))
    e("buffer_store_dwordx4 %s, v%d, %s, s%d offen%s%s" % (vr(vAcc + 4 * j, 4), vOff + j, srd(sO), sSt, o, ST))
stamp(key=True)
e("L_fin:")
if opts["stamp"]:
    e("s_waitcnt vmcnt(0)")
    e("s_mov_b32 s%d, 61" % sStampIdx)
    stamp(True)
    e("s_getreg_b32 s62, hwreg(HW_REG_XCC_ID)")
    e("v_writelane_b32 v%d, s62, 62" % vStamp)
    e("s_load_dwordx2 s[%d:%d], s[0:1], 40" % (sQ, sQ + 1))
    e("s_mov_b32 s%d, %d" % (sQ + 2, NBYTES))
    e("s_mul_i32 s62, s2, %d" % (NW * 256))
    e("v_lshlrev_b32 v0, 2, v0")
    e("s_waitcnt lgkmcnt(0)")
    e("buffer_store_dword v%d, v0, %s, s62 offen" % (vStamp, srd(sQ)))
if opts["spin"]:
    if opts["leak"] in ("skew", "gfin"):
        e("s_mov_b64 exec, -1")
        e("s_waitcnt vmcnt(0)")
        e("s_memrealtime s[64:65]")
        e("s_load_dwordx2 s[%d:%d], s[0:1], 32" % (sQ, sQ + 1))
        e("s_mov_b32 s%d, 256" % (sQ + 2))
        e("s_not_b32 s62, s60")
        e("v_mov_b32 v1, s62")
        e("v_mov_b32 v2, 0")
        e("s_mov_b64 exec, 1")
        e("s_waitcnt lgkmcnt(0) vmcnt(0)")
        e("L_spinA:")
        e("s_sleep 4")
        e("s_memrealtime s[62:63]")
        e("s_waitcnt lgkmcnt(0)")
        e("s_sub_u32 s62, s62, s60")
        e("s_cmp_lt_u32 s62, 2000")
        e("s_cbranch_scc1 L_spinA")
        e("buffer_atomic_umax v1, v2, %s, 0 offen sc1" % srd(sQ))
        e("L_spin0:")
        e("s_sleep 4")
        e("s_memrealtime s[62:63]")
        e("s_waitcnt lgkmcnt(0)")
        e("s_sub_u32 s62, s62, s60")
        e("s_cmp_lt_u32 s62, 4500")
        e("s_cbranch_scc1 L_spin0")
        e("buffer_load_dword v1, v2, %s, 0 offen sc0 sc1" % srd(sQ))
        e("s_waitcnt vmcnt(0)")
        e("v_readfirstlane_b32 s62, v1")
        e("s_nop 3")
        e("s_not_b32 s62, s62")
        if opts["leak"] == "skew":
            e("s_sub_u32 s63, s60, s62")
            e("s_mov_b32 s60, s62")
            e("s_lshl_b32 s62, s63, 4")
            e("s_getreg_b32 s63, hwreg(HW_REG_XCC_ID)")
            e("s_and_b32 s63, s63, 7")
            e("s_bitcmp1_b32 %d, s63" % opts["lmask"])
            e("s_cselect_b32 s62, s62, 0")
            e("s_cmp_eq_u32 s%d, 0" % sWave)
            e("s_cselect_b32 s62, s62, 0")
        else:
            e("s_mov_b32 s60, s62")
            e("s_sub_u32 s62, s64, s62")
            e("s_lshl_b32 s62, s62, 2")
        e("s_min_u32 s62, s62, 20000")
        e("s_add_u32 s%d, s62, %d" % (sLeak, opts["spin"]))
    elif opts["leak"]:
        if opts["leak"] == "fin":
            e("s_waitcnt vmcnt(0)")
            leak("fin")
        e("s_sub_u32 s62, s64, s60")
        e("s_lshl_b32 s62, s62, 2")
        e("s_add_u32 s%d, s62, %d" % (sLeak, opts["spin"]))
    else:
        e("s_mov_b32 s%d, %d" % (sLeak, opts["spin"]))
    e("L_spin:")
    e("s_sleep 4")
    e("s_memrealtime s[62:63]")
    e("s_waitcnt lgkmcnt(0)")
    e("s_sub_u32 s62, s62, s60")
    e("s_cmp_lt_u32 s62, s%d" % sLeak)
    e("s_cbranch_scc1 L_spin")
e("L_end:")
e("s_endpgm")

hdr = """; Sliding-window (w=32) attention, B=1 H=32 S=2048 D=192, bf16.  Generated by gen11.py (hand-written generator).
; kernarg: q, k, v, out, debug, ws
; One workgroup per 256 query rows.  Wave 0 streams 16-row blocks into LDS by LDS-DMA (all K, all Q, all V);
; waves 1..4 each take every 4th 16-query task (S^T = K Q^T, softmax, O^T = V^T P^T with 16x16 MFMAs).
; Hand-off inside the workgroup through LDS counters; outputs stay in registers until the loads are done.
; @launch grid=(256,1,1) block=(%d,1,1) lds=%d
.amdgcn_target "amdgcn-amd-amdhsa--gfx950"
.text
.globl %s_kernel
.p2align %d
.p2align 8
.type %s_kernel,@function
%s_kernel:
""" % (64 * NW, LDS, NAME, opts["align"], NAME, NAME)

ftr = """
.section .rodata,"a"
.p2align 6
.amdhsa_kernel %s_kernel
  .amdhsa_next_free_vgpr %d
  .amdhsa_next_free_sgpr 80
  .amdhsa_accum_offset %d
  .amdhsa_group_segment_fixed_size 0
  .amdhsa_kernarg_size 48
  .amdhsa_user_sgpr_count 2
  .amdhsa_user_sgpr_kernarg_segment_ptr 1
  .amdhsa_system_sgpr_workgroup_id_x 1
.end_amdhsa_kernel
""" % (NAME, NVGPR, NVGPR)

open(sys.argv[1], "w").write(hdr + "\n".join(L) + ftr)
```

```python
import sys
import struct

NAME = "standalone__sliding_local_fixed_window__prompt"

opts = dict(
    ld="nt",
    st="sc1",
    xcdmap=1,
    mimic=1,
    w=21,
    gran=3,
    pre=4,
    open=2,
    srel=24,
    dyn=6,
    w2=36,
    sync=0,
    wslow=15,
    dead=0,
    sblk=18,
    srd=8,
    late0=1,
    nrep=16,
    nr=0,
    rvm=6,
    srel2=-1,
    emask=0x0f,
    ploop=1,
    align=12,
    near=1,
    dyn2=0,
    dry=1,
    boost=0,
    blen=5,
    bst=16,
    sleep=1,
    prio=3,
    stamp=0,
    spin=0,
    spat=0x33441100,
    lmask=0xff,
    skew=0,
    leak="",
)
for a in sys.argv[2:]:
    k, v = a.split("=")
    assert k in opts, k
    opts[k] = v if isinstance(opts[k], str) else int(v, 0)

LD = (" " + opts["ld"].replace("+", " ")) if opts["ld"] else ""
ST = (" " + opts["st"].replace("+", " ")) if opts["st"] else ""
NC = 4

BLK = 6144
KV = 0
QRING = 18 * BLK
FLAG = 26 * BLK
DONE = FLAG + 256
NW = NC + 3
LDS = FLAG + 256 * (NW + 1)
NBYTES = 32 * 2048 * 384

L = []


def e(s=""):
    L.append("    " + s if s and not s.endswith(":") else s)


def f32hex(x):
    return "0x%08x" % struct.unpack("<I", struct.pack("<f", x))[0]


sQ, sK, sV, sO = 12, 16, 20, 24
sWave = 28
sStepB = 29
sKV0 = 30
sQ0 = 31
sMinOff = 32
sChunk = 33
sI = 34
sF = 35
sM = 36
sScale = 44
sLog2e = 45
sT0, sT1, sT2, sT3, sT4 = 46, 47, 48, 49, 50
sHi = 52
sNeed = 53
sOff = 54
sLds = 55
sInit0, sInit1 = 56, 57
sStampIdx = 58
sLeak = 59

vOff = 1
vLane = 7
vAK = 8
vAQ = 10
vAV = 12
vW = 16
vR = 20
vPM = 21
vFlagA = 25
vDoneA = 26
vF = 27
vCnt = 28
vP = 30
vVb = 56
vVa = 80
vOp = vVa
vAcc = 112
vHold = 160
vQ = 56
vK = 80
vS = 128
vX = 140
vT = 148
vStamp = 224
NVGPR = 232


def srd(s):
    return "s[%d:%d]" % (s, s + 3)


def vr(a, n):
    return "v[%d:%d]" % (a, a + n - 1) if n > 1 else "v%d" % a


def stamp(always=False, key=False):
    if opts["stamp"] == 1 or (opts["stamp"] and always) or (opts["stamp"] >= 3 and key):
        e("s_memrealtime s[62:63]")
        e("s_mov_b32 m0, s%d" % sStampIdx)
        e("s_waitcnt lgkmcnt(0)")
        e("v_writelane_b32 v%d, s62, m0" % vStamp)
        e("s_add_u32 s%d, s%d, 1" % (sStampIdx, sStampIdx))


def leak(name):
    if opts["leak"] != name:
        return
    e("s_waitcnt lgkmcnt(0)")
    e("s_memrealtime s[64:65]")
    e("s_waitcnt lgkmcnt(0)")


def gfun(r):
    return ((((r >> 2) ^ (r >> 3)) & 1) << 2) | (r & 2) | ((r >> 3) & 1)


def g_of(vdst, vrow, vtmp):
    e("v_lshrrev_b32 v%d, 1, v%d" % (vtmp, vrow))
    e("v_xor_b32 v%d, v%d, v%d" % (vtmp, vtmp, vrow))
    e("v_and_b32 v%d, 4, v%d" % (vtmp, vtmp))
    e("v_and_or_b32 v%d, v%d, 2, v%d" % (vtmp, vrow, vtmp))
    e("v_bfe_u32 v%d, v%d, 3, 1" % (vdst, vrow))
    e("v_or_b32 v%d, v%d, v%d" % (vdst, vdst, vtmp))
    e("v_lshlrev_b32 v%d, 4, v%d" % (vdst, vdst))


def dma_block(s_srd, s_off, s_lds, lds, before=None, after=None):
    setm0 = (lambda x: e("s_mov_b32 m0, %d" % x)) if s_lds is None else (lambda x: e("s_add_u32 m0, s%d, %d" % (s_lds, x)))
    for j in range(6):
        if j % 3 == 0:
            setm0(lds + 1024 * j)
        did = before(j) if before else False
        if j % 3 == 0 and not did:
            e("s_nop 0")
        o = " offset:%d" % ((j % 3) * 1024) if j % 3 else ""
        e("buffer_load_dwordx4 v%d, %s, s%d offen%s%s lds" % (vOff + j, srd(s_srd), s_off, o, LD))
        if after:
            after(j)


def pub(cnt):
    if cnt:
        e("v_add_u32 v%d, %d, v%d" % (vCnt, cnt, vCnt))
        e("ds_write_b32 v%d, v%d" % (vFlagA, vCnt))


npoll = [0]


def poll():
    n = npoll[0]
    npoll[0] += 1
    e("s_cmp_ge_u32 s%d, s%d" % (sF, sNeed))
    e("s_cbranch_scc1 L_go%d" % n)
    e("L_poll%d:" % n)
    e("ds_read_b32 v%d, v%d" % (vF, vFlagA))
    e("s_waitcnt lgkmcnt(0)")
    e("v_readfirstlane_b32 s%d, v%d" % (sF, vF))
    e("s_nop 0")
    e("s_cmp_ge_u32 s%d, s%d" % (sF, sNeed))
    e("s_cbranch_scc1 L_go%d" % n)
    if opts["sleep"]:
        e("s_sleep %d" % opts["sleep"])
    e("s_branch L_poll%d" % n)
    e("L_go%d:" % n)


def flag_init(loader=False):
    va = vFlagA if loader else vDoneA
    e("v_lshlrev_b32 v%d, 2, v0" % va)
    e("v_add_u32 v%d, %d, v%d" % (va, FLAG, va))
    if loader:
        e("v_mov_b32 v%d, 0" % vF)
    else:
        e("s_sub_u32 s%d, s%d, 4" % (sT0, sWave))
        e("s_min_i32 s%d, s%d, 0" % (sT0, sT0))
        e("v_mov_b32 v%d, s%d" % (vF, sT0))
    e("ds_write_b32 v%d, v%d" % (va, vF))


e("s_cmp_ge_u32 s2, 256")
e("s_cbranch_scc1 L_end")
if opts["spin"] or opts["stamp"]:
    e("s_memrealtime s[60:61]")
if opts["skew"]:
    e("s_memrealtime s[64:65]")
    e("s_getreg_b32 s62, hwreg(HW_REG_XCC_ID)")
    e("s_and_b32 s62, s62, 7")
    e("s_lshl_b32 s62, s62, 2")
    e("s_lshr_b32 s62, 0x%x, s62" % opts["spat"])
    e("s_and_b32 s62, s62, 15")
    e("s_mul_i32 s59, s62, %d" % opts["skew"])
    e("L_skew:")
    e("s_memrealtime s[62:63]")
    e("s_waitcnt lgkmcnt(0)")
    e("s_sub_u32 s62, s62, s64")
    e("s_cmp_lt_u32 s62, s59")
    e("s_cbranch_scc1 L_skew")
if opts["sync"] and not opts["late0"]:
    e("s_memrealtime s[80:81]")
e("s_load_dwordx2 s[%d:%d], s[0:1], 8" % (sK, sK + 1))
e("s_load_dwordx2 s[%d:%d], s[0:1], 0" % (sQ, sQ + 1))
e("s_load_dwordx2 s[%d:%d], s[0:1], 16" % (sV, sV + 1))
e("s_load_dwordx2 s[%d:%d], s[0:1], 24" % (sO, sO + 1))
e("v_and_b32 v%d, 63, v0" % vLane)
e("v_readfirstlane_b32 s%d, v0" % sWave)
e("v_lshrrev_b32 v65, 1, v%d" % vLane)
e("v_and_b32 v65, 28, v65")
e("s_movk_i32 s%d, 0x50" % sT4)
e("v_mov_b32 v67, 3072")
for j in range(3):
    tab = sum(gfun((8 * j + l) // 3) << (4 * l) for l in range(8))
    assert all(gfun((8 * (j + 3) + l) // 3) == gfun((8 * j + l) // 3) ^ 5 for l in range(8))
    e("s_mov_b32 s%d, 0x%x" % (sT3, tab))
    e("v_bfe_u32 v66, s%d, v65, 3" % sT3)
    e("v_xor_b32 v66, v66, v%d" % vLane)
    e("v_lshlrev_b32 v%d, 4, v66" % (vOff + j))
    e("v_xad_u32 v%d, v%d, s%d, v67" % (vOff + 3 + j, vOff + j, sT4))
e("s_mov_b32 s%d, %d" % (sK + 2, NBYTES))
e("s_mov_b32 s%d, 0x20000" % (sK + 3))
for s in (sQ, sV, sO):
    e("s_mov_b32 s%d, s%d" % (s + 2, sK + 2))
    e("s_mov_b32 s%d, s%d" % (s + 3, sK + 3))
e("s_and_b32 s%d, s2, 7" % sT1)
e("s_lshr_b32 s%d, s2, 6" % sT2)
if opts["xcdmap"] == 1:
    e("s_lshl3_add_u32 s%d, s%d, s%d" % (sT1, sT2, sT1))
else:
    e("s_lshl2_add_u32 s%d, s%d, s%d" % (sT1, sT1, sT2))
e("s_bfe_u32 s%d, s2, 0x30003" % sChunk)
e("s_mul_i32 s%d, s%d, %d" % (sMinOff, sT1, 2048 * 384))
e("s_lshl_b32 s%d, s%d, 4" % (sT2, sChunk))
e("s_bitcmp1_b32 s%d, 0" % sChunk)
e("s_cselect_b32 s%d, -1, 1" % sStepB)
e("s_cselect_b32 s%d, 15, -2" % sKV0)
e("s_cselect_b32 s%d, 15, 0" % sQ0)
e("s_add_i32 s%d, s%d, s%d" % (sKV0, sKV0, sT2))
e("s_add_i32 s%d, s%d, s%d" % (sQ0, sQ0, sT2))
e("s_mulk_i32 s%d, %d" % (sStepB, BLK))
e("s_mulk_i32 s%d, %d" % (sKV0, BLK))
e("s_mulk_i32 s%d, %d" % (sQ0, BLK))
e("s_add_i32 s%d, s%d, s%d" % (sKV0, sKV0, sMinOff))
e("s_add_i32 s%d, s%d, s%d" % (sQ0, sQ0, sMinOff))
e("s_lshr_b32 s%d, s%d, 6" % (sWave, sWave))
if opts["stamp"]:
    e("s_waitcnt lgkmcnt(0)")
    e("v_mov_b32 v%d, 0" % vStamp)
    e("v_writelane_b32 v%d, s60, 0" % vStamp)
    e("s_mov_b32 s%d, 1" % sStampIdx)
    stamp()
if opts["leak"]:
    e("s_waitcnt lgkmcnt(0)")
    e("s_mov_b32 s64, s60")
e("s_cmp_lg_u32 s%d, 0" % sWave)
if opts["near"]:
    e("s_cbranch_scc0 L_loader")
    flag_init()
    e("s_waitcnt lgkmcnt(0)")
    e("s_barrier")
    if opts["sync"] and opts["late0"]:
        e("s_memrealtime s[80:81]")
        e("s_waitcnt lgkmcnt(0)")
    e("s_branch L_compute")
    e("L_loader:")
else:
    e("s_cbranch_scc1 L_compute")

W, G, PRE, DYN, W2 = opts["w"], opts["gran"], opts["pre"], opts["dyn"], opts["w2"]
assert 6 % G == 0 and 2 <= PRE <= 6 and W2 <= 36 and W2 + 6 * opts["open"] <= 60
sW = 72
sMaskP, sEncP, sIss, sTk = 70, 71, 69, 68


def enc(w):
    return (w & 15) | ((w >> 4) << 22)


if opts["prio"]:
    e("s_setprio %d" % opts["prio"])
sV0, sV2 = 66, 67
e("s_max_i32 s%d, s%d, s%d" % (sV0, sKV0, sMinOff))
e("s_add_i32 s%d, s%d, s%d" % (sT1, sV0, sStepB))
e("s_add_i32 s%d, s%d, s%d" % (sOff, sKV0, sStepB))
e("s_add_i32 s%d, s%d, s%d" % (sV2, sOff, sStepB))
if opts["ploop"]:
    e("s_mov_b32 s%d, s%d" % (sOff, sV0))
    e("s_mov_b32 s%d, 0" % sLds)
    e("s_waitcnt lgkmcnt(0)")
    e("L_pre:")
    dma_block(sK, sOff, sLds, KV)
    e("s_add_i32 s%d, s%d, s%d" % (sOff, sOff, sStepB))
    e("s_addk_i32 s%d, %d" % (sLds, BLK))
    e("s_cmpk_eq_u32 s%d, %d" % (sLds, 2 * BLK))
    e("s_cselect_b32 s%d, s%d, s%d" % (sOff, sV2, sOff))
    e("s_cmpk_lt_u32 s%d, %d" % (sLds, PRE * BLK))
    e("s_cbranch_scc1 L_pre")
else:
    e("s_waitcnt lgkmcnt(0)")
    dma_block(sK, sV0, None, KV)
    dma_block(sK, sT1, None, KV + BLK)
    for n in range(2, PRE):
        e("s_add_i32 s%d, s%d, s%d" % (sOff, sOff, sStepB))
        dma_block(sK, sOff, None, KV + n * BLK)
    e("s_add_i32 s%d, s%d, s%d" % (sOff, sOff, sStepB))
flag_init(True)
if opts["sync"]:
    e("ds_write_b32 v%d, v%d offset:%d" % (vFlagA, vF, 7 * 256))
    e("s_mov_b32 s79, 0")
e("v_and_b32 v%d, 3, v%d" % (vDoneA, vLane))
e("v_lshlrev_b32 v%d, 8, v%d" % (vDoneA, vDoneA))
e("v_add_u32 v%d, %d, v%d" % (vDoneA, DONE, vDoneA))
e("s_mov_b32 s%d, 0xc0000f" % sMaskP)
e("s_mov_b32 s%d, 0x%x" % (sEncP, enc(W - G)))
e("s_mov_b32 s%d, %d" % (sIss, 6 * PRE + 3))
e("s_mov_b32 s%d, %d" % (sTk, PRE - 25 - 3))
e("s_mov_b32 s%d, s%d" % (sT0, sOff))
e("s_mov_b32 s%d, %d" % (sLds, PRE * BLK))
e("s_mov_b32 s%d, %d" % (sI, PRE))
e("s_mov_b64 s[%d:%d], s[%d:%d]" % (sW, sW + 1, sK, sK + 1))
e("s_mov_b32 s%d, s%d" % (sW + 2, sK + 2))
e("s_mov_b32 s%d, s%d" % (sW + 3, sK + 3))
events = {PRE + 1, 18, 26, 34, 36, 52} | ({52 - opts["open"]} if opts["open"] else set())
BON, BOFF = (opts["bst"], 34), (opts["bst"] + opts["blen"], 34 + opts["blen"])
if opts["boost"]:
    events |= set(BON) | set(BOFF)
if opts["sync"]:
    events |= {opts["sblk"]}
evm = sum(1 << x for x in events)
sEv = 76
e("s_mov_b32 s%d, 0x%x" % (sEv, evm & 0xffffffff))
e("s_mov_b32 s%d, 0x%x" % (sEv + 1, evm >> 32))
e("s_waitcnt lgkmcnt(0)")
if opts["stamp"] == 4:
    e("s_mov_b32 s78, 0")
e("s_barrier")
e("L_ld:")
assert G == 3


def look():
    e("s_getreg_b32 s%d, hwreg(HW_REG_IB_STS)" % sT3)
    e("s_and_b32 s%d, s%d, s%d" % (sT3, sT3, sMaskP))
    e("s_cmp_le_u32 s%d, s%d" % (sT3, sEncP))


def before(j):
    if j % G:
        return False
    look()
    e("s_cbranch_scc0 L_dw%d" % j)
    e("L_dk%d:" % j)
    return True


def after(j):
    if j == 2:
        e("ds_read_b32 v%d, v%d" % (vF, vDoneA))
    if j == 5:
        e("s_lshr_b32 s%d, s%d, 18" % (sT4, sT3))
        e("s_add_u32 s%d, s%d, s%d" % (sT3, sT3, sT4))
        e("s_and_b32 s%d, s%d, 63" % (sT3, sT3))
        e("s_sub_u32 s%d, s%d, s%d" % (sT3, sIss, sT3))
        e("v_mov_b32 v%d, s%d" % (vCnt, sT3))
        e("ds_write_b32 v%d, v%d" % (vFlagA, vCnt))


def slow_paths():
    for j in (0, 3):
        e("L_dw%d:" % j)
        for r in range((DYN if j == 0 or not opts["dyn2"] else opts["dyn2"]) - 1):
            look()
            e("s_cbranch_scc1 L_dk%d" % j)
        e("s_waitcnt vmcnt(%d)" % (W2 - G))
        e("s_branch L_dk%d" % j)
    e("L_free_again:")
    if opts["stamp"] == 4:
        e("s_add_u32 s78, s78, 1")
    e("ds_read_b32 v%d, v%d" % (vF, vDoneA))
    e("s_waitcnt lgkmcnt(0)")
    e("v_cmp_gt_i32 vcc, s%d, v%d" % (sTk, vF))
    e("s_cbranch_vccnz L_free_again")
    e("s_branch L_free_ok")


dma_block(sW, sT0, sLds, 0, before, after)
e("s_add_u32 s%d, s%d, 6" % (sIss, sIss))
e("s_add_u32 s%d, s%d, 1" % (sI, sI))
e("s_add_i32 s%d, s%d, s%d" % (sT0, sT0, sStepB))
e("s_add_u32 s%d, s%d, %d" % (sLds, sLds, BLK))
e("s_waitcnt lgkmcnt(1)")
e("v_cmp_ge_i32 vcc, s%d, v%d" % (sTk, vF))
e("s_add_i32 s%d, s%d, 1" % (sTk, sTk))
e("s_cbranch_vccnz L_free_again")
e("L_free_ok:")
e("s_bitcmp1_b64 s[%d:%d], s%d" % (sEv, sEv + 1, sI))
e("s_cbranch_scc0 L_ld")
if opts["ploop"]:
    e("s_branch L_event")
    slow_paths()
    e("L_event:")
if opts["stamp"] == 4:
    stamp(True)
e("s_cmp_eq_u32 s%d, 18" % sI)
e("s_cselect_b64 s[%d:%d], s[%d:%d], s[%d:%d]" % (sW, sW + 1, sQ, sQ + 1, sW, sW + 1))
e("s_cselect_b32 s%d, s%d, s%d" % (sT0, sQ0, sT0))
e("s_cmp_eq_u32 s%d, 26" % sI)
e("s_cselect_b32 s%d, %d, s%d" % (sLds, QRING, sLds))
e("s_cmp_eq_u32 s%d, 34" % sI)
e("s_cselect_b64 s[%d:%d], s[%d:%d], s[%d:%d]" % (sW, sW + 1, sV, sV + 1, sW, sW + 1))
e("s_cselect_b32 s%d, s%d, s%d" % (sT0, sV0, sT0))
e("s_cselect_b32 s%d, 0, s%d" % (sLds, sLds))
e("s_cselect_b32 s%d, -2, s%d" % (sTk, sTk))
e("s_cmp_eq_u32 s%d, 36" % sI)
e("s_cselect_b32 s%d, s%d, s%d" % (sT0, sV2, sT0))
if opts["sync"]:
    e("s_cmp_lg_u32 s%d, %d" % (sI, opts["sblk"]))
    e("s_cbranch_scc1 L_ev2")
    e("ds_read_b32 v%d, v%d offset:%d" % (vF, vFlagA, 7 * 256))
    e("s_mov_b32 s%d, 0x%x" % (sEncP, enc(opts["wslow"] - G)))
    e("s_waitcnt lgkmcnt(0)")
    e("v_readfirstlane_b32 s79, v%d" % vF)
    e("s_nop 0")
    e("s_add_u32 s79, s79, s%d" % sI)
    e("s_bitset1_b64 s[%d:%d], s79" % (sEv, sEv + 1))
    e("L_ev2:")
    e("s_cmp_eq_u32 s%d, s79" % sI)
    e("s_cselect_b32 s%d, 0x%x, s%d" % (sEncP, enc(W - G), sEncP))
if opts["boost"]:
    for x in BON:
        e("s_cmp_eq_u32 s%d, %d" % (sI, x))
        e("s_cselect_b32 s%d, 0x%x, s%d" % (sEncP, enc(W + opts["boost"] - G), sEncP))
    for x in BOFF:
        e("s_cmp_eq_u32 s%d, %d" % (sI, x))
        e("s_cselect_b32 s%d, 0x%x, s%d" % (sEncP, enc(W - G), sEncP))
if opts["open"]:
    e("s_cmp_eq_u32 s%d, %d" % (sI, 52 - opts["open"]))
    e("s_cselect_b32 s%d, s%d, s%d" % (sEncP, sMaskP, sEncP))
e("s_cmp_lt_u32 s%d, 52" % sI)
e("s_cbranch_scc1 L_ld")
stamp(key=True)
leak("ldiss")
for k, rem in enumerate(range(W2 + 6 * opts["open"], -1, -3)):
    vc = (vCnt, vF)[k & 1]
    e("v_mov_b32 v%d, %d" % (vc, 312 - rem))
    e("s_waitcnt vmcnt(%d)" % rem)
    if rem % 6 == 0:
        e("ds_write_b32 v%d, v%d" % (vFlagA, vc))
    if rem in (opts["srel"], opts["srel2"]):
        e("ds_write_b32 v%d, v%d offset:%d" % (vFlagA, vc, 5 * 256))
stamp(key=True)
if opts["stamp"] == 4:
    e("v_writelane_b32 v%d, s78, 63" % vStamp)
leak("lddone")
e("s_branch L_fin")
if not opts["ploop"]:
    slow_paths()

vLo = 32
e("L_storer:")
e("v_and_b32 v%d, 3, v%d" % (vDoneA, vLane))
e("v_lshlrev_b32 v%d, 8, v%d" % (vDoneA, vDoneA))
e("v_add_u32 v%d, %d, v%d" % (vDoneA, DONE, vDoneA))
e("v_lshlrev_b32 v%d, 4, v%d" % (vR, vLane))
e("v_add_u32 v%d, %d, v%d" % (vR, QRING, vR))
e("v_lshlrev_b32 v%d, 2, v%d" % (vAK, vLane))
e("v_add_u32 v%d, %d, v%d" % (vAK, FLAG + 6 * 256, vAK))
if opts["srel2"] >= 0:
    e("s_getreg_b32 s%d, hwreg(HW_REG_XCC_ID)" % sNeed)
    e("s_and_b32 s%d, s%d, 7" % (sNeed, sNeed))
    e("s_bitcmp1_b32 %d, s%d" % (opts["emask"], sNeed))
    e("s_cselect_b32 s%d, %d, %d" % (sNeed, opts["srel2"], opts["srel"]))
    e("s_sub_u32 s%d, 312, s%d" % (sNeed, sNeed))
else:
    e("s_movk_i32 s%d, %d" % (sNeed, 312 - opts["srel"]))
e("v_mov_b32 v%d, %d" % (vFlagA, FLAG + 5 * 256))
assert opts["srel"] % 3 == 0


def fetch(tag, s_lvl, vb, base):
    e("L_ofree%s:" % tag)
    e("s_sleep 1")
    e("ds_read_b32 v%d, v%d" % (vF, vDoneA))
    e("s_waitcnt lgkmcnt(0)")
    e("v_cmp_gt_i32 vcc, %s, v%d" % (s_lvl, vF))
    e("s_cbranch_vccnz L_ofree%s" % tag)
    for j in range(24):
        if j == 12:
            e("s_waitcnt lgkmcnt(0)")
        e("ds_read_b128 %s, v%d offset:%d" % (vr(vb + 4 * j, 4), vR, base + j * 1024))
    e("s_waitcnt lgkmcnt(0)")


def ramp_wait(tag):
    e("L_ramp%s:" % tag)
    e("ds_read_b32 v%d, v%d offset:%d" % (vF, vFlagA, (1 if tag == "b" else 6) * 256))
    e("s_waitcnt lgkmcnt(0)")
    e("v_cmp_gt_i32 vcc, 3, v%d" % vF)
    e("s_cbranch_vccnz L_ramp%s" % tag)


def store4(vb, ramp=False):
    for t in range(4):
        for j in range(6):
            n = 6 * t + j
            if ramp and opts["rvm"] <= n <= opts["nr"]:
                e("s_waitcnt vmcnt(%d)" % (opts["rvm"] - 1))
            if ramp and n == opts["nr"]:
                e("v_mov_b32 v%d, 3" % vAQ)
                e("ds_write_b32 v%d, v%d" % (vAK, vAQ))
            o = " offset:%d" % ((j % 3) * 1024) if j % 3 else ""
            e("buffer_store_dwordx4 %s, v%d, %s, s%d offen%s%s" % (vr(vb + 24 * t + 4 * j, 4), vOff + j, srd(sO), sQ0, o, ST))
        e("s_add_i32 s%d, s%d, s%d" % (sQ0, sQ0, sStepB))


if opts["sync"]:
    e("s_cmp_eq_u32 s%d, 5" % sWave)
    e("s_cbranch_scc1 L_nosync")
    e("s_load_dwordx2 s[%d:%d], s[0:1], 32" % (sK, sK + 1))
    e("v_mov_b32 v34, %d" % FLAG)
    e("s_waitcnt lgkmcnt(0)")
    e("s_cmp_ge_u32 s2, %d" % opts["nrep"])
    e("s_cbranch_scc1 L_norep")
    e("s_mov_b32 s82, s80")
    e("s_atomic_umax s82, s[%d:%d], 0 glc" % (sK, sK + 1))
    e("L_norep:")
    e("s_sleep 8")
    e("ds_read_b32 v%d, v34" % vF)
    e("s_waitcnt lgkmcnt(0)")
    e("v_cmp_gt_u32 vcc, %d, v%d" % (6 * opts["srd"], vF))
    e("s_cbranch_vccnz L_norep")
    e("s_load_dword s82, s[%d:%d], 0" % (sK, sK + 1))
    e("s_waitcnt lgkmcnt(0)")
    e("s_sub_u32 s82, s82, s80")
    if opts["dead"]:
        e("s_sub_u32 s82, s82, %d" % opts["dead"])
    e("s_max_i32 s82, s82, 0")
    e("s_min_u32 s82, s82, 200")
    if opts["stamp"]:
        e("v_writelane_b32 v%d, s82, 63" % vStamp)
    e("s_mul_i32 s82, s82, %d" % opts["sync"])
    e("s_add_u32 s82, s82, 8")
    e("s_lshr_b32 s82, s82, 4")
    e("s_min_u32 s82, s82, %d" % (48 - opts["sblk"]))
    e("v_mov_b32 v35, s82")
    e("ds_write_b32 v34, v35 offset:%d" % (7 * 256))
    e("L_nosync:")
e("s_cmp_eq_u32 s%d, 5" % sWave)
e("s_cselect_b32 s%d, 32, 34" % sT0)
e("s_cselect_b32 s%d, 0, 8" % sT1)
e("s_mul_i32 s%d, s%d, s%d" % (sT1, sT1, sStepB))
e("s_add_i32 s%d, s%d, s%d" % (sQ0, sQ0, sT1))
e("v_mov_b32 v%d, 1" % vCnt)
fetch("a", "s%d" % sT0, vLo, 0)
e("s_cmp_eq_u32 s%d, 5" % sWave)
e("s_cbranch_scc0 L_st_wait")
e("ds_write_b32 v%d, v%d" % (vAK, vCnt))
e("v_mov_b32 v%d, 2" % vAQ)
fetch("b", "33", vLo + 96, 4 * BLK)
e("ds_write_b32 v%d, v%d" % (vAK, vAQ))
if opts["nr"]:
    assert opts["nr"] < 24
    poll()
    stamp(key=True)
    store4(vLo, True)
    store4(vLo + 96)
    e("s_branch L_st_end")
    e("L_st_wait:")
    ramp_wait("b")
    stamp(key=True)
    store4(vLo)
else:
    e("L_st_wait:")
    poll()
    stamp(key=True)
    store4(vLo)
    e("s_cmp_eq_u32 s%d, 5" % sWave)
    e("s_cbranch_scc0 L_st_end")
    store4(vLo + 96)
e("L_st_end:")
stamp(key=True)
e("s_branch L_fin")

e("L_compute:")
if not opts["near"]:
    flag_init()
    e("s_waitcnt lgkmcnt(0)")
    e("s_barrier")
e("s_sub_u32 s%d, s%d, 1" % (sI, sWave))
e("s_mul_i32 s%d, s%d, %d" % (sT3, sI, BLK))
e("s_add_u32 s%d, s%d, %d" % (sT4, sT3, QRING + 4 * BLK))
e("s_mov_b32 s%d, 0" % sF)
e("v_mov_b32 v%d, %d" % (vFlagA, FLAG))
e("s_cmp_ge_u32 s%d, 5" % sWave)
e("s_cbranch_scc1 L_storer")
e("v_and_b32 v66, 15, v%d" % vLane)
e("v_lshrrev_b32 v67, 4, v%d" % vLane)
g_of(70, 66, 71)
e("v_mul_u32_u24 v68, 384, v66")
e("v_lshlrev_b32 v69, 4, v67")
e("v_xor_b32 v69, v69, v70")
e("v_add3_u32 v%d, v68, v69, s%d" % (vAK, sT3))
e("v_xor_b32 v%d, 64, v%d" % (vAK + 1, vAK))
e("v_add_u32 v%d, %d, v%d" % (vAQ, QRING, vAK))
e("v_add_u32 v%d, %d, v%d" % (vAQ + 1, QRING, vAK + 1))
e("v_lshrrev_b32 v69, 1, v67")
e("v_lshlrev_b32 v69, 4, v69")
e("v_xor_b32 v69, v69, v70")
e("v_and_b32 v71, 1, v67")
e("v_lshl_add_u32 v69, v71, 3, v69")
e("v_add3_u32 v%d, v68, v69, s%d" % (vW, sT4))
e("v_subrev_u32 v%d, %d, v%d" % (vW, 4 * BLK, vW))
for m in range(1, 4):
    e("v_xor_b32 v%d, %d, v%d" % (vW + m, 32 * m, vW))
e("v_lshlrev_b32 v69, 2, v67")
for i in range(4):
    e("v_add_u32 v71, %d, v69" % i)
    e("v_cmp_le_u32 s[%d:%d], v71, v66" % (sM + 2 * i, sM + 2 * i + 1))
e("s_ashr_i32 s%d, s%d, 31" % (sT0, sStepB))
e("s_mov_b32 s%d, s%d" % (sT1, sT0))
e("s_nop 1")
for i in range(4):
    e("s_xor_b64 s[%d:%d], s[%d:%d], s[%d:%d]" % (sM + 2 * i, sM + 2 * i + 1, sM + 2 * i, sM + 2 * i + 1, sT0, sT1))
e("s_mov_b32 s%d, 0xffff0000" % sHi)
e("v_mov_b32 v72, 0xffff")
e("v_mov_b32 v73, s%d" % sHi)
for k in range(2):
    e("v_cndmask_b32 v74, 0, v72, s[%d:%d]" % (sM + 4 * k, sM + 4 * k + 1))
    e("v_cndmask_b32 v75, 0, v73, s[%d:%d]" % (sM + 4 * k + 2, sM + 4 * k + 3))
    e("v_or_b32 v%d, v74, v75" % (vPM + k))
    e("v_not_b32 v%d, v%d" % (vPM + 2 + k, vPM + k))
e("v_lshrrev_b32 v69, 2, v%d" % vLane)
g_of(70, 69, 71)
e("v_mul_u32_u24 v68, 384, v69")
e("v_bfe_u32 v71, v%d, 1, 1" % vLane)
e("v_lshlrev_b32 v71, 4, v71")
e("v_xor_b32 v70, v70, v71")
e("v_and_b32 v71, 1, v%d" % vLane)
e("v_lshl_add_u32 v70, v71, 3, v70")
e("v_add3_u32 v%d, v68, v70, s%d" % (vAV, sT3))
for m in range(1, 4):
    e("v_xor_b32 v%d, %d, v%d" % (vAV + m, 32 * m, vAV))
e("v_lshlrev_b32 v%d, 4, v%d" % (vR, vLane))
e("v_add_u32 v%d, s%d, v%d" % (vR, sT4, vR))
if opts["dry"]:
    e("s_mov_b32 s%d, 12" % sI)
    e("s_mov_b32 s%d, -1" % sF)
    e("s_mov_b64 vcc, 0")
    e("s_mov_b64 exec, 0")
    e("s_branch L_qk")
    e("L_real:")
    e("s_mov_b64 exec, -1")
    e("s_mov_b32 s%d, 0" % sF)
    e("s_sub_u32 s%d, s%d, 1" % (sI, sWave))
e("s_cmp_eq_u32 s%d, 0" % sChunk)
e("s_cselect_b32 s%d, 0xff800000, 0" % sT2)
e("s_cmp_lt_u32 s%d, 2" % sI)
e("s_cselect_b32 s%d, s%d, 0" % (sInit0, sT2))
e("s_cmp_eq_u32 s%d, 0" % sI)
e("s_cselect_b32 s%d, s%d, 0" % (sInit1, sT2))
e("s_mov_b32 s%d, %s" % (sScale, f32hex(192 ** -0.5)))
if opts["mimic"]:
    e("s_mov_b32 s%d, %s" % (sLog2e, f32hex(1.4426950408889634)))
else:
    e("s_mov_b32 s%d, %s" % (sLog2e, f32hex(1.4426950408889634 * 192 ** -0.5)))
e("s_movk_i32 s%d, %d" % (sT3, 4 * BLK))

e("L_qk:")
for i in range(4):
    e("v_mov_b32 v%d, s%d" % (vS + i, sInit0))
    e("v_mov_b32 v%d, s%d" % (vS + 4 + i, sInit1))
e("s_mov_b32 s%d, 0" % sInit0)
e("s_mov_b32 s%d, 0" % sInit1)
for r in range(18):
    e("v_mov_b32 v%d, v%d" % (vP + r, vP + 6 + r))
e("s_add_u32 s%d, s%d, 1" % (sT1, sI))
e("v_mov_b32 v%d, s%d" % (vCnt, sT1))
e("s_add_u32 s%d, s%d, 19" % (sNeed, sI))
e("s_mul_i32 s%d, s%d, 6" % (sNeed, sNeed))
poll()
stamp()


def qk_reads(i):
    o = (i >> 1) * 128
    e("ds_read_b128 %s, v%d offset:%d" % (vr(vQ + 4 * i, 4), vAQ + (i & 1), o))
    for j in range(3):
        e("ds_read_b128 %s, v%d offset:%d" % (vr(vK + 12 * (i & 3) + 4 * j, 4), vAK + (i & 1), o + j * BLK))


for i in range(3):
    qk_reads(i)
for k in range(6):
    e("s_waitcnt lgkmcnt(%d)" % (4 * min(2, 5 - k)))
    if k == 5:
        e("ds_write_b32 v%d, v%d" % (vDoneA, vCnt))
    for j in range(3):
        c = "0" if (k == 0 and j == 2) else vr(vS + 4 * j, 4)
        e("v_mfma_f32_16x16x32_bf16 %s, %s, %s, %s" % (vr(vS + 4 * j, 4), vr(vK + 12 * (k & 3) + 4 * j, 4), vr(vQ + 4 * k, 4), c))
    if k + 3 < 6:
        qk_reads(k + 3)
e("v_add_u32 v%d, %d, v%d" % (vAK, 4 * BLK, vAK))
e("v_add_u32 v%d, %d, v%d" % (vAK + 1, 4 * BLK, vAK + 1))
e("v_add_u32 v%d, s%d, v%d" % (vAQ, sT3, vAQ))
e("v_add_u32 v%d, s%d, v%d" % (vAQ + 1, sT3, vAQ + 1))
e("s_sub_i32 s%d, 0, s%d" % (sT3, sT3))
e("s_add_u32 s%d, s%d, %d" % (sI, sI, NC))
e("s_nop 2")
for i in range(4):
    e("v_cndmask_b32 v%d, v%d, v%d, s[%d:%d]" % (vX + i, vS + i, vS + 8 + i, sM + 2 * i, sM + 2 * i + 1))
xs = [vX + i for i in range(4)] + [vS + 4 + i for i in range(4)]
ys = [vX + i for i in range(8)]
if opts["mimic"]:
    for p in range(4):
        e("v_cvt_pk_bf16_f32 v%d, v%d, v%d" % (vT + p, xs[2 * p], xs[2 * p + 1]))
    for p in range(4):
        e("v_lshlrev_b32 v%d, 16, v%d" % (ys[2 * p], vT + p))
        e("v_and_b32 v%d, s%d, v%d" % (ys[2 * p + 1], sHi, vT + p))
    for p in range(8):
        e("v_mul_f32 v%d, s%d, v%d" % (ys[p], sScale, ys[p]))
    for p in range(4):
        e("v_cvt_pk_bf16_f32 v%d, v%d, v%d" % (vT + p, ys[2 * p], ys[2 * p + 1]))
    for p in range(4):
        e("v_lshlrev_b32 v%d, 16, v%d" % (ys[2 * p], vT + p))
        e("v_and_b32 v%d, s%d, v%d" % (ys[2 * p + 1], sHi, vT + p))
else:
    ys = xs
m, m2 = vT + 4, vT + 5
e("v_max3_f32 v%d, v%d, v%d, v%d" % (m, ys[0], ys[1], ys[2]))
e("v_max3_f32 v%d, v%d, v%d, v%d" % (m2, ys[3], ys[4], ys[5]))
e("v_max3_f32 v%d, v%d, v%d, v%d" % (m, m, ys[6], ys[7]))
e("v_max_f32 v%d, v%d, v%d" % (m, m, m2))
e("v_mov_b32 v%d, v%d" % (m2, m))
e("s_nop 1")
e("v_permlane16_swap_b32 v%d, v%d" % (m, m2))
e("s_nop 0")
e("v_max_f32 v%d, v%d, v%d" % (m, m, m2))
e("v_mov_b32 v%d, v%d" % (m2, m))
e("s_nop 1")
e("v_permlane32_swap_b32 v%d, v%d" % (m, m2))
e("s_nop 0")
e("v_max_f32 v%d, v%d, v%d" % (m, m, m2))
e("v_mul_f32 v%d, s%d, v%d" % (m, sLog2e, m))
es = [vX + i for i in range(8)]
for p in range(8):
    e("v_fma_f32 v%d, v%d, s%d, -v%d" % (es[p], ys[p], sLog2e, m))
for p in range(8):
    e("v_exp_f32 v%d, v%d" % (es[p], es[p]))
sm, sm2 = vT + 6, vT + 7
e("v_add_f32 v%d, v%d, v%d" % (sm, es[0], es[1]))
e("v_add_f32 v%d, v%d, v%d" % (sm2, es[2], es[3]))
e("v_add_f32 v%d, v%d, v%d" % (sm, sm, es[4]))
e("v_add_f32 v%d, v%d, v%d" % (sm2, sm2, es[5]))
e("v_add_f32 v%d, v%d, v%d" % (sm, sm, es[6]))
e("v_add_f32 v%d, v%d, v%d" % (sm2, sm2, es[7]))
e("v_add_f32 v%d, v%d, v%d" % (sm, sm, sm2))
e("v_mov_b32 v%d, v%d" % (sm2, sm))
e("s_nop 1")
e("v_permlane16_swap_b32 v%d, v%d" % (sm, sm2))
e("s_nop 0")
e("v_add_f32 v%d, v%d, v%d" % (sm, sm, sm2))
e("v_mov_b32 v%d, v%d" % (sm2, sm))
e("s_nop 1")
e("v_permlane32_swap_b32 v%d, v%d" % (sm, sm2))
e("s_nop 0")
e("v_add_f32 v%d, v%d, v%d" % (sm, sm, sm2))
e("v_rcp_f32 v%d, v%d" % (sm, sm))
e("s_nop 0")
for p in range(8):
    e("v_mul_f32 v%d, v%d, v%d" % (es[p], es[p], sm))
PN = vP + 18
e("v_cvt_pk_bf16_f32 v%d, v%d, v%d" % (vT, es[0], es[1]))
e("v_cvt_pk_bf16_f32 v%d, v%d, v%d" % (vT + 1, es[2], es[3]))
e("v_cvt_pk_bf16_f32 v%d, v%d, v%d" % (PN + 2, es[4], es[5]))
e("v_cvt_pk_bf16_f32 v%d, v%d, v%d" % (PN + 3, es[6], es[7]))
e("v_and_b32 v%d, v%d, v%d" % (PN, vT, vPM + 2))
e("v_and_b32 v%d, v%d, v%d" % (PN + 1, vT + 1, vPM + 3))
e("v_and_b32 v%d, v%d, v%d" % (PN + 4, vT, vPM))
e("v_and_b32 v%d, v%d, v%d" % (PN + 5, vT + 1, vPM + 1))
stamp()
e("s_cmp_lt_u32 s%d, 16" % sI)
e("s_cbranch_scc1 L_qk")

sSt, sWs = 66, 67
e("s_sub_u32 s%d, s%d, 4" % (sSt, sI))
e("s_sub_u32 s%d, s%d, 16" % (sI, sI))
e("s_mul_i32 s%d, s%d, s%d" % (sSt, sSt, sStepB))
e("s_add_i32 s%d, s%d, s%d" % (sSt, sSt, sQ0))
e("s_movk_i32 s%d, %d" % (sWs, 4 * BLK))
e("v_mov_b32 v%d, 32" % vCnt)
e("L_pv:")
e("s_add_u32 s%d, s%d, 36" % (sNeed, sI))
e("s_mul_i32 s%d, s%d, 6" % (sNeed, sNeed))
poll()
stamp()


def va_reads(t):
    for j in range(2):
        e("ds_read_b64_tr_b16 %s, v%d offset:%d" % (vr(vVa + 4 * (t & 7) + 2 * j, 2), vAV + (t & 3), (t >> 2) * 128 + j * BLK))


for t in range(6):
    va_reads(t)
for t in range(12):
    e("s_waitcnt lgkmcnt(%d)" % (2 * min(5, 11 - t)))
    e("v_mfma_f32_16x16x32_bf16 %s, %s, %s, 0" % (vr(vAcc + 4 * t, 4), vr(vVa + 4 * (t & 7), 4), vr(vP, 4)))
    if t + 6 < 12:
        va_reads(t + 6)
e("s_add_u32 s%d, s%d, 6" % (sNeed, sNeed))
e("s_lshr_b32 s%d, s%d, 2" % (sT0, sI))
e("s_sub_i32 s%d, s%d, 1" % (sT0, sT0))
e("L_copied:")
e("ds_read_b32 v%d, v%d offset:%d" % (vF, vFlagA, 6 * 256))
e("s_waitcnt lgkmcnt(0)")
e("v_cmp_gt_i32 vcc, s%d, v%d" % (sT0, vF))
e("s_cbranch_vccnz L_copied")
poll()
stamp()
for t in range(12):
    e("ds_read_b64_tr_b16 %s, v%d offset:%d" % (vr(vVb + 2 * t, 2), vAV + (t & 3), (t >> 2) * 128 + 2 * BLK))


def o_out(t):
    e("v_cvt_pk_bf16_f32 v%d, v%d, v%d" % (vOp + 2 * t, vAcc + 4 * t, vAcc + 4 * t + 1))
    e("v_cvt_pk_bf16_f32 v%d, v%d, v%d" % (vOp + 2 * t + 1, vAcc + 4 * t + 2, vAcc + 4 * t + 3))
    e("ds_write_b64 v%d, %s offset:%d" % (vW + (t & 3), vr(vOp + 2 * t, 2), (t >> 2) * 128))


LAG = 4
for t in range(12):
    nwr = max(0, t - LAG)
    e("s_waitcnt lgkmcnt(%d)" % min(15, 11 - t + nwr))
    e("v_mfma_f32_16x16x16_bf16 %s, %s, %s, %s" % (vr(vAcc + 4 * t, 4), vr(vVb + 2 * t, 2), vr(vP + 4, 2), vr(vAcc + 4 * t, 4)))
    if t >= LAG:
        o_out(t - LAG)
for t in range(12 - LAG, 12):
    o_out(t)
e("s_cmp_ge_u32 s%d, 12" % sI)
e("s_cbranch_scc1 L_last")


def readback(vbase):
    e("s_waitcnt lgkmcnt(0)")
    for j in range(6):
        e("ds_read_b128 %s, v%d offset:%d" % (vr(vbase + 4 * j, 4), vR, j * 1024))


e("s_add_u32 s%d, s%d, %d" % (sI, sI, NC))
for r in range(18):
    e("v_mov_b32 v%d, v%d" % (vP + r, vP + 6 + r))
for m in range(4):
    e("v_add_u32 v%d, %d, v%d" % (vAV + m, 4 * BLK, vAV + m))
for m in range(4):
    e("v_add_u32 v%d, s%d, v%d" % (vW + m, sWs, vW + m))
e("s_sub_i32 s%d, 0, s%d" % (sWs, sWs))
e("s_waitcnt lgkmcnt(0)")
e("ds_write_b32 v%d, v%d" % (vDoneA, vCnt))
if opts["dry"]:
    e("s_cbranch_execz L_real")
stamp()
e("v_add_u32 v%d, 1, v%d" % (vCnt, vCnt))
e("s_branch L_pv")
e("L_last:")
if opts["stamp"] >= 3:
    stamp(key=True)
readback(vAcc)
if opts["nr"]:
    ramp_wait("c")
for j in range(6):
    o = " offset:%d" % ((j % 3) * 1024) if j % 3 else ""
    e("s_waitcnt lgkmcnt(%d)" % (5 - j))
    e("buffer_store_dwordx4 %s, v%d, %s, s%d offen%s%s" % (vr(vAcc + 4 * j, 4), vOff + j, srd(sO), sSt, o, ST))
stamp(key=True)
e("L_fin:")
if opts["stamp"]:
    e("s_waitcnt vmcnt(0)")
    e("s_mov_b32 s%d, 61" % sStampIdx)
    stamp(True)
    e("s_getreg_b32 s62, hwreg(HW_REG_XCC_ID)")
    e("v_writelane_b32 v%d, s62, 62" % vStamp)
    e("s_load_dwordx2 s[%d:%d], s[0:1], 40" % (sQ, sQ + 1))
    e("s_mov_b32 s%d, %d" % (sQ + 2, NBYTES))
    e("s_mul_i32 s62, s2, %d" % (NW * 256))
    e("v_lshlrev_b32 v0, 2, v0")
    e("s_waitcnt lgkmcnt(0)")
    e("buffer_store_dword v%d, v0, %s, s62 offen" % (vStamp, srd(sQ)))
if opts["spin"]:
    if opts["leak"] in ("skew", "gfin"):
        e("s_mov_b64 exec, -1")
        e("s_waitcnt vmcnt(0)")
        e("s_memrealtime s[64:65]")
        e("s_load_dwordx2 s[%d:%d], s[0:1], 32" % (sQ, sQ + 1))
        e("s_mov_b32 s%d, 256" % (sQ + 2))
        e("s_not_b32 s62, s60")
        e("v_mov_b32 v1, s62")
        e("v_mov_b32 v2, 128")
        e("s_mov_b64 exec, 1")
        e("s_waitcnt lgkmcnt(0) vmcnt(0)")
        e("L_spinA:")
        e("s_sleep 4")
        e("s_memrealtime s[62:63]")
        e("s_waitcnt lgkmcnt(0)")
        e("s_sub_u32 s62, s62, s60")
        e("s_cmp_lt_u32 s62, 2000")
        e("s_cbranch_scc1 L_spinA")
        e("buffer_atomic_umax v1, v2, %s, 0 offen sc1" % srd(sQ))
        e("L_spin0:")
        e("s_sleep 4")
        e("s_memrealtime s[62:63]")
        e("s_waitcnt lgkmcnt(0)")
        e("s_sub_u32 s62, s62, s60")
        e("s_cmp_lt_u32 s62, 4500")
        e("s_cbranch_scc1 L_spin0")
        e("buffer_load_dword v1, v2, %s, 0 offen sc0 sc1" % srd(sQ))
        e("s_waitcnt vmcnt(0)")
        e("v_readfirstlane_b32 s62, v1")
        e("s_nop 3")
        e("s_not_b32 s62, s62")
        if opts["leak"] == "skew":
            e("s_sub_u32 s63, s60, s62")
            e("s_mov_b32 s60, s62")
            e("s_lshl_b32 s62, s63, 4")
            e("s_getreg_b32 s63, hwreg(HW_REG_XCC_ID)")
            e("s_and_b32 s63, s63, 7")
            e("s_bitcmp1_b32 %d, s63" % opts["lmask"])
            e("s_cselect_b32 s62, s62, 0")
            e("s_cmp_eq_u32 s%d, 0" % sWave)
            e("s_cselect_b32 s62, s62, 0")
        else:
            e("s_mov_b32 s60, s62")
            e("s_sub_u32 s62, s64, s62")
            e("s_lshl_b32 s62, s62, 2")
        e("s_min_u32 s62, s62, 20000")
        e("s_add_u32 s%d, s62, %d" % (sLeak, opts["spin"]))
    elif opts["leak"]:
        if opts["leak"] == "fin":
            e("s_waitcnt vmcnt(0)")
            leak("fin")
        e("s_sub_u32 s62, s64, s60")
        e("s_lshl_b32 s62, s62, 2")
        e("s_add_u32 s%d, s62, %d" % (sLeak, opts["spin"]))
    else:
        e("s_mov_b32 s%d, %d" % (sLeak, opts["spin"]))
    e("L_spin:")
    e("s_sleep 4")
    e("s_memrealtime s[62:63]")
    e("s_waitcnt lgkmcnt(0)")
    e("s_sub_u32 s62, s62, s60")
    e("s_cmp_lt_u32 s62, s%d" % sLeak)
    e("s_cbranch_scc1 L_spin")
e("L_end:")
e("s_endpgm")

hdr = """; Sliding-window (w=32) attention, B=1 H=32 S=2048 D=192, bf16.  Generated by gen11.py (hand-written generator).
; kernarg: q, k, v, out, debug, ws
; One workgroup per 256 query rows.  Wave 0 streams 16-row blocks into LDS by LDS-DMA (all K, all Q, all V);
; waves 1..4 each take every 4th 16-query task (S^T = K Q^T, softmax, O^T = V^T P^T with 16x16 MFMAs).
; Hand-off inside the workgroup through LDS counters; outputs stay in registers until the loads are done.
; @launch grid=(256,1,1) block=(%d,1,1) lds=%d
.amdgcn_target "amdgcn-amd-amdhsa--gfx950"
.text
.globl %s_kernel
.p2align %d
.p2align 8
.type %s_kernel,@function
%s_kernel:
""" % (64 * NW, LDS, NAME, opts["align"], NAME, NAME)

ftr = """
.section .rodata,"a"
.p2align 6
.amdhsa_kernel %s_kernel
  .amdhsa_next_free_vgpr %d
  .amdhsa_next_free_sgpr 84
  .amdhsa_accum_offset %d
  .amdhsa_group_segment_fixed_size 0
  .amdhsa_kernarg_size 48
  .amdhsa_user_sgpr_count 2
  .amdhsa_user_sgpr_kernarg_segment_ptr 1
  .amdhsa_system_sgpr_workgroup_id_x 1
.end_amdhsa_kernel
""" % (NAME, NVGPR, NVGPR)

open(sys.argv[1], "w").write(hdr + "\n".join(L) + ftr)
```
